```python
import torch

def _softmax(x, axis=-1):
    return torch.softmax(x, dim=axis)
def _gelu(x):
    return torch.nn.functional.gelu(x, approximate="tanh")
def _silu(x):
    return torch.nn.functional.silu(x)
def _sigmoid(x):
    return torch.sigmoid(x)
def _layernorm(x, axis=-1, eps=1e-5):
    m = x.mean(dim=axis, keepdim=True)
    v = x.var(dim=axis, keepdim=True, unbiased=False)
    return (x - m) / torch.sqrt(v + eps)
def _scatter_add(tgt, idx, src, axis=0):
    return tgt.clone().index_add_(axis, idx, src)
def _segment_sum(src, seg, n):
    out = torch.zeros((n,) + src.shape[1:], dtype=src.dtype)
    return out.index_add_(0, seg, src)
def _pad(x, pw):
    flat = tuple(v for pair in reversed(pw) for v in pair)
    return torch.nn.functional.pad(x, flat)

kernel_name = 'standalone__gqa_softmax__near_ridge'

def setup_inputs():

    _w = (lambda a: (lambda t: t.to(torch.bfloat16) if t.is_floating_point() else t)(torch.as_tensor(a)))
    B, Hq, Hkv, Sq, Sk, D = 16, 32, 32, 288, 1024, 128
    return {
        "q": _w((lambda *s: torch.randn(*s, dtype=torch.bfloat16) * 0.8)(B, Hq, Sq, D)),
        "k": _w((lambda *s: torch.randn(*s, dtype=torch.bfloat16) * 0.8)(B, Hkv, Sk, D)),
        "v": _w((lambda *s: torch.randn(*s, dtype=torch.bfloat16) * 0.05)(B, Hkv, Sk, D)),
    }

def reference(q, k, v):
    B, Hq, Sq, D = q.shape
    Hkv = k.shape[1]
    rep = Hq // Hkv
    k = (lambda x, n, axis: torch.repeat_interleave(x, n, dim=axis))(k, rep, axis=1)
    v = (lambda x, n, axis: torch.repeat_interleave(x, n, dim=axis))(v, rep, axis=1)
    scale = D ** -0.5
    scores = torch.einsum("bhqd,bhkd->bhqk", q, k) * scale
    p = _softmax(scores, axis=-1)
    return torch.einsum("bhqk,bhkd->bhqd", p, v)
```

```python
import sys, re, math, struct

NAME = "standalone__gqa_softmax__near_ridge_kernel"

PS = 1056
TS = 8 * PS
KB = 0
VB = 4 * TS
QB = 8 * TS
OPS = 1040
XB = 17 * TS
XLB = (XB + 16384 + 511) // 512 * 512
FB = XLB + 1024
LDS_BYTES = 163840
assert FB + 16 <= LDS_BYTES

vK, vV, vDma, vQ, vQx, vLin, vQw, vOw, vOxw, vOr, vXw, vXr, vK0, vT0, vT1 = range(1, 16)
T16 = 16
TSC = 32
NEGM = 40
SB = 60
PB = 76
vRC = 84
vXl = 94; vFl = 95
OB = 96
aQ = 0; aK = 80; aV = 144; aL = 208; aONE = 228; aSV = 232
X = 4

sW = 3
sKS, sVS, sQA, sQB_, sOS = 12, 16, 20, 24, 28
sKV, sM0, sCNT, sQOFF, sOOFF = 32, 33, 34, 35, 36
sC = 38
sTHR, sMODE = 40, 41
sBAD = 42
sHI, sSGN = 45, 46
sT = 48
sOA = 56
sKVA = 57
sST = 60

def f32bits(x): return struct.unpack("<I", struct.pack("<f", x))[0]
C_SCALE = f32bits(math.log2(math.e) / math.sqrt(128.0))
THR = f32bits(2.0 ** 40)

def R(c, n, k=1): return {(c, n + i) for i in range(k)}
def rs(c, n, k=1): return f"{c}{n}" if k == 1 else f"{c}[{n}:{n+k-1}]"

class I:
    def __init__(s, text, kind, rd=(), wr=(), srcc=(), tag=None, vm=None, lg=None, lds=None):
        s.text, s.kind, s.rd, s.wr, s.srcc = text, kind, set(rd), set(wr), set(srcc)
        s.tag, s.vm, s.lg, s.lds = tag, vm, lg, lds
        s.nvm = s.nlg = None
    def render(s):
        if s.kind == "wait":
            p = []
            if s.nvm is not None: p.append(f"vmcnt({s.nvm})")
            if s.nlg is not None: p.append(f"lgkmcnt({s.nlg})")
            return "s_waitcnt " + " ".join(p) if p else "s_nop 0"
        return s.text

def mfma(dc, d, ac, a, bc, b, c):
    ct = "0" if c is None else rs(dc, c, 4)
    cr = set() if c is None else R(dc, c, 4)
    return I(f"v_mfma_f32_16x16x32_bf16 {rs(dc,d,4)}, {rs(ac,a,4)}, {rs(bc,b,4)}, {ct}", "mfma",
             rd=R(ac, a, 4) | R(bc, b, 4) | cr, wr=R(dc, d, 4), srcc=cr)
def valu(text, rd, wr, kind="valu"): return I(text, kind, rd=rd, wr=wr)
def salu(text, wr=()): return I(text, "salu", wr=wr)
def wait(vm=None, lg=None): return I("", "wait", vm=vm, lg=lg)
def bar(): return I("s_barrier", "bar")
def nop(n): return I(f"s_nop {n}", "nop", tag=n)
def label(n): return I(f"{n}:", "label")
def off(o): return f" offset:{o}" if o else ""
def dsr128(dc, d, addr, o, tag, lds): return I(f"ds_read_b128 {rs(dc,d,4)}, v{addr}{off(o)}", "dsr", rd=R("v", addr), wr=R(dc, d, 4), tag=tag, lds=lds)
def dsrtr(dc, d, addr, o, tag, lds): return I(f"ds_read_b64_tr_b16 {rs(dc,d,2)}, v{addr}{off(o)}", "dsr", rd=R("v", addr), wr=R(dc, d, 2), tag=tag, lds=lds)
def dsw(n, addr, src, o, tag, lds):
    return I(f"ds_write_b{32*n} v{addr}, {rs('v',src,n)}{off(o)}", "dsw", rd=R("v", addr) | R("v", src, n), tag=tag, lds=lds)

class Cfg:
    LA = 3
    BOFF = 24
    nt = "nt"
    snt = "nt"
    stamps = 0
    adj = 0
    dma_span = 68
    exp64 = 0
    spill = 5
    nodma = 0
    def __init__(s, **kw):
        for k, v in kw.items():
            assert hasattr(Cfg, k), k
            setattr(s, k, v)

QUADS = {"salu": 1, "wait": 1, "bar": 1, "nop": 1, "valu": 1, "trans": 2, "dsr": 2, "dsw": 3, "dma": 3, "vld": 3, "vst": 3}
ORDER = {"salu": 0, "wait": 0, "bar": 0, "nop": 0, "dsr": 1, "dsw": 1, "dma": 1, "vld": 1, "vst": 1, "valu": 2, "trans": 2}
class Stream:
    def __init__(s):
        s.m = []; s.g = []; s.pos = {}
    def add(s, ins, key=None):
        if key is not None: s.pos[key] = len(s.m)
        s.m.append(ins); s.g.append([])
    def fits(s, i, ins, two_ds=False):
        g = s.g[i] + [ins]
        nds = sum(x.kind == "dsr" for x in g)
        if nds > (2 if two_ds else 1): return False
        q = sum(QUADS[x.kind] for x in g) - (1 if nds == 2 else 0)
        v = sum(QUADS[x.kind] for x in g if x.kind in ("valu", "trans"))
        return q <= 3 and v <= 2
    def put(s, i, ins): s.g[i].append(ins); return i
    def place(s, ins, lo, hi, pref=None, over=False):
        hi = min(hi, len(s.m) - 1)
        if over: lo = min(lo, hi)
        if pref:
            for i in range(lo, hi + 1):
                if pref(s.g[i]) and s.fits(i, ins): return s.put(i, ins)
        for i in range(lo, hi + 1):
            if s.fits(i, ins): return s.put(i, ins)
        for i in range(lo, hi + 1):
            if s.fits(i, ins, True): return s.put(i, ins)
        if over: return s.put(hi, ins)
        raise RuntimeError(f"cannot place {ins.text} in [{lo},{hi}]")
    def late(s, ins, lo, hi):
        for i in range(hi, lo - 1, -1):
            if s.fits(i, ins): return s.put(i, ins)
        raise RuntimeError(f"cannot place late {ins.text} in [{lo},{hi}]")
    def emit(s, lo, hi):
        out = []
        srt = lambda g: sorted(g, key=lambda x: ORDER[x.kind])
        if lo > 0: out += [x for x in srt(s.g[lo - 1]) if ORDER[x.kind] > 0]
        for i in range(lo, hi):
            if s.m[i] is not None: out.append(s.m[i])
            out += [x for x in srt(s.g[i]) if i < hi - 1 or hi == len(s.m) or ORDER[x.kind] == 0]
        return out

def dma(cfg, kv, T, j):
    base = (KB if kv == "K" else VB) + (T % 4) * TS + j * (PS - 1024)
    srd = sKS if kv == "K" else sVS
    return [salu(f"s_add_u32 m0, s{sM0}, {base}", wr={("s", "m0")}),
            I(f"buffer_load_dwordx4 v{vDma}, s[{srd}:{srd+3}], s{sKV} offen{off(1024*j)} {cfg.nt} lds", "dma",
              rd=R("v", vDma) | {("s", "m0")}, tag=(kv, T), lds=("w", (kv, T % 4), (kv, T)))]
def kv_step(cfg, T):
    d = 8192
    if T == 32 and not cfg.adj: d = 8192 + 255 * 262144
    return salu(f"s_add_u32 s{sKV}, s{sKV}, {d}")
def kread(T, kb, s): return dsr128("a", aK + 32 * (T & 1) + 16 * kb + 4 * s, vK, (T % 4) * TS + 512 * kb + 64 * s, ("Kr", T), ("r", ("K", T % 4), ("K", T)))
def vread(T, dt, kb): return dsrtr("a", aV + 32 * (T & 1) + 4 * dt + 2 * kb, vV, (T % 4) * TS + 512 * kb + 32 * dt, ("Vr", T), ("r", ("V", T % 4), ("V", T)))
def qread(h, q, s):
    if q == X: return dsr128("a", aQ + 16 * q + 4 * s, vQx, 64 * s, ("Qr", h, q), ("r", "QO", ("Q", h)))
    return dsr128("a", aQ + 16 * q + 4 * s, vQ, (q >> 1) * TS + (q & 1) * 512 + 64 * s, ("Qr", h, q), ("r", "QO", ("Q", h)))
def k0read(h, s): return dsr128("v", T16 + 4 * s, vK0, 64 * s, ("K0r", h), ("r", ("K", 0), ("K", 32 * h)))
def k0neg(i): return valu(f"v_bitop3_b32 v{T16+i}, v{T16+i}, v{vT1}, s{sMODE} bitop3:0x28", R("v", T16 + i) | R("v", vT1), R("v", T16 + i))
def negm_init(h, q, r): return valu(f"v_accvgpr_read_b32 v{NEGM+4*q+r}, a{aSV+5*h+q}", R("a", aSV + 5 * h + q), R("v", NEGM + 4 * q + r))
def negm_mfma(q, s): return mfma("v", NEGM + 4 * q, "v", T16 + 4 * s, "a", aQ + 16 * q + 4 * s, NEGM + 4 * q)
def scale_reg(src, t, packed):
    o = [valu(f"v_lshlrev_b32 v{t}, 16, v{src}", R("v", src), R("v", t)),
         valu(f"v_and_b32 v{t+1}, s{sHI}, v{src}", R("v", src), R("v", t + 1))]
    if packed:
        o.append(valu(f"v_pk_mul_f32 v[{t}:{t+1}], v[{t}:{t+1}], s[{sC}:{sC+1}]", R("v", t, 2), R("v", t, 2)))
    else:
        o.append(valu(f"v_mul_f32 v{t}, s{sC}, v{t}", R("v", t), R("v", t)))
        o.append(valu(f"v_mul_f32 v{t+1}, s{sC}, v{t+1}", R("v", t + 1), R("v", t + 1)))
    o.append(valu(f"v_cvt_pk_bf16_f32 v{src}, v{t}, v{t+1}", R("v", t, 2), R("v", src)))
    return o
def stamp(cfg, k):
    return [I(f"s_memtime s[{sST+2*k}:{sST+2*k+1}]", "smem")] if cfg.stamps > k else []

def units(e):
    u = []
    for t in range(32):
        if (t & 1) == e: u.append((t, X))
        u += [(t, q) for q in range(4)]
    return u

def head_stream(cfg, e, h):
    U = units(e); N = len(U); assert N == 144
    st = Stream()
    T0 = 32 * h
    start = {}
    for n, (t, q) in enumerate(U): start.setdefault(t, n)
    seen = set()
    def qk(n):
        t, q = U[n]; sb = SB + 8 * (n & 1)
        for kb in range(2):
            for s in range(4):
                st.add(mfma("v", sb + 4 * kb, "a", aK + 32 * (t & 1) + 16 * kb + 4 * s, "a", aQ + 16 * q + 4 * s,
                            NEGM + 4 * q if s == 0 else sb + 4 * kb), key=(n, "q", 4 * kb + s))
    def pv(n):
        t, q = U[n]; pb = PB + 4 * (n & 1); first = q not in seen; seen.add(q)
        for dt in range(8):
            o = OB + 32 * q + 4 * dt
            st.add(mfma("v", o, "a", aV + 32 * (t & 1) + 4 * dt, "v", pb, None if first else o), key=(n + 1, "p", dt))
        st.add(mfma("a", aL + 4 * q, "a", aONE, "v", pb, None if first else aL + 4 * q), key=(n + 1, "p", 8))
    for n in range(N + 1):
        if n < N: qk(n)
        else:
            for k in range(8):
                st.add(negm_mfma(U[k >> 2][1], k & 3) if h == 0 else None, key=(n, "q", k))
        if n == 0:
            for k in range(12): st.add(negm_mfma(U[2 + (k >> 2)][1], k & 3), key=(0, "p", k - 3) if k >= 3 else None)
        else: pv(n - 1)
    P = st.pos
    e64 = "_e64" if cfg.exp64 else ""
    for n in range(N):
        sb = SB + 8 * (n & 1); pb = PB + 4 * (n & 1)
        eg = [(n, "p", 1), (n, "p", 2), (n, "p", 4), (n, "p", 6), (n, "p", 8), (n + 1, "q", 0), (n + 1, "q", 2), (n + 1, "q", 4)]
        cg = [(n, "p", 3), (n, "p", 7), (n + 1, "q", 1), (n + 1, "q", 5)]
        for i in range(8): st.put(P[eg[i]], valu(f"v_exp_f32{e64} v{sb+i}, v{sb+i}", R("v", sb + i), R("v", sb + i), "trans"))
        for i in range(4): st.put(P[cg[i]], valu(f"v_cvt_pk_bf16_f32 v{pb+i}, v{sb+2*i}, v{sb+2*i+1}", R("v", sb + 2 * i, 2), R("v", pb + i)))
    if h == 1:
        for k in (1, 5): st.put(P[(N, "q", k)], nop(0))
        st.put(P[(N, "q", 7)], nop(1))
    last = len(st.m) - 1
    bounds = [P[(18 * b, "q", 0)] for b in range(8)] + [last + 1]
    def gap_at(x):
        n, k = divmod(x, 17)
        return P[(n, "q", k)] if k < 8 else P[(n, "p", k - 8)]
    hasexp = lambda g: any(x.kind == "trans" for x in g)
    hascvt = lambda g: any(x.kind == "valu" for x in g)
    for b in range(1, 7):
        st.put(bounds[b + 1] - 1, I(f"s_cbranch_scc1 L_m{h}{e}", "salu"))
        st.put(bounds[b + 1] - 3, salu(f"s_cmp_lg_u32 s{sCNT}, 0"))
        st.put(bounds[b + 1] - 5, salu(f"s_sub_u32 s{sCNT}, s{sCNT}, 1"))
    st.place(salu(f"s_mov_b32 s{sCNT}, 6"), bounds[1] - 12, bounds[1] - 1, hasexp)
    def safe_salu(ins, lo, hi):
        for i in range(lo, hi + 1):
            if any(bounds[b + 1] - 3 <= i <= bounds[b + 1] - 1 for b in range(1, 7)): continue
            if hasexp(st.g[i]) and st.fits(i, ins): return st.put(i, ins)
        raise RuntimeError("salu " + ins.text)
    B = {}
    for t in range(1, 33):
        if h == 1 and t == 32: break
        x = ((t - 1) >> 1) * 153 + ((t - 1) & 1) * 76 + cfg.BOFF
        g = gap_at(x)
        w = wait(vm=[("K", T0 + t), ("V", T0 + t)], lg=[("Kr", T0 + t - 1), ("Vr", T0 + t - 1), ("K0r", h), ("Qr", h), ("Qw", h + 1), ("Ow", h - 1), ("Or", h - 1)])
        i = st.place(w, g, g + 3, hasexp)
        B[t] = st.place(bar(), i + 1, i + 3, hasexp)
    for t in B:
        T = T0 + t + cfg.LA
        if T >= 64: continue
        lo = safe_salu(kv_step(cfg, T), B[t] + 1, B[t] + 8)
        if cfg.nodma: continue
        step = cfg.dma_span // 4 if t < 32 else min(cfg.dma_span, last - B[t] - 24) // 4
        for k, (kv, j) in enumerate((("K", 0), ("K", 1), ("V", 0), ("V", 1))):
            m0, ld = dma(cfg, kv, T, j)
            i = safe_salu(m0, max(lo, B[t] + 1 + k * step), B[t] + 1 + k * step + 12)
            lo = st.place(ld, i + 1, i + 8) + 1
    anchors = {}
    if h == 0:
        for b in range(7):
            for i in range(3):
                buf = T16 + 4 * i
                lo = bounds[b] + 85 + 102 * i
                if b >= 1:
                    lo = anchors[(b, i)] = st.place(dsw(4, vQw, buf, PS * i, ("Qw", 1), ("w", "QO", ("Q", 1))), lo, lo + 12)
                lo = st.place(I(f"buffer_load_dwordx4 {rs('v',buf,4)}, v{vLin}, s[{sQB_}:{sQB_+3}], s{sQOFF} offen{off(1024*i)} {cfg.nt}", "vld",
                                rd=R("v", vLin), wr=R("v", buf, 4), tag=("Ql", 1, 3 * b + i)), lo + 2, bounds[b + 1] - 1)
                if i == 2: safe_salu(salu(f"s_add_u32 s{sQOFF}, s{sQOFF}, 3072"), bounds[b + 1], bounds[b + 1] + 20)
    else:
        for b in range(1, 7):
            for i in range(3):
                buf = T16 + 4 * i
                lo = bounds[b] + 60 + 102 * i
                lo = anchors[(b, i)] = st.place(I(f"buffer_store_dwordx4 {rs('v',buf,4)}, v{vLin}, s[{sOS}:{sOS+3}], s{sOOFF} offen{off(1024*i)} {cfg.snt}", "vst",
                                rd=R("v", vLin) | R("v", buf, 4), tag=("Os", 0, 3 * (b - 1) + i)), lo, lo + 12)
                if i == 2: safe_salu(salu(f"s_add_u32 s{sOOFF}, s{sOOFF}, 3072"), lo + 1, bounds[b + 1] - 1)
    def frags(t):
        T = T0 + t
        lo = B[t] + 1 if t else 0
        if t:
            kdead = P[(start[t], "q", 0)] - 9 if t < 32 else last
            for kb in range(2):
                for s in range(4):
                    free = P[(start[t - 1] - 1, "q", 4 * kb + s)] if t >= 2 else 0
                    lo = st.place(kread(T, kb, s), max(lo, free), kdead, None, t == 32) + 1
        if t == 32: return
        if t: st.late(wait(lg=[("Kr", T)]), P[(start[t], "q", 0)] - 8, P[(start[t], "q", 0)] - 1)
        nxtB = B[t + 1] if t + 1 in B else last
        use = P[(start[t] + 1, "p", 0)]
        NSP = cfg.spill if (t and t % 4 == 0) else 0
        for k in range(16):
            dt, kb = k >> 1, k & 1
            free = P[(start[t - 1], "p", dt)] if t >= 2 else 0
            dead = min(use - 10, nxtB - 10); left = 15 - k
            l2 = max(lo, free)
            if NSP:
                if k < 16 - NSP: dead = bounds[t // 4] - 2; left -= NSP
                else: l2 = max(l2, bounds[t // 4])
            if t == 0: lo = st.put(k >> 1, vread(T, dt, kb)); continue
            navail = sum(1 for i in range(l2, dead + 1) if hascvt(st.g[i]) and st.fits(i, vread(T, dt, kb)))
            lo = st.place(vread(T, dt, kb), l2, dead, hascvt if navail > left else None) + 1
        if nxtB > use - 1: st.late(wait(lg=[("Vr", T)]), use - 6, use - 1)
    frags(0)
    for t in B:
        if t < 32: frags(t)
    if h == 0:
        for b in range(1, 7):
            for i in range(3):
                buf = T16 + 4 * i; hi = anchors[(b, i)] - 1
                lo = bounds[b] if i == 0 else anchors[(b, i - 1)] + 1
                lo = st.place(wait(vm=[("Ql", 1, 3 * (b - 1) + i)]), lo, hi, hasexp) + 1
                for r in range(4):
                    for ins in scale_reg(buf + r, TSC + 2 * (r & 1), False): lo = st.place(ins, lo, hi)
            st.place(valu(f"v_add_u32 v{vQw}, {3*PS}, v{vQw}", R("v", vQw), R("v", vQw)), anchors[(b, 2)] + 1, bounds[b + 1] - 1)
        lastu = {q: n for n, (t, q) in enumerate(U)}
        pre = P[(N, "q", 0)]
        lo = st.place(wait(vm=[("Ql", 1, 20)]), B[32] - 12, B[32] - 1, hasexp)
        lo = B[32] + 1
        for s in range(4): lo = st.place(k0read(1, s), lo, pre - 20) + 1
        lo = st.place(wait(lg=[("K0r", 1)]), lo + 5, pre - 12, hasexp) + 1
        for i in range(16): lo = st.place(k0neg(i), lo, pre - 2)
        for q in sorted(range(5), key=lambda q: lastu[q]):
            early = q in (U[0][1], U[1][1])
            lo = P[(lastu[q], "q", 7)]
            for s in range(4): lo = st.place(qread(1, q, s), lo, pre - 8 if early else last, None, True) + 1
            lo = P[(lastu[q], "q", 7)]
            for r in range(4): lo = st.place(negm_init(1, q, r), lo, pre - 2 if early else last, None, True)
        st.late(wait(lg=[("Qr", 1, U[0][1]), ("Qr", 1, U[1][1])]), pre - 3, pre - 1)
        frags(32)
    else:
        for b in range(1, 7):
            for i in range(3):
                j = 3 * (b - 1) + i; buf = T16 + 4 * i; a = anchors[(b, i)]
                lo = st.place(dsr128("v", buf, vOr, OPS * i, ("Or", 0, j), ("r", "QO", ("O", 0))), a - 55, a - 12)
                if i == 2: st.place(valu(f"v_add_u32 v{vOr}, {3*OPS}, v{vOr}", R("v", vOr), R("v", vOr)), lo + 1, bounds[b + 1] - 1)
                st.late(wait(lg=[("Or", 0, j)]), a - 6, a - 1)
    return st, bounds

def normalize(q, dts, rc):
    o = []
    for dt in dts:
        b = OB + 32 * q + 4 * dt
        for k in (0, 2): o.append(valu(f"v_pk_mul_f32 v[{b+k}:{b+k+1}], v[{b+k}:{b+k+1}], v[{rc}:{rc+1}] op_sel_hi:[1,0]", R("v", b + k, 2) | R("v", rc), R("v", b + k, 2)))
    for dt in dts:
        b = OB + 32 * q + 4 * dt
        o.append(valu(f"v_cvt_pk_bf16_f32 v{b}, v{b}, v{b+1}", R("v", b, 2), R("v", b)))
        o.append(valu(f"v_cvt_pk_bf16_f32 v{b+1}, v{b+2}, v{b+3}", R("v", b + 2, 2), R("v", b + 1)))
    return o

def epilogue(cfg, e, h):
    o = []
    keep = [4 * e + i for i in range(4)]; send = [4 * (1 - e) + i for i in range(4)]
    for i, dt in enumerate(send): o.append(dsw(4, vXw, OB + 32 * X + 4 * dt, 1024 * i, ("Xw", h), ("w", "X", ("X", h))))
    for q in (X, 0, 1, 2):
        o.append(valu(f"v_accvgpr_read_b32 v{vRC+2*q}, a{aL+4*q}", R("a", aL + 4 * q), R("v", vRC + 2 * q)))
    o.append(valu(f"v_accvgpr_read_b32 v{vRC+6}, a{aL+12}", R("a", aL + 12), R("v", vRC + 6)))
    o.append(dsw(1, vXl, vRC + 2 * X, 0, ("Xw", h), ("w", "X", ("X", h))))
    o.append(valu(f"v_add_f32 v{vRC+1}, v{vRC}, v{vRC+2}", R("v", vRC, 4), R("v", vRC + 1)))
    o.append(valu(f"v_add_f32 v{vRC+3}, v{vRC+4}, v{vRC+6}", R("v", vRC + 4, 4), R("v", vRC + 3)))
    o.append(valu(f"v_add_f32 v{vRC+1}, v{vRC+1}, v{vRC+8}", R("v", vRC + 1) | R("v", vRC + 8), R("v", vRC + 1)))
    o.append(valu(f"v_add_f32 v{vT0}, v{vRC+1}, v{vRC+3}", R("v", vRC + 1) | R("v", vRC + 3), R("v", vT0)))
    o.append(valu(f"v_cmp_nge_f32 vcc, s{sTHR}, v{vT0}", R("v", vT0), set()))
    for q in range(4): o.append(valu(f"v_rcp_f32 v{vRC+2*q}, v{vRC+2*q}", R("v", vRC + 2 * q), R("v", vRC + 2 * q), "trans"))
    o.append(salu(f"s_or_b64 s[{sBAD}:{sBAD+1}], s[{sBAD}:{sBAD+1}], vcc"))
    if h == 1:
        o.append(salu(f"s_or_b32 s{sT}, s{sBAD}, s{sBAD+1}"))
        o.append(valu(f"v_mov_b32 v{vT0}, s{sT}", set(), R("v", vT0)))
        o.append(dsw(1, vFl, vT0, 0, ("Xw", h), ("w", "F", ("F", h))))
    o += normalize(0, range(8), vRC)
    o.append(wait(lg=[("Xw", h), ("Qr", h + 1), ("Or", h - 1), ("Kr", 32)]))
    o.append(bar())
    for i in range(4): o.append(dsr128("v", SB + 4 * i, vXr, 1024 * i, ("Xr", h), ("r", "X", ("X", h))))
    o.append(valu(f"v_xor_b32 v{vT0}, 256, v{vXl}", R("v", vXl), R("v", vT0)))
    o.append(I(f"ds_read_b32 v{vRC+9}, v{vT0}", "dsr", rd=R("v", vT0), wr=R("v", vRC + 9), tag=("Xr", h), lds=("r", "X", ("X", h))))
    if h == 1:
        o.append(valu(f"v_mov_b32 v{vT0}, {FB}", set(), R("v", vT0)))
        o.append(dsr128("v", PB, vT0, 0, ("Fr", h), ("r", "F", ("F", h))))
    def stage(q): return [dsw(2, vOw, OB + 32 * q + 4 * dt, (q >> 1) * 8 * OPS + (q & 1) * 512 + 32 * dt, ("Ow", h), ("w", "QO", ("O", h))) for dt in range(8)]
    def back(g, buf):
        return [dsr128("v", buf + 4 * p, vOr, (8 * g + p) * OPS, ("Op", g, p), None) for p in range(8)]
    def store(g, buf):
        r = []
        for p in range(8):
            if p % 4 == 0 and (g or p): r.append(salu(f"s_add_u32 s{sOOFF}, s{sOOFF}, 4096"))
            r.append(wait(lg=[("Op", g, p)]))
            r.append(I(f"buffer_store_dwordx4 {rs('v',buf+4*p,4)}, v{vLin}, s[{sOS}:{sOS+3}], s{sOOFF} offen{off(1024*(p&3))} {cfg.snt}", "vst",
                       rd=R("v", vLin) | R("v", buf + 4 * p, 4), tag=("Os", 1)))
        return r
    o += stage(0)
    if h == 1:
        o.append(salu(f"s_mul_i32 s{sT}, s{sW}, {16*OPS}")); o.append(salu(f"s_add_u32 s{sT}, s{sT}, {QB}"))
        o.append(valu(f"v_add_u32 v{vOr}, s{sT}, v{vLin}", R("v", vLin), R("v", vOr)))
        o.append(salu(f"s_lshl_b32 s{sT}, s{sW}, 14")); o.append(salu(f"s_add_u32 s{sOOFF}, s{sOA}, s{sT}"))
        o.append(salu(f"s_add_u32 s{sOOFF}, s{sOOFF}, {73728 * (1 if cfg.adj else 256)}"))
    o += normalize(1, range(8), vRC + 2) + stage(1)
    if h == 1: o += back(0, OB)
    o += normalize(2, range(8), vRC + 4) + stage(2)
    if h == 1: o += store(0, OB)
    o += normalize(3, range(8), vRC + 6) + stage(3)
    if h == 1: o += back(1, OB + 32)
    o.append(wait(lg=[("Xr", h)]))
    o.append(valu(f"v_add_f32 v{vRC+8}, v{vRC+8}, v{vRC+9}", R("v", vRC + 8, 2), R("v", vRC + 8)))
    o.append(valu(f"v_rcp_f32 v{vRC+8}, v{vRC+8}", R("v", vRC + 8), R("v", vRC + 8), "trans"))
    for i, dt in enumerate(keep):
        b = OB + 32 * X + 4 * dt
        for k in (0, 2): o.append(valu(f"v_pk_add_f32 v[{b+k}:{b+k+1}], v[{b+k}:{b+k+1}], v[{SB+4*i+k}:{SB+4*i+k+1}]", R("v", b + k, 2) | R("v", SB + 4 * i + k, 2), R("v", b + k, 2)))
    o += normalize(X, keep, vRC + 8)
    for i, dt in enumerate(keep): o.append(dsw(2, vOxw, OB + 32 * X + 4 * dt, 32 * i, ("Ow", h), ("w", "QO", ("O", h))))
    if h == 1:
        o += store(1, OB + 32)
        o.append(wait(lg=[("Ow", h), ("Fr", h)]))
        o.append(bar())
        o.append(salu(f"s_mul_i32 s{sT}, s{sW}, {2*OPS}")); o.append(salu(f"s_add_u32 s{sT}, s{sT}, {QB + 64*OPS}"))
        o.append(valu(f"v_add_u32 v{vOr}, s{sT}, v{vLin}", R("v", vLin), R("v", vOr)))
        o.append(salu(f"s_lshl_b32 s{sT}, s{sW}, 11")); o.append(salu(f"s_add_u32 s{sOOFF}, s{sOA}, s{sT}"))
        o.append(salu(f"s_add_u32 s{sOOFF}, s{sOOFF}, {73728 * (1 if cfg.adj else 256) + 65536}"))
        for p in range(2): o.append(dsr128("v", T16 + 4 * p, vOr, p * OPS, ("Or", 1, p), ("r", "QO", ("O", 1))))
        o.append(valu(f"v_or3_b32 v{PB}, v{PB}, v{PB+1}, v{PB+2}", R("v", PB, 3), R("v", PB)))
        o.append(valu(f"v_or_b32 v{PB}, v{PB}, v{PB+3}", R("v", PB, 4), R("v", PB)))
        for p in range(2):
            o.append(wait(lg=[("Or", 1, p)]))
            o.append(I(f"buffer_store_dwordx4 {rs('v',T16+4*p,4)}, v{vLin}, s[{sOS}:{sOS+3}], s{sOOFF} offen{off(1024*p)} {cfg.snt}", "vst",
                       rd=R("v", vLin) | R("v", T16 + 4 * p, 4), tag=("Os", 1)))
        o.append(valu(f"v_readfirstlane_b32 s{sT}, v{PB}", R("v", PB), set()))
    return o

def setup(cfg):
    L = []
    A = L.append
    A("s_cmp_ge_u32 s2, 256"); A("s_cbranch_scc1 L_end")
    A("s_load_dwordx4 s[4:7], s[0:1], 0"); A("s_load_dwordx4 s[8:11], s[0:1], 16")
    if cfg.stamps:
        A("s_load_dwordx2 s[58:59], s[0:1], 40")
        A(f"s_memrealtime s[{sST}:{sST+1}]"); A(f"s_memtime s[{sST+4}:{sST+5}]")
    A("v_lshrrev_b32 v16, 6, v0"); A("v_and_b32 v17, 63, v0")
    A(f"v_readfirstlane_b32 s{sW}, v16")
    A(f"v_lshlrev_b32 v{vLin}, 4, v17")
    A("v_lshrrev_b32 v18, 4, v17")
    A("v_and_b32 v19, 7, v17")
    A("v_bfe_u32 v20, v17, 3, 1")
    A(f"v_lshlrev_b32 v{vK0}, 4, v18")
    A(f"v_mul_u32_u24 v21, {PS}, v19"); A("v_lshl_add_u32 v21, v20, 8, v21")
    A(f"v_add_u32 v{vK}, v21, v{vK0}")
    A("v_bfe_u32 v21, v17, 2, 3")
    A(f"v_mul_u32_u24 v21, {PS}, v21"); A("v_lshrrev_b32 v22, 5, v17"); A("v_lshl_add_u32 v21, v22, 8, v21")
    A("v_and_b32 v22, 3, v17"); A("v_lshl_add_u32 v21, v22, 3, v21"); A(f"v_add_u32 v{vV}, {VB}, v21")
    A(f"v_lshl_add_u32 v{vDma}, v16, 11, v{vLin}")
    A(f"v_mul_u32_u24 v21, {2*TS}, v16"); A(f"v_add_u32 v21, {QB}, v21"); A(f"v_add_u32 v{vQ}, v21, v{vK}")
    A("v_lshrrev_b32 v22, 1, v16")
    A(f"v_lshl_add_u32 v21, v22, 9, v{vK}"); A(f"v_add_u32 v{vQx}, {QB + 8*TS}, v21")
    A(f"v_mul_u32_u24 v21, {OPS}, v19"); A("v_lshl_add_u32 v21, v20, 8, v21"); A("v_lshl_add_u32 v21, v18, 3, v21")
    A(f"v_mul_u32_u24 v23, {16*OPS}, v16"); A(f"v_add_u32 v23, {QB}, v23"); A(f"v_add_u32 v{vOw}, v23, v21")
    A("v_lshl_add_u32 v21, v22, 9, v21"); A("v_and_b32 v23, 1, v16"); A("v_lshl_add_u32 v21, v23, 7, v21"); A(f"v_add_u32 v{vOxw}, {QB + 64*OPS}, v21")
    A(f"v_lshl_add_u32 v21, v16, 12, v{vLin}"); A(f"v_add_u32 v{vXw}, {XB}, v21")
    A("v_xor_b32 v21, 0x1000, v21"); A(f"v_add_u32 v{vXr}, {XB}, v21")
    assert XLB % 512 == 0
    A(f"v_lshlrev_b32 v21, 2, v0"); A(f"v_add_u32 v{vXl}, {XLB}, v21")
    A(f"v_lshlrev_b32 v21, 2, v16"); A(f"v_add_u32 v{vFl}, {FB}, v21")
    A(f"v_mov_b32 v{vT1}, 0x80008000")
    A(f"v_mov_b32 v21, 0x3f803f80")
    for i in range(4): A(f"v_accvgpr_write_b32 a{aONE+i}, v21")
    for i in range(10): A(f"v_accvgpr_write_b32 a{aSV+i}, 0")
    A(f"s_mov_b32 s{sC}, {C_SCALE:#x}"); A(f"s_mov_b32 s{sC+1}, {C_SCALE:#x}"); A(f"s_mov_b32 s{sTHR}, {THR:#x}")
    A(f"s_mov_b32 s{sHI}, 0xffff0000"); A(f"s_mov_b32 s{sMODE}, -1")
    A(f"s_mul_i32 s{sM0}, s{sW}, {2*PS}")
    if cfg.adj: A(f"s_lshl_b32 s{sT}, s2, 1")
    else: A(f"s_mov_b32 s{sT}, s2")
    A(f"s_mul_i32 s{sOA}, s{sT}, 73728"); A(f"s_lshl_b32 s{sKVA}, s{sT}, 18")
    A(f"s_mul_i32 s{sT}, s{sW}, 18432"); A(f"s_add_u32 s{sT}, s{sT}, s{sOA}")
    A("s_waitcnt lgkmcnt(0)")
    for d, p, n in ((sKS, 6, 134217728), (sVS, 8, 134217728), (sOS, 10, 37748736)):
        A(f"s_mov_b32 s{d}, s{p}"); A(f"s_mov_b32 s{d+1}, s{p+1}"); A(f"s_mov_b32 s{d+2}, {n}"); A(f"s_mov_b32 s{d+3}, 0x20000")
    A(f"s_add_u32 s{sQA}, s4, s{sT}"); A(f"s_addc_u32 s{sQA+1}, s5, 0"); A(f"s_mov_b32 s{sQA+2}, 18432"); A(f"s_mov_b32 s{sQA+3}, 0x20000")
    A(f"s_add_u32 s{sQB_}, s{sQA}, {73728 * (1 if cfg.adj else 256)}"); A(f"s_addc_u32 s{sQB_+1}, s{sQA+1}, 0"); A(f"s_mov_b32 s{sQB_+2}, 18432"); A(f"s_mov_b32 s{sQB_+3}, 0x20000")
    return L

def prologue(cfg):
    o = []
    o.append(salu(f"s_mov_b32 s{sKV}, s{sKVA}"))
    o.append(salu(f"s_mov_b64 s[{sBAD}:{sBAD+1}], 0"))
    def D(kv, T):
        r = []
        for j in range(2):
            m0, ld = dma(cfg, kv, T, j); r += [m0, nop(0), ld]
        return r
    o += D("K", 0)
    for j in range(18):
        if j % 4 == 0: o.append(salu(f"s_mov_b32 s{sQOFF}, {1024*j}"))
        o.append(I(f"buffer_load_dwordx4 {rs('v',OB+4*j,4)}, v{vLin}, s[{sQA}:{sQA+3}], s{sQOFF} offen{off(1024*(j&3))} {cfg.nt}", "vld",
                   rd=R("v", vLin), wr=R("v", OB + 4 * j, 4), tag=("Ql", 0, j)))
    o += D("V", 0)
    o.append(salu(f"s_mov_b32 s{sQOFF}, 0"))
    o.append(salu(f"s_mul_i32 s{sT}, s{sW}, {18*PS}")); o.append(salu(f"s_add_u32 s{sT}, s{sT}, {QB}"))
    o.append(valu(f"v_add_u32 v{vQw}, s{sT}, v{vLin}", R("v", vLin), R("v", vQw)))
    o.append(salu(f"s_mul_i32 s{sT}, s{sW}, {18*OPS}")); o.append(salu(f"s_add_u32 s{sT}, s{sT}, {QB}"))
    o.append(valu(f"v_add_u32 v{vOr}, s{sT}, v{vLin}", R("v", vLin), R("v", vOr)))
    o.append(salu(f"s_mul_i32 s{sT}, s{sW}, 18432")); o.append(salu(f"s_add_u32 s{sOOFF}, s{sT}, s{sOA}"))
    for q in range(5):
        for r in range(4): o.append(negm_init(0, q, r))
    later = []
    for T in range(1, cfg.LA + 1): later.append([kv_step(cfg, T)] + D("K", T)); later.append(D("V", T))
    for j in range(18):
        o.append(wait(vm=[("Ql", 0, j)]))
        for r in range(4): o += scale_reg(OB + 4 * j + r, TSC + 2 * r, True)
        o.append(dsw(4, vQw, OB + 4 * j, PS * j, ("Qw", 0), ("w", "QO", ("Q", 0))))
        if j % 2 == 1 and later: o += later.pop(0)
    assert not later
    o += stamp(cfg, 4)
    o.append(wait(vm=[("K", 0), ("V", 0)], lg=[("Qw", 0)])); o.append(bar())
    for s in range(4): o.append(k0read(0, s))
    return o

def prologue2(cfg, e):
    U = units(e)
    o = []
    for n in range(2):
        for s in range(4): o.append(qread(0, U[n][1], s))
    o.append(wait(lg=[("K0r", 0)]))
    for kb in range(2):
        for s in range(4): o.append(kread(0, kb, s))
    for i in range(16): o.append(k0neg(i))
    for n in range(2, 5):
        for s in range(4): o.append(qread(0, U[n][1], s))
    o.append(wait(lg=[("Qr", 0, U[0][1]), ("Qr", 0, U[1][1])]))
    for n in range(2):
        for s in range(4): o.append(negm_mfma(U[n][1], s))
    o.append(wait(lg=[("Kr", 0), ("Qr", 0)]))
    return o

def fallback(cfg):
    L = []; A = L.append
    A("s_waitcnt vmcnt(0) lgkmcnt(0)"); A("s_barrier")
    A(f"s_mov_b32 s{sMODE}, 0")
    A("v_and_b32 v16, 63, v0"); A("v_lshrrev_b32 v17, 4, v16")
    A("v_and_b32 v18, 7, v16"); A("v_bfe_u32 v19, v16, 3, 1"); A("v_lshl_add_u32 v18, v18, 2, v19")
    A("v_lshlrev_b32 v18, 8, v18"); A("v_lshl_add_u32 v18, v17, 4, v18")
    A("v_and_b32 v19, 15, v16"); A("v_lshlrev_b32 v19, 8, v19"); A("v_lshl_add_u32 v19, v17, 4, v19")
    A(f"s_mov_b32 s{sT+4}, s4"); A(f"s_mov_b32 s{sT+5}, s5"); A(f"s_mov_b32 s{sT+6}, 37748736"); A(f"s_mov_b32 s{sT+7}, 0x20000")
    for h in range(2):
        hq = 73728 * (1 if cfg.adj else 256) * h; hk = 262144 * (1 if cfg.adj else 256) * h
        for q in range(5):
            if q < 4:
                A(f"s_lshl_b32 s{sT}, s{sW}, 14"); A(f"s_add_u32 s{sT}, s{sT}, {hq + (q >> 1) * 8192 + (q & 1) * 512}")
            else:
                A(f"s_lshr_b32 s{sT}, s{sW}, 1"); A(f"s_lshl_b32 s{sT}, s{sT}, 9"); A(f"s_add_u32 s{sT}, s{sT}, {hq + 65536}")
            A(f"s_add_u32 s{sT}, s{sT}, s{sOA}")
            for s in range(4): A(f"buffer_load_dwordx4 {rs('v', OB+16*q+4*s, 4)}, v18, s[{sT+4}:{sT+7}], s{sT} offen{off(64*s)}")
        A("s_waitcnt vmcnt(0)")
        for r in range(80):
            for ins in scale_reg(OB + r, TSC + 2 * (r & 3), True): A(ins.text)
        for i in range(5): A(f"v_mov_b32 v{NEGM+i}, 0xff800000")
        A(f"s_add_u32 s{sT}, s{sKVA}, {hk}"); A(f"s_mov_b32 s{sT+1}, 64")
        A(f"L_fb{h}:")
        for s in range(4): A(f"buffer_load_dwordx4 {rs('v', SB+4*s, 4)}, v19, s[{sKS}:{sKS+3}], s{sT} offen{off(64*s)}")
        A("s_waitcnt vmcnt(0)")
        for q in range(5):
            for s in range(4): A(mfma("v", 192 + 4 * q, "v", SB + 4 * s, "v", OB + 16 * q + 4 * s, None if s == 0 else 192 + 4 * q).text)
        A("s_nop 7"); A("s_nop 1")
        for q in range(5):
            A(f"v_max3_f32 v{NEGM+q}, v{NEGM+q}, v{192+4*q}, v{193+4*q}"); A(f"v_max3_f32 v{NEGM+q}, v{NEGM+q}, v{194+4*q}, v{195+4*q}")
        A(f"s_add_u32 s{sT}, s{sT}, 4096"); A(f"s_sub_u32 s{sT+1}, s{sT+1}, 1"); A(f"s_cmp_lg_u32 s{sT+1}, 0"); A(f"s_cbranch_scc1 L_fb{h}")
        for x in (16, 32):
            A(f"v_xor_b32 v20, {x}, v16"); A("v_lshlrev_b32 v20, 2, v20")
            for q in range(5): A(f"ds_bpermute_b32 v{SB+q}, v20, v{NEGM+q}")
            A("s_waitcnt lgkmcnt(0)")
            for q in range(5): A(f"v_max_f32 v{NEGM+q}, v{NEGM+q}, v{SB+q}")
        for q in range(5): A(f"v_xor_b32 v{NEGM+q}, 0x80000000, v{NEGM+q}")
        for q in range(5): A(f"v_accvgpr_write_b32 a{aSV+5*h+q}, v{NEGM+q}")
    A("s_nop 1")
    A("s_branch L_start")
    return L

def match(tag, want): return tag is not None and any(tag[:len(w)] == w for w in want)
def resolve(tr):
    vm = []; lg = []; vdone = 0; ldone = 0; pend = {}; epoch = 0; ev = []
    for ins in tr:
        for r in ins.rd | ins.wr:
            if r in pend:
                c, idx = pend[r]
                assert idx < (vdone if c == "vm" else ldone), f"unwaited load of {r} at {ins.text}"
                del pend[r]
        if ins.kind == "wait":
            ins.nvm = ins.nlg = None
            for want, lst, mx, c in ((ins.vm, vm, 63, "vm"), (ins.lg, lg, 14, "lg")):
                if not want: continue
                idx = max((i for i, x in enumerate(lst) if match(x.tag, want)), default=-1)
                if idx < 0: continue
                n = min(len(lst) - 1 - idx, mx)
                if c == "vm": ins.nvm = n; vdone = max(vdone, len(lst) - n)
                else: ins.nlg = n; ldone = max(ldone, len(lst) - n)
            for x in vm[:vdone] + lg[:ldone]:
                if x.lds and not hasattr(x, "edone"): x.edone = epoch
        elif ins.kind == "bar": epoch += 1
        elif ins.kind in ("dma", "vld", "vst"):
            vm.append(ins)
            assert len(vm) - vdone <= 63
            for r in ins.wr: pend[r] = ("vm", len(vm) - 1)
        elif ins.kind in ("dsr", "dsw"):
            lg.append(ins)
            for r in ins.wr: pend[r] = ("lg", len(lg) - 1)
        if ins.lds: ins.eissue = epoch; ev.append(ins)
    return epoch, ev
def check_lds(evs):
    reg = {}
    for ev in evs:
        for x in ev: reg.setdefault(x.lds[1], {}).setdefault(x.lds[2], {"r": [], "w": []})[x.lds[0]].append(x)
    INF = 10 ** 9
    for r, cont in reg.items():
        order = sorted(cont, key=lambda c: min(x.eissue for x in cont[c]["w"]) if cont[c]["w"] else -1)
        for i, c in enumerate(order):
            w, rd = cont[c]["w"], cont[c]["r"]
            if w and rd:
                assert max(getattr(x, "edone", INF) for x in w) < min(x.eissue for x in rd), f"LDS RAW {r} {c}"
            if i + 1 < len(order):
                nw = cont[order[i + 1]]["w"]
                assert max(getattr(x, "edone", INF) for x in rd + w) < min(x.eissue for x in nw), f"LDS WAR {r} {c}->{order[i+1]}"
def check_hazards(tr):
    seq = [x for x in tr if x.kind != "label"]
    def ws(x): return x.tag + 1 if x.kind == "nop" else 1
    for i, c in enumerate(seq):
        d = 0
        for j in range(i - 1, max(-1, i - 12), -1):
            p = seq[j]; need = 0
            isv = c.kind in ("valu", "trans"); mem = c.kind in ("dsr", "dsw", "dma", "vld", "vst")
            if p.kind == "mfma":
                if (isv or mem) and p.wr & (c.rd | c.wr): need = 8
                if c.kind == "mfma":
                    if p.wr & (c.rd - c.srcc): need = 8
                    if p.wr & c.srcc and p.wr != c.srcc: need = 6
                if isv and p.srcc & c.wr: need = max(need, 3)
            if p.kind in ("valu", "trans") and c.kind == "mfma" and p.wr & c.rd: need = 2
            if p.kind == "trans" and c.kind == "valu" and p.wr & c.rd: need = 1
            if p.kind == "salu" and c.kind == "dma" and ("s", "m0") in p.wr: need = 1
            if p.kind == "vst" and (p.rd & c.wr): need = 2
            if p.kind in ("valu", "trans") and "readfirstlane" in c.text and p.wr & c.rd: need = 1
            assert d >= need, f"hazard: {p.text} -> {c.text} needs {need}, has {d}"
            d += ws(p)

def build(cfg):
    out = ["; GQA softmax attention, B16 H32 Sq288 Sk1024 D128 bf16, generated by dev/gen.py (hand-designed schedule)",
           f"; @launch grid=(256,1,1) block=(256,1,1) lds={LDS_BYTES}",
           '.amdgcn_target "amdgcn-amd-amdhsa--gfx950"', ".text", f".globl {NAME}", ".p2align 8", f".type {NAME},@function", f"{NAME}:"]
    out += setup(cfg)
    out.append("L_start:")
    evs = []; eps = []; texts = []; pro_text = None
    for e in range(2):
        pro = prologue(cfg)
        segs = [("pro", pro), ("pro2", prologue2(cfg, e))]
        for h in range(2):
            st, bounds = head_stream(cfg, e, h)
            for b in range(8): segs.append(((h, b), st.emit(bounds[b], bounds[b + 1])))
            segs.append((("st", h), stamp(cfg, 5 + 2 * h)))
            segs.append((("epi", h), epilogue(cfg, e, h)))
            segs.append((("st2", h), stamp(cfg, 6 + 2 * h)))
        tr = [x for _, s in segs for x in s]
        ep, ev = resolve(tr); eps.append(ep); evs.append(ev)
        check_hazards(tr)
        d = dict(segs)
        for h in range(2):
            ref = d[(h, 1)]
            for b in range(2, 7):
                cur = d[(h, b)]
                assert len(cur) == len(ref), (h, b, len(cur), len(ref))
                for x, y in zip(ref, cur):
                    assert x.kind == y.kind and x.text == y.text, (h, b, x.text, y.text)
                    if x.kind == "wait":
                        for a in ("nvm", "nlg"):
                            vals = [v for v in (getattr(x, a), getattr(y, a)) if v is not None]
                            setattr(x, a, min(vals) if vals else None)
        t = []
        for k, s in segs:
            if k == "pro":
                p = [x.render() for x in s]
                assert pro_text is None or p == pro_text
                pro_text = p; continue
            if isinstance(k, tuple) and isinstance(k[0], int):
                if 2 <= k[1] <= 6: continue
                if k[1] == 1: t.append(f"L_m{k[0]}{e}:")
            t += [x.render() for x in s]
        texts.append(t)
    assert eps[0] == eps[1]
    if not cfg.nodma: check_lds(evs)
    out += pro_text
    out += [f"s_bitcmp1_b32 s{sW}, 0", "s_cbranch_scc1 L_odd"]
    out += texts[0] + ["s_branch L_fin", ".p2align 6", "L_odd:"] + texts[1] + ["L_fin:"]
    out += ["s_nop 3", f"s_and_b32 s{sT}, s{sT}, s{sMODE}", "s_cbranch_scc1 L_fallback"]
    if cfg.stamps:
        n = cfg.stamps
        out += ["s_waitcnt vmcnt(0)", "s_barrier", f"s_memrealtime s[{sST+2}:{sST+3}]", f"s_memtime s[{sST+6}:{sST+7}]", "s_waitcnt lgkmcnt(0)",
                f"s_cmp_lg_u32 s{sW}, 0", "s_cbranch_scc1 L_end", f"s_mul_i32 s{sT}, s2, {n*8}", f"v_mov_b32 v20, s{sT}",
                "v_cmp_eq_u32 vcc, 0, v0", "s_and_saveexec_b64 s[50:51], vcc"]
        for i in range(n):
            out += [f"v_mov_b32 v22, s{sST+2*i}", f"v_mov_b32 v23, s{sST+2*i+1}", f"global_store_dwordx2 v20, v[22:23], s[58:59] offset:{8*i}", "s_waitcnt vmcnt(0)"]
    out += ["L_end:", "s_endpgm", "L_fallback:"] + fallback(cfg)
    out += ['.section .rodata,"a"', ".p2align 6", f".amdhsa_kernel {NAME}",
            "  .amdhsa_next_free_vgpr 512", "  .amdhsa_next_free_sgpr 102", "  .amdhsa_accum_offset 256",
            "  .amdhsa_group_segment_fixed_size 0", "  .amdhsa_kernarg_size 48", "  .amdhsa_user_sgpr_count 2",
            "  .amdhsa_user_sgpr_kernarg_segment_ptr 1", "  .amdhsa_system_sgpr_workgroup_id_x 1", ".end_amdhsa_kernel"]
    return "\n".join(out) + "\n"

if __name__ == "__main__":
    path = sys.argv[1]
    kw = {}
    for a in sys.argv[2:]:
        k, v = a.split("=", 1)
        kw[k] = int(v) if re.fullmatch(r"-?\d+", v) else v.replace("+", " ")
    s = build(Cfg(**kw))
    open(path, "w").write(s)
    print(path, len(s), "bytes", s.count("\n"), "lines")
```

```python
import sys, re, math, struct

NAME = "standalone__gqa_softmax__near_ridge_kernel"

PS = 1056
TS = 8 * PS
KB = 0
VB = 4 * TS
QB = 8 * TS
OPS = 1040
XB = 17 * TS
XLB = (XB + 16384 + 511) // 512 * 512
FB = XLB + 1024
LDS_BYTES = 163840
assert FB + 16 <= LDS_BYTES

vK, vV, vDma, vQ, vQx, vLin, vQw, vOw, vOxw, vOr, vXw, vXr, vK0, vT0, vT1 = range(1, 16)
T16 = 16
TSC = 32
NEGM = 40
SB = 60
PB = 76
vRC = 84
vXl = 94; vFl = 95
OB = 96
aQ = 0; aK = 80; aV = 144; aL = 208; aONE = 228; aSV = 232
X = 4

sW = 3
sKS, sVS, sQA, sQB_, sOS = 12, 16, 20, 24, 28
sKV, sM0, sCNT, sQOFF, sOOFF = 32, 33, 34, 35, 36
sC = 38
sTHR, sMODE = 40, 41
sBAD = 42
sHI, sSGN = 45, 46
sT = 48
sOA = 56
sKVA = 57
sST = 60

def f32bits(x): return struct.unpack("<I", struct.pack("<f", x))[0]
C_SCALE = f32bits(math.log2(math.e) / math.sqrt(128.0))
THR = f32bits(2.0 ** 40)

def R(c, n, k=1): return {(c, n + i) for i in range(k)}
def rs(c, n, k=1): return f"{c}{n}" if k == 1 else f"{c}[{n}:{n+k-1}]"

class I:
    def __init__(s, text, kind, rd=(), wr=(), srcc=(), tag=None, vm=None, lg=None, lds=None):
        s.text, s.kind, s.rd, s.wr, s.srcc = text, kind, set(rd), set(wr), set(srcc)
        s.tag, s.vm, s.lg, s.lds = tag, vm, lg, lds
        s.nvm = s.nlg = None
    def render(s):
        if s.kind == "wait":
            p = []
            if s.nvm is not None: p.append(f"vmcnt({s.nvm})")
            if s.nlg is not None: p.append(f"lgkmcnt({s.nlg})")
            return "s_waitcnt " + " ".join(p) if p else "s_nop 0"
        return s.text

def mfma(dc, d, ac, a, bc, b, c):
    ct = "0" if c is None else rs(dc, c, 4)
    cr = set() if c is None else R(dc, c, 4)
    return I(f"v_mfma_f32_16x16x32_bf16 {rs(dc,d,4)}, {rs(ac,a,4)}, {rs(bc,b,4)}, {ct}", "mfma",
             rd=R(ac, a, 4) | R(bc, b, 4) | cr, wr=R(dc, d, 4), srcc=cr)
def valu(text, rd, wr, kind="valu"): return I(text, kind, rd=rd, wr=wr)
def salu(text, wr=()): return I(text, "salu", wr=wr)
def wait(vm=None, lg=None): return I("", "wait", vm=vm, lg=lg)
def bar(): return I("s_barrier", "bar")
def nop(n): return I(f"s_nop {n}", "nop", tag=n)
def label(n): return I(f"{n}:", "label")
def off(o): return f" offset:{o}" if o else ""
def dsr128(dc, d, addr, o, tag, lds): return I(f"ds_read_b128 {rs(dc,d,4)}, v{addr}{off(o)}", "dsr", rd=R("v", addr), wr=R(dc, d, 4), tag=tag, lds=lds)
def dsrtr(dc, d, addr, o, tag, lds): return I(f"ds_read_b64_tr_b16 {rs(dc,d,2)}, v{addr}{off(o)}", "dsr", rd=R("v", addr), wr=R(dc, d, 2), tag=tag, lds=lds)
def dsw(n, addr, src, o, tag, lds):
    return I(f"ds_write_b{32*n} v{addr}, {rs('v',src,n)}{off(o)}", "dsw", rd=R("v", addr) | R("v", src, n), tag=tag, lds=lds)

class Cfg:
    LA = 3
    BOFF = 24
    nt = "nt"
    snt = "nt"
    stamps = 0
    dbg = 0
    spin = 0
    twice = 0
    rt = 0
    adj = 0
    dma_span = 68
    exp64 = 0
    spill = 5
    l2hit = 0
    noaux = 0
    nodma = 0
    def __init__(s, **kw):
        for k, v in kw.items():
            assert hasattr(Cfg, k), k
            setattr(s, k, v)

QUADS = {"salu": 1, "wait": 1, "bar": 1, "nop": 1, "valu": 1, "trans": 2, "dsr": 2, "dsw": 3, "dma": 3, "vld": 3, "vst": 3}
ORDER = {"salu": 0, "wait": 0, "bar": 0, "nop": 0, "dsr": 1, "dsw": 1, "dma": 1, "vld": 1, "vst": 1, "valu": 2, "trans": 2}
class Stream:
    def __init__(s):
        s.m = []; s.g = []; s.pos = {}
    def add(s, ins, key=None):
        if key is not None: s.pos[key] = len(s.m)
        s.m.append(ins); s.g.append([])
    def fits(s, i, ins, two_ds=False):
        g = s.g[i] + [ins]
        nds = sum(x.kind == "dsr" for x in g)
        if nds > (2 if two_ds else 1): return False
        q = sum(QUADS[x.kind] for x in g) - (1 if nds == 2 else 0)
        v = sum(QUADS[x.kind] for x in g if x.kind in ("valu", "trans"))
        return q <= 3 and v <= 2
    def put(s, i, ins): s.g[i].append(ins); return i
    def place(s, ins, lo, hi, pref=None, over=False):
        hi = min(hi, len(s.m) - 1)
        if over: lo = min(lo, hi)
        if pref:
            for i in range(lo, hi + 1):
                if pref(s.g[i]) and s.fits(i, ins): return s.put(i, ins)
        for i in range(lo, hi + 1):
            if s.fits(i, ins): return s.put(i, ins)
        for i in range(lo, hi + 1):
            if s.fits(i, ins, True): return s.put(i, ins)
        if over: return s.put(hi, ins)
        raise RuntimeError(f"cannot place {ins.text} in [{lo},{hi}]")
    def late(s, ins, lo, hi):
        for i in range(hi, lo - 1, -1):
            if s.fits(i, ins): return s.put(i, ins)
        raise RuntimeError(f"cannot place late {ins.text} in [{lo},{hi}]")
    def emit(s, lo, hi):
        out = []
        srt = lambda g: sorted(g, key=lambda x: ORDER[x.kind])
        if lo > 0: out += [x for x in srt(s.g[lo - 1]) if ORDER[x.kind] > 0]
        for i in range(lo, hi):
            if s.m[i] is not None: out.append(s.m[i])
            out += [x for x in srt(s.g[i]) if i < hi - 1 or hi == len(s.m) or ORDER[x.kind] == 0]
        return out

def dma(cfg, kv, T, j):
    base = (KB if kv == "K" else VB) + (T % 4) * TS + j * (PS - 1024)
    srd = sKS if kv == "K" else sVS
    return [salu(f"s_add_u32 m0, s{sM0}, {base}", wr={("s", "m0")}),
            I(f"buffer_load_dwordx4 v{vDma}, s[{srd}:{srd+3}], s{sKV} offen{off(1024*j)} {cfg.nt} lds", "dma",
              rd=R("v", vDma) | {("s", "m0")}, tag=(kv, T), lds=("w", (kv, T % 4), (kv, T)))]
def kv_step(cfg, T):
    d = 8192
    if T == 32 and not cfg.adj: d = 8192 + 255 * 262144
    if cfg.l2hit: d = 0
    return salu(f"s_add_u32 s{sKV}, s{sKV}, {d}")
def kread(T, kb, s): return dsr128("a", aK + 32 * (T & 1) + 16 * kb + 4 * s, vK, (T % 4) * TS + 512 * kb + 64 * s, ("Kr", T), ("r", ("K", T % 4), ("K", T)))
def vread(T, dt, kb): return dsrtr("a", aV + 32 * (T & 1) + 4 * dt + 2 * kb, vV, (T % 4) * TS + 512 * kb + 32 * dt, ("Vr", T), ("r", ("V", T % 4), ("V", T)))
def qread(h, q, s):
    if q == X: return dsr128("a", aQ + 16 * q + 4 * s, vQx, 64 * s, ("Qr", h, q), ("r", "QO", ("Q", h)))
    return dsr128("a", aQ + 16 * q + 4 * s, vQ, (q >> 1) * TS + (q & 1) * 512 + 64 * s, ("Qr", h, q), ("r", "QO", ("Q", h)))
def k0read(h, s): return dsr128("v", T16 + 4 * s, vK0, 64 * s, ("K0r", h), ("r", ("K", 0), ("K", 32 * h)))
def k0neg(i): return valu(f"v_bitop3_b32 v{T16+i}, v{T16+i}, v{vT1}, s{sMODE} bitop3:0x28", R("v", T16 + i) | R("v", vT1), R("v", T16 + i))
def negm_init(h, q, r): return valu(f"v_accvgpr_read_b32 v{NEGM+4*q+r}, a{aSV+5*h+q}", R("a", aSV + 5 * h + q), R("v", NEGM + 4 * q + r))
def negm_mfma(q, s): return mfma("v", NEGM + 4 * q, "v", T16 + 4 * s, "a", aQ + 16 * q + 4 * s, NEGM + 4 * q)
def scale_reg(src, t, packed):
    o = [valu(f"v_lshlrev_b32 v{t}, 16, v{src}", R("v", src), R("v", t)),
         valu(f"v_and_b32 v{t+1}, s{sHI}, v{src}", R("v", src), R("v", t + 1))]
    if packed:
        o.append(valu(f"v_pk_mul_f32 v[{t}:{t+1}], v[{t}:{t+1}], s[{sC}:{sC+1}]", R("v", t, 2), R("v", t, 2)))
    else:
        o.append(valu(f"v_mul_f32 v{t}, s{sC}, v{t}", R("v", t), R("v", t)))
        o.append(valu(f"v_mul_f32 v{t+1}, s{sC}, v{t+1}", R("v", t + 1), R("v", t + 1)))
    o.append(valu(f"v_cvt_pk_bf16_f32 v{src}, v{t}, v{t+1}", R("v", t, 2), R("v", src)))
    return o
def stamp(cfg, k):
    op = "s_memrealtime" if cfg.rt else "s_memtime"
    return [I(f"{op} s[{sST+2*k}:{sST+2*k+1}]", "smem")] if cfg.stamps > k else []

def units(e):
    u = []
    for t in range(32):
        if (t & 1) == e: u.append((t, X))
        u += [(t, q) for q in range(4)]
    return u

def head_stream(cfg, e, h):
    U = units(e); N = len(U); assert N == 144
    st = Stream()
    T0 = 32 * h
    start = {}
    for n, (t, q) in enumerate(U): start.setdefault(t, n)
    seen = set()
    def qk(n):
        t, q = U[n]; sb = SB + 8 * (n & 1)
        for kb in range(2):
            for s in range(4):
                st.add(mfma("v", sb + 4 * kb, "a", aK + 32 * (t & 1) + 16 * kb + 4 * s, "a", aQ + 16 * q + 4 * s,
                            NEGM + 4 * q if s == 0 else sb + 4 * kb), key=(n, "q", 4 * kb + s))
    def pv(n):
        t, q = U[n]; pb = PB + 4 * (n & 1); first = q not in seen; seen.add(q)
        for dt in range(8):
            o = OB + 32 * q + 4 * dt
            st.add(mfma("v", o, "a", aV + 32 * (t & 1) + 4 * dt, "v", pb, None if first else o), key=(n + 1, "p", dt))
        st.add(mfma("a", aL + 4 * q, "a", aONE, "v", pb, None if first else aL + 4 * q), key=(n + 1, "p", 8))
    for n in range(N + 1):
        if n < N: qk(n)
        else:
            for k in range(8):
                st.add(negm_mfma(U[k >> 2][1], k & 3) if h == 0 else None, key=(n, "q", k))
        if n == 0:
            for k in range(12): st.add(negm_mfma(U[2 + (k >> 2)][1], k & 3), key=(0, "p", k - 3) if k >= 3 else None)
        else: pv(n - 1)
    P = st.pos
    e64 = "_e64" if cfg.exp64 else ""
    for n in range(N):
        sb = SB + 8 * (n & 1); pb = PB + 4 * (n & 1)
        eg = [(n, "p", 1), (n, "p", 2), (n, "p", 4), (n, "p", 6), (n, "p", 8), (n + 1, "q", 0), (n + 1, "q", 2), (n + 1, "q", 4)]
        cg = [(n, "p", 3), (n, "p", 7), (n + 1, "q", 1), (n + 1, "q", 5)]
        for i in range(8): st.put(P[eg[i]], valu(f"v_exp_f32{e64} v{sb+i}, v{sb+i}", R("v", sb + i), R("v", sb + i), "trans"))
        for i in range(4): st.put(P[cg[i]], valu(f"v_cvt_pk_bf16_f32 v{pb+i}, v{sb+2*i}, v{sb+2*i+1}", R("v", sb + 2 * i, 2), R("v", pb + i)))
    if h == 1:
        for k in (1, 5): st.put(P[(N, "q", k)], nop(0))
        st.put(P[(N, "q", 7)], nop(1))
    last = len(st.m) - 1
    bounds = [P[(18 * b, "q", 0)] for b in range(8)] + [last + 1]
    def gap_at(x):
        n, k = divmod(x, 17)
        return P[(n, "q", k)] if k < 8 else P[(n, "p", k - 8)]
    hasexp = lambda g: any(x.kind == "trans" for x in g)
    hascvt = lambda g: any(x.kind == "valu" for x in g)
    for b in range(1, 7):
        st.put(bounds[b + 1] - 1, I(f"s_cbranch_scc1 L_m{h}{e}", "salu"))
        st.put(bounds[b + 1] - 3, salu(f"s_cmp_lg_u32 s{sCNT}, 0"))
        st.put(bounds[b + 1] - 5, salu(f"s_sub_u32 s{sCNT}, s{sCNT}, 1"))
    st.place(salu(f"s_mov_b32 s{sCNT}, 6"), bounds[1] - 12, bounds[1] - 1, hasexp)
    def safe_salu(ins, lo, hi):
        for i in range(lo, hi + 1):
            if any(bounds[b + 1] - 3 <= i <= bounds[b + 1] - 1 for b in range(1, 7)): continue
            if hasexp(st.g[i]) and st.fits(i, ins): return st.put(i, ins)
        raise RuntimeError("salu " + ins.text)
    B = {}
    for t in range(1, 33):
        if h == 1 and t == 32: break
        x = ((t - 1) >> 1) * 153 + ((t - 1) & 1) * 76 + cfg.BOFF
        g = gap_at(x)
        w = wait(vm=[("K", T0 + t), ("V", T0 + t)], lg=[("Kr", T0 + t - 1), ("Vr", T0 + t - 1), ("K0r", h), ("Qr", h), ("Qw", h + 1), ("Ow", h - 1), ("Or", h - 1)])
        i = st.place(w, g, g + 3, hasexp)
        B[t] = st.place(bar(), i + 1, i + 3, hasexp)
    for t in B:
        T = T0 + t + cfg.LA
        if T >= 64: continue
        lo = safe_salu(kv_step(cfg, T), B[t] + 1, B[t] + 8)
        if cfg.nodma: continue
        step = cfg.dma_span // 4 if t < 32 else min(cfg.dma_span, last - B[t] - 24) // 4
        for k, (kv, j) in enumerate((("K", 0), ("K", 1), ("V", 0), ("V", 1))):
            m0, ld = dma(cfg, kv, T, j)
            i = safe_salu(m0, max(lo, B[t] + 1 + k * step), B[t] + 1 + k * step + 12)
            lo = st.place(ld, i + 1, i + 8) + 1
    anchors = {}
    if h == 0:
        for b in range(7):
            for i in range(3):
                buf = T16 + 4 * i
                lo = bounds[b] + 85 + 102 * i
                if b >= 1:
                    lo = anchors[(b, i)] = st.place(dsw(4, vQw, buf, PS * i, ("Qw", 1), ("w", "QO", ("Q", 1))), lo, lo + 12)
                lo = st.place(I(f"buffer_load_dwordx4 {rs('v',buf,4)}, v{vLin}, s[{sQB_}:{sQB_+3}], s{sQOFF} offen{off(1024*i)} {cfg.nt}", "vld",
                                rd=R("v", vLin), wr=R("v", buf, 4), tag=("Ql", 1, 3 * b + i)), lo + 2, bounds[b + 1] - 1)
                if i == 2: safe_salu(salu(f"s_add_u32 s{sQOFF}, s{sQOFF}, 3072"), bounds[b + 1], bounds[b + 1] + 20)
    else:
        for b in range(1, 7):
            for i in range(3):
                buf = T16 + 4 * i
                lo = bounds[b] + 60 + 102 * i
                lo = anchors[(b, i)] = st.place(I(f"buffer_store_dwordx4 {rs('v',buf,4)}, v{vLin}, s[{sOS}:{sOS+3}], s{sOOFF} offen{off(1024*i)} {cfg.snt}", "vst",
                                rd=R("v", vLin) | R("v", buf, 4), tag=("Os", 0, 3 * (b - 1) + i)), lo, lo + 24)
                if i == 2: safe_salu(salu(f"s_add_u32 s{sOOFF}, s{sOOFF}, 3072"), lo + 1, bounds[b + 1] - 1)
    def frags(t):
        T = T0 + t
        lo = B[t] + 1 if t else 0
        if t:
            kdead = P[(start[t], "q", 0)] - 9 if t < 32 else last
            for kb in range(2):
                for s in range(4):
                    free = P[(start[t - 1] - 1, "q", 4 * kb + s)] if t >= 2 else 0
                    lo = st.place(kread(T, kb, s), max(lo, free), kdead, None, t == 32) + 1
        if t == 32: return
        if t: st.late(wait(lg=[("Kr", T)]), P[(start[t], "q", 0)] - 8, P[(start[t], "q", 0)] - 1)
        nxtB = B[t + 1] if t + 1 in B else last
        use = P[(start[t] + 1, "p", 0)]
        NSP = cfg.spill if (t and t % 4 == 0) else 0
        for k in range(16):
            dt, kb = k >> 1, k & 1
            free = P[(start[t - 1], "p", dt)] if t >= 2 else 0
            dead = min(use - 10, nxtB - 10); left = 15 - k
            l2 = max(lo, free)
            if NSP:
                if k < 16 - NSP: dead = bounds[t // 4] - 2; left -= NSP
                else: l2 = max(l2, bounds[t // 4])
            if t == 0: lo = st.put(k >> 1, vread(T, dt, kb)); continue
            navail = sum(1 for i in range(l2, dead + 1) if hascvt(st.g[i]) and st.fits(i, vread(T, dt, kb)))
            lo = st.place(vread(T, dt, kb), l2, dead, hascvt if navail > left else None) + 1
        if nxtB > use - 1: st.late(wait(lg=[("Vr", T)]), use - 6, use - 1)
    frags(0)
    for t in B:
        if t < 32: frags(t)
    if h == 0:
        for b in range(1, 7):
            for i in range(3):
                buf = T16 + 4 * i; hi = anchors[(b, i)] - 1
                lo = bounds[b] if i == 0 else anchors[(b, i - 1)] + 1
                lo = st.place(wait(vm=[("Ql", 1, 3 * (b - 1) + i)]), lo, hi, hasexp) + 1
                for r in range(4):
                    for ins in scale_reg(buf + r, TSC + 2 * (r & 1), False): lo = st.place(ins, lo, hi)
            st.place(valu(f"v_add_u32 v{vQw}, {3*PS}, v{vQw}", R("v", vQw), R("v", vQw)), anchors[(b, 2)] + 1, bounds[b + 1] - 1)
        lastu = {q: n for n, (t, q) in enumerate(U)}
        pre = P[(N, "q", 0)]
        lo = st.place(wait(vm=[("Ql", 1, 20)]), B[32] - 12, B[32] - 1, hasexp)
        lo = B[32] + 1
        for s in range(4): lo = st.place(k0read(1, s), lo, pre - 20) + 1
        lo = st.place(wait(lg=[("K0r", 1)]), lo + 5, pre - 12, hasexp) + 1
        for i in range(16): lo = st.place(k0neg(i), lo, pre - 2)
        for q in sorted(range(5), key=lambda q: lastu[q]):
            early = q in (U[0][1], U[1][1])
            lo = P[(lastu[q], "q", 7)]
            for s in range(4): lo = st.place(qread(1, q, s), lo, pre - 8 if early else last, None, True) + 1
            lo = P[(lastu[q], "q", 7)]
            for r in range(4): lo = st.place(negm_init(1, q, r), lo, pre - 2 if early else last, None, True)
        st.late(wait(lg=[("Qr", 1, U[0][1]), ("Qr", 1, U[1][1])]), pre - 3, pre - 1)
        frags(32)
    else:
        for b in range(1, 7):
            for i in range(3):
                j = 3 * (b - 1) + i; buf = T16 + 4 * i; a = anchors[(b, i)]
                lo = st.place(dsr128("v", buf, vOr, OPS * i, ("Or", 0, j), ("r", "QO", ("O", 0))), a - 55, a - 12)
                if i == 2: st.place(valu(f"v_add_u32 v{vOr}, {3*OPS}, v{vOr}", R("v", vOr), R("v", vOr)), lo + 1, bounds[b + 1] - 1)
                st.late(wait(lg=[("Or", 0, j)]), a - 6, a - 1)
    return st, bounds

def normalize(q, dts, rc):
    o = []
    for dt in dts:
        b = OB + 32 * q + 4 * dt
        for k in (0, 2): o.append(valu(f"v_pk_mul_f32 v[{b+k}:{b+k+1}], v[{b+k}:{b+k+1}], v[{rc}:{rc+1}] op_sel_hi:[1,0]", R("v", b + k, 2) | R("v", rc), R("v", b + k, 2)))
    for dt in dts:
        b = OB + 32 * q + 4 * dt
        o.append(valu(f"v_cvt_pk_bf16_f32 v{b}, v{b}, v{b+1}", R("v", b, 2), R("v", b)))
        o.append(valu(f"v_cvt_pk_bf16_f32 v{b+1}, v{b+2}, v{b+3}", R("v", b + 2, 2), R("v", b + 1)))
    return o

def epilogue(cfg, e, h):
    o = []
    keep = [4 * e + i for i in range(4)]; send = [4 * (1 - e) + i for i in range(4)]
    for i, dt in enumerate(send): o.append(dsw(4, vXw, OB + 32 * X + 4 * dt, 1024 * i, ("Xw", h), ("w", "X", ("X", h))))
    for q in (X, 0, 1, 2):
        o.append(valu(f"v_accvgpr_read_b32 v{vRC+2*q}, a{aL+4*q}", R("a", aL + 4 * q), R("v", vRC + 2 * q)))
    o.append(valu(f"v_accvgpr_read_b32 v{vRC+6}, a{aL+12}", R("a", aL + 12), R("v", vRC + 6)))
    o.append(dsw(1, vXl, vRC + 2 * X, 0, ("Xw", h), ("w", "X", ("X", h))))
    o.append(valu(f"v_add_f32 v{vRC+1}, v{vRC}, v{vRC+2}", R("v", vRC, 4), R("v", vRC + 1)))
    o.append(valu(f"v_add_f32 v{vRC+3}, v{vRC+4}, v{vRC+6}", R("v", vRC + 4, 4), R("v", vRC + 3)))
    o.append(valu(f"v_add_f32 v{vRC+1}, v{vRC+1}, v{vRC+8}", R("v", vRC + 1) | R("v", vRC + 8), R("v", vRC + 1)))
    o.append(valu(f"v_add_f32 v{vT0}, v{vRC+1}, v{vRC+3}", R("v", vRC + 1) | R("v", vRC + 3), R("v", vT0)))
    o.append(valu(f"v_cmp_nge_f32 vcc, s{sTHR}, v{vT0}", R("v", vT0), set()))
    for q in range(4): o.append(valu(f"v_rcp_f32 v{vRC+2*q}, v{vRC+2*q}", R("v", vRC + 2 * q), R("v", vRC + 2 * q), "trans"))
    o.append(salu(f"s_or_b64 s[{sBAD}:{sBAD+1}], s[{sBAD}:{sBAD+1}], vcc"))
    if h == 1:
        o.append(salu(f"s_or_b32 s{sT}, s{sBAD}, s{sBAD+1}"))
        o.append(valu(f"v_mov_b32 v{vT0}, s{sT}", set(), R("v", vT0)))
        o.append(dsw(1, vFl, vT0, 0, ("Xw", h), ("w", "F", ("F", h))))
    o += normalize(0, range(8), vRC)
    o.append(wait(lg=[("Xw", h), ("Qr", h + 1), ("Or", h - 1), ("Kr", 32)]))
    o.append(bar())
    for i in range(4): o.append(dsr128("v", SB + 4 * i, vXr, 1024 * i, ("Xr", h), ("r", "X", ("X", h))))
    o.append(valu(f"v_xor_b32 v{vT0}, 256, v{vXl}", R("v", vXl), R("v", vT0)))
    o.append(I(f"ds_read_b32 v{vRC+9}, v{vT0}", "dsr", rd=R("v", vT0), wr=R("v", vRC + 9), tag=("Xr", h), lds=("r", "X", ("X", h))))
    if h == 1:
        o.append(valu(f"v_mov_b32 v{vT0}, {FB}", set(), R("v", vT0)))
        o.append(dsr128("v", PB, vT0, 0, ("Fr", h), ("r", "F", ("F", h))))
    def stage(q): return [dsw(2, vOw, OB + 32 * q + 4 * dt, (q >> 1) * 8 * OPS + (q & 1) * 512 + 32 * dt, ("Ow", h), ("w", "QO", ("O", h))) for dt in range(8)]
    def back(g, buf):
        return [dsr128("v", buf + 4 * p, vOr, (8 * g + p) * OPS, ("Op", g, p), None) for p in range(8)]
    def store(g, buf):
        r = []
        for p in range(8):
            if p % 4 == 0 and (g or p): r.append(salu(f"s_add_u32 s{sOOFF}, s{sOOFF}, 4096"))
            r.append(wait(lg=[("Op", g, p)]))
            r.append(I(f"buffer_store_dwordx4 {rs('v',buf+4*p,4)}, v{vLin}, s[{sOS}:{sOS+3}], s{sOOFF} offen{off(1024*(p&3))} {cfg.snt}", "vst",
                       rd=R("v", vLin) | R("v", buf + 4 * p, 4), tag=("Os", 1)))
        return r
    o += stage(0)
    if h == 1:
        o.append(salu(f"s_mul_i32 s{sT}, s{sW}, {16*OPS}")); o.append(salu(f"s_add_u32 s{sT}, s{sT}, {QB}"))
        o.append(valu(f"v_add_u32 v{vOr}, s{sT}, v{vLin}", R("v", vLin), R("v", vOr)))
        o.append(salu(f"s_lshl_b32 s{sT}, s{sW}, 14")); o.append(salu(f"s_add_u32 s{sOOFF}, s{sOA}, s{sT}"))
        o.append(salu(f"s_add_u32 s{sOOFF}, s{sOOFF}, {73728 * (1 if cfg.adj else 256)}"))
    o += normalize(1, range(8), vRC + 2) + stage(1)
    if h == 1: o += back(0, OB)
    o += normalize(2, range(8), vRC + 4) + stage(2)
    if h == 1: o += store(0, OB)
    o += normalize(3, range(8), vRC + 6) + stage(3)
    if h == 1: o += back(1, OB + 32)
    o.append(wait(lg=[("Xr", h)]))
    o.append(valu(f"v_add_f32 v{vRC+8}, v{vRC+8}, v{vRC+9}", R("v", vRC + 8, 2), R("v", vRC + 8)))
    o.append(valu(f"v_rcp_f32 v{vRC+8}, v{vRC+8}", R("v", vRC + 8), R("v", vRC + 8), "trans"))
    for i, dt in enumerate(keep):
        b = OB + 32 * X + 4 * dt
        for k in (0, 2): o.append(valu(f"v_pk_add_f32 v[{b+k}:{b+k+1}], v[{b+k}:{b+k+1}], v[{SB+4*i+k}:{SB+4*i+k+1}]", R("v", b + k, 2) | R("v", SB + 4 * i + k, 2), R("v", b + k, 2)))
    o += normalize(X, keep, vRC + 8)
    for i, dt in enumerate(keep): o.append(dsw(2, vOxw, OB + 32 * X + 4 * dt, 32 * i, ("Ow", h), ("w", "QO", ("O", h))))
    if h == 1:
        o += store(1, OB + 32)
        o.append(wait(lg=[("Ow", h), ("Fr", h)]))
        o.append(bar())
        o.append(salu(f"s_mul_i32 s{sT}, s{sW}, {2*OPS}")); o.append(salu(f"s_add_u32 s{sT}, s{sT}, {QB + 64*OPS}"))
        o.append(valu(f"v_add_u32 v{vOr}, s{sT}, v{vLin}", R("v", vLin), R("v", vOr)))
        o.append(salu(f"s_lshl_b32 s{sT}, s{sW}, 11")); o.append(salu(f"s_add_u32 s{sOOFF}, s{sOA}, s{sT}"))
        o.append(salu(f"s_add_u32 s{sOOFF}, s{sOOFF}, {73728 * (1 if cfg.adj else 256) + 65536}"))
        for p in range(2): o.append(dsr128("v", T16 + 4 * p, vOr, p * OPS, ("Or", 1, p), ("r", "QO", ("O", 1))))
        o.append(valu(f"v_or3_b32 v{PB}, v{PB}, v{PB+1}, v{PB+2}", R("v", PB, 3), R("v", PB)))
        o.append(valu(f"v_or_b32 v{PB}, v{PB}, v{PB+3}", R("v", PB, 4), R("v", PB)))
        for p in range(2):
            o.append(wait(lg=[("Or", 1, p)]))
            o.append(I(f"buffer_store_dwordx4 {rs('v',T16+4*p,4)}, v{vLin}, s[{sOS}:{sOS+3}], s{sOOFF} offen{off(1024*p)} {cfg.snt}", "vst",
                       rd=R("v", vLin) | R("v", T16 + 4 * p, 4), tag=("Os", 1)))
        o.append(valu(f"v_readfirstlane_b32 s{sT}, v{PB}", R("v", PB), set()))
    return o

def setup(cfg):
    L = []
    A = L.append
    A("s_cmp_ge_u32 s2, 256"); A("s_cbranch_scc1 L_end")
    A("s_load_dwordx4 s[4:7], s[0:1], 0"); A("s_load_dwordx4 s[8:11], s[0:1], 16")
    if cfg.stamps:
        A(f"s_load_dwordx2 s[58:59], s[0:1], {32 if cfg.dbg else 40}")
        A(f"s_memrealtime s[{sST}:{sST+1}]"); A(f"s_memtime s[{sST+4}:{sST+5}]")
    A("v_lshrrev_b32 v16, 6, v0"); A("v_and_b32 v17, 63, v0")
    A(f"v_readfirstlane_b32 s{sW}, v16")
    A(f"v_lshlrev_b32 v{vLin}, 4, v17")
    A("v_lshrrev_b32 v18, 4, v17")
    A("v_and_b32 v19, 7, v17")
    A("v_bfe_u32 v20, v17, 3, 1")
    A(f"v_lshlrev_b32 v{vK0}, 4, v18")
    A(f"v_mul_u32_u24 v21, {PS}, v19"); A("v_lshl_add_u32 v21, v20, 8, v21")
    A(f"v_add_u32 v{vK}, v21, v{vK0}")
    A("v_bfe_u32 v21, v17, 2, 3")
    A(f"v_mul_u32_u24 v21, {PS}, v21"); A("v_lshrrev_b32 v22, 5, v17"); A("v_lshl_add_u32 v21, v22, 8, v21")
    A("v_and_b32 v22, 3, v17"); A("v_lshl_add_u32 v21, v22, 3, v21"); A(f"v_add_u32 v{vV}, {VB}, v21")
    A(f"v_lshl_add_u32 v{vDma}, v16, 11, v{vLin}")
    A(f"v_mul_u32_u24 v21, {2*TS}, v16"); A(f"v_add_u32 v21, {QB}, v21"); A(f"v_add_u32 v{vQ}, v21, v{vK}")
    A("v_lshrrev_b32 v22, 1, v16")
    A(f"v_lshl_add_u32 v21, v22, 9, v{vK}"); A(f"v_add_u32 v{vQx}, {QB + 8*TS}, v21")
    A(f"v_mul_u32_u24 v21, {OPS}, v19"); A("v_lshl_add_u32 v21, v20, 8, v21"); A("v_lshl_add_u32 v21, v18, 3, v21")
    A(f"v_mul_u32_u24 v23, {16*OPS}, v16"); A(f"v_add_u32 v23, {QB}, v23"); A(f"v_add_u32 v{vOw}, v23, v21")
    A("v_lshl_add_u32 v21, v22, 9, v21"); A("v_and_b32 v23, 1, v16"); A("v_lshl_add_u32 v21, v23, 7, v21"); A(f"v_add_u32 v{vOxw}, {QB + 64*OPS}, v21")
    A(f"v_lshl_add_u32 v21, v16, 12, v{vLin}"); A(f"v_add_u32 v{vXw}, {XB}, v21")
    A("v_xor_b32 v21, 0x1000, v21"); A(f"v_add_u32 v{vXr}, {XB}, v21")
    assert XLB % 512 == 0
    A(f"v_lshlrev_b32 v21, 2, v0"); A(f"v_add_u32 v{vXl}, {XLB}, v21")
    A(f"v_lshlrev_b32 v21, 2, v16"); A(f"v_add_u32 v{vFl}, {FB}, v21")
    A(f"v_mov_b32 v{vT1}, 0x80008000")
    A(f"v_mov_b32 v21, 0x3f803f80")
    for i in range(4): A(f"v_accvgpr_write_b32 a{aONE+i}, v21")
    for i in range(10): A(f"v_accvgpr_write_b32 a{aSV+i}, 0")
    A(f"s_mov_b32 s{sC}, {C_SCALE:#x}"); A(f"s_mov_b32 s{sC+1}, {C_SCALE:#x}"); A(f"s_mov_b32 s{sTHR}, {THR:#x}")
    A(f"s_mov_b32 s{sHI}, 0xffff0000"); A(f"s_mov_b32 s{sMODE}, -1")
    A(f"s_mul_i32 s{sM0}, s{sW}, {2*PS}")
    if cfg.twice: A("s_mov_b32 s90, 0")
    if cfg.adj: A(f"s_lshl_b32 s{sT}, s2, 1")
    else: A(f"s_mov_b32 s{sT}, s2")
    A(f"s_mul_i32 s{sOA}, s{sT}, 73728"); A(f"s_lshl_b32 s{sKVA}, s{sT}, 18")
    A(f"s_mul_i32 s{sT}, s{sW}, 18432"); A(f"s_add_u32 s{sT}, s{sT}, s{sOA}")
    A("s_waitcnt lgkmcnt(0)")
    for d, p, n in ((sKS, 6, 134217728), (sVS, 8, 134217728), (sOS, 10, 37748736)):
        A(f"s_mov_b32 s{d}, s{p}"); A(f"s_mov_b32 s{d+1}, s{p+1}"); A(f"s_mov_b32 s{d+2}, {n}"); A(f"s_mov_b32 s{d+3}, 0x20000")
    A(f"s_add_u32 s{sQA}, s4, s{sT}"); A(f"s_addc_u32 s{sQA+1}, s5, 0"); A(f"s_mov_b32 s{sQA+2}, 18432"); A(f"s_mov_b32 s{sQA+3}, 0x20000")
    A(f"s_add_u32 s{sQB_}, s{sQA}, {73728 * (1 if cfg.adj else 256)}"); A(f"s_addc_u32 s{sQB_+1}, s{sQA+1}, 0"); A(f"s_mov_b32 s{sQB_+2}, 18432"); A(f"s_mov_b32 s{sQB_+3}, 0x20000")
    return L

def prologue(cfg):
    o = []
    o.append(salu(f"s_mov_b32 s{sKV}, s{sKVA}"))
    o.append(salu(f"s_mov_b64 s[{sBAD}:{sBAD+1}], 0"))
    def D(kv, T):
        r = []
        for j in range(2):
            m0, ld = dma(cfg, kv, T, j); r += [m0, nop(0), ld]
        return r
    o += D("K", 0)
    for j in range(18):
        if j % 4 == 0: o.append(salu(f"s_mov_b32 s{sQOFF}, {1024*j}"))
        o.append(I(f"buffer_load_dwordx4 {rs('v',OB+4*j,4)}, v{vLin}, s[{sQA}:{sQA+3}], s{sQOFF} offen{off(1024*(j&3))} {cfg.nt}", "vld",
                   rd=R("v", vLin), wr=R("v", OB + 4 * j, 4), tag=("Ql", 0, j)))
    o += D("V", 0)
    o.append(salu(f"s_mov_b32 s{sQOFF}, 0"))
    o.append(salu(f"s_mul_i32 s{sT}, s{sW}, {18*PS}")); o.append(salu(f"s_add_u32 s{sT}, s{sT}, {QB}"))
    o.append(valu(f"v_add_u32 v{vQw}, s{sT}, v{vLin}", R("v", vLin), R("v", vQw)))
    o.append(salu(f"s_mul_i32 s{sT}, s{sW}, {18*OPS}")); o.append(salu(f"s_add_u32 s{sT}, s{sT}, {QB}"))
    o.append(valu(f"v_add_u32 v{vOr}, s{sT}, v{vLin}", R("v", vLin), R("v", vOr)))
    o.append(salu(f"s_mul_i32 s{sT}, s{sW}, 18432")); o.append(salu(f"s_add_u32 s{sOOFF}, s{sT}, s{sOA}"))
    for q in range(5):
        for r in range(4): o.append(negm_init(0, q, r))
    later = []
    for T in range(1, cfg.LA + 1): later.append([kv_step(cfg, T)] + D("K", T)); later.append(D("V", T))
    for j in range(18):
        o.append(wait(vm=[("Ql", 0, j)]))
        for r in range(4): o += scale_reg(OB + 4 * j + r, TSC + 2 * r, True)
        o.append(dsw(4, vQw, OB + 4 * j, PS * j, ("Qw", 0), ("w", "QO", ("Q", 0))))
        if j % 2 == 1 and later: o += later.pop(0)
    assert not later
    o += stamp(cfg, 4)
    o.append(wait(vm=[("K", 0), ("V", 0)], lg=[("Qw", 0)])); o.append(bar())
    for s in range(4): o.append(k0read(0, s))
    return o

def prologue2(cfg, e):
    U = units(e)
    o = []
    for n in range(2):
        for s in range(4): o.append(qread(0, U[n][1], s))
    o.append(wait(lg=[("K0r", 0)]))
    for kb in range(2):
        for s in range(4): o.append(kread(0, kb, s))
    for i in range(16): o.append(k0neg(i))
    for n in range(2, 5):
        for s in range(4): o.append(qread(0, U[n][1], s))
    o.append(wait(lg=[("Qr", 0, U[0][1]), ("Qr", 0, U[1][1])]))
    for n in range(2):
        for s in range(4): o.append(negm_mfma(U[n][1], s))
    o.append(wait(lg=[("Kr", 0), ("Qr", 0)]))
    return o

def fallback(cfg):
    L = []; A = L.append
    A("s_waitcnt vmcnt(0) lgkmcnt(0)"); A("s_barrier")
    A(f"s_mov_b32 s{sMODE}, 0")
    A("v_and_b32 v16, 63, v0"); A("v_lshrrev_b32 v17, 4, v16")
    A("v_and_b32 v18, 7, v16"); A("v_bfe_u32 v19, v16, 3, 1"); A("v_lshl_add_u32 v18, v18, 2, v19")
    A("v_lshlrev_b32 v18, 8, v18"); A("v_lshl_add_u32 v18, v17, 4, v18")
    A("v_and_b32 v19, 15, v16"); A("v_lshlrev_b32 v19, 8, v19"); A("v_lshl_add_u32 v19, v17, 4, v19")
    A(f"s_mov_b32 s{sT+4}, s4"); A(f"s_mov_b32 s{sT+5}, s5"); A(f"s_mov_b32 s{sT+6}, 37748736"); A(f"s_mov_b32 s{sT+7}, 0x20000")
    for h in range(2):
        hq = 73728 * (1 if cfg.adj else 256) * h; hk = 262144 * (1 if cfg.adj else 256) * h
        for q in range(5):
            if q < 4:
                A(f"s_lshl_b32 s{sT}, s{sW}, 14"); A(f"s_add_u32 s{sT}, s{sT}, {hq + (q >> 1) * 8192 + (q & 1) * 512}")
            else:
                A(f"s_lshr_b32 s{sT}, s{sW}, 1"); A(f"s_lshl_b32 s{sT}, s{sT}, 9"); A(f"s_add_u32 s{sT}, s{sT}, {hq + 65536}")
            A(f"s_add_u32 s{sT}, s{sT}, s{sOA}")
            for s in range(4): A(f"buffer_load_dwordx4 {rs('v', OB+16*q+4*s, 4)}, v18, s[{sT+4}:{sT+7}], s{sT} offen{off(64*s)}")
        A("s_waitcnt vmcnt(0)")
        for r in range(80):
            for ins in scale_reg(OB + r, TSC + 2 * (r & 3), True): A(ins.text)
        for i in range(5): A(f"v_mov_b32 v{NEGM+i}, 0xff800000")
        A(f"s_add_u32 s{sT}, s{sKVA}, {hk}"); A(f"s_mov_b32 s{sT+1}, 64")
        A(f"L_fb{h}:")
        for s in range(4): A(f"buffer_load_dwordx4 {rs('v', SB+4*s, 4)}, v19, s[{sKS}:{sKS+3}], s{sT} offen{off(64*s)}")
        A("s_waitcnt vmcnt(0)")
        for q in range(5):
            for s in range(4): A(mfma("v", 192 + 4 * q, "v", SB + 4 * s, "v", OB + 16 * q + 4 * s, None if s == 0 else 192 + 4 * q).text)
        A("s_nop 7"); A("s_nop 1")
        for q in range(5):
            A(f"v_max3_f32 v{NEGM+q}, v{NEGM+q}, v{192+4*q}, v{193+4*q}"); A(f"v_max3_f32 v{NEGM+q}, v{NEGM+q}, v{194+4*q}, v{195+4*q}")
        A(f"s_add_u32 s{sT}, s{sT}, 4096"); A(f"s_sub_u32 s{sT+1}, s{sT+1}, 1"); A(f"s_cmp_lg_u32 s{sT+1}, 0"); A(f"s_cbranch_scc1 L_fb{h}")
        for x in (16, 32):
            A(f"v_xor_b32 v20, {x}, v16"); A("v_lshlrev_b32 v20, 2, v20")
            for q in range(5): A(f"ds_bpermute_b32 v{SB+q}, v20, v{NEGM+q}")
            A("s_waitcnt lgkmcnt(0)")
            for q in range(5): A(f"v_max_f32 v{NEGM+q}, v{NEGM+q}, v{SB+q}")
        for q in range(5): A(f"v_xor_b32 v{NEGM+q}, 0x80000000, v{NEGM+q}")
        for q in range(5): A(f"v_accvgpr_write_b32 a{aSV+5*h+q}, v{NEGM+q}")
    A("s_nop 1")
    A("s_branch L_start")
    return L

def match(tag, want): return tag is not None and any(tag[:len(w)] == w for w in want)
def resolve(tr):
    vm = []; lg = []; vdone = 0; ldone = 0; pend = {}; epoch = 0; ev = []
    for ins in tr:
        for r in ins.rd | ins.wr:
            if r in pend:
                c, idx = pend[r]
                assert idx < (vdone if c == "vm" else ldone), f"unwaited load of {r} at {ins.text}"
                del pend[r]
        if ins.kind == "wait":
            ins.nvm = ins.nlg = None
            for want, lst, mx, c in ((ins.vm, vm, 63, "vm"), (ins.lg, lg, 14, "lg")):
                if not want: continue
                idx = max((i for i, x in enumerate(lst) if match(x.tag, want)), default=-1)
                if idx < 0: continue
                n = min(len(lst) - 1 - idx, mx)
                if c == "vm": ins.nvm = n; vdone = max(vdone, len(lst) - n)
                else: ins.nlg = n; ldone = max(ldone, len(lst) - n)
            for x in vm[:vdone] + lg[:ldone]:
                if x.lds and not hasattr(x, "edone"): x.edone = epoch
        elif ins.kind == "bar": epoch += 1
        elif ins.kind in ("dma", "vld", "vst"):
            vm.append(ins)
            assert len(vm) - vdone <= 63
            for r in ins.wr: pend[r] = ("vm", len(vm) - 1)
        elif ins.kind in ("dsr", "dsw"):
            lg.append(ins)
            for r in ins.wr: pend[r] = ("lg", len(lg) - 1)
        if ins.lds: ins.eissue = epoch; ev.append(ins)
    return epoch, ev
def check_lds(evs):
    reg = {}
    for ev in evs:
        for x in ev: reg.setdefault(x.lds[1], {}).setdefault(x.lds[2], {"r": [], "w": []})[x.lds[0]].append(x)
    INF = 10 ** 9
    for r, cont in reg.items():
        order = sorted(cont, key=lambda c: min(x.eissue for x in cont[c]["w"]) if cont[c]["w"] else -1)
        for i, c in enumerate(order):
            w, rd = cont[c]["w"], cont[c]["r"]
            if w and rd:
                assert max(getattr(x, "edone", INF) for x in w) < min(x.eissue for x in rd), f"LDS RAW {r} {c}"
            if i + 1 < len(order):
                nw = cont[order[i + 1]]["w"]
                assert max(getattr(x, "edone", INF) for x in rd + w) < min(x.eissue for x in nw), f"LDS WAR {r} {c}->{order[i+1]}"
def check_hazards(tr):
    seq = [x for x in tr if x.kind != "label"]
    def ws(x): return x.tag + 1 if x.kind == "nop" else 1
    for i, c in enumerate(seq):
        d = 0
        for j in range(i - 1, max(-1, i - 12), -1):
            p = seq[j]; need = 0
            isv = c.kind in ("valu", "trans"); mem = c.kind in ("dsr", "dsw", "dma", "vld", "vst")
            if p.kind == "mfma":
                if (isv or mem) and p.wr & (c.rd | c.wr): need = 8
                if c.kind == "mfma":
                    if p.wr & (c.rd - c.srcc): need = 8
                    if p.wr & c.srcc and p.wr != c.srcc: need = 6
                if isv and p.srcc & c.wr: need = max(need, 3)
            if p.kind in ("valu", "trans") and c.kind == "mfma" and p.wr & c.rd: need = 2
            if p.kind == "trans" and c.kind == "valu" and p.wr & c.rd: need = 1
            if p.kind == "salu" and c.kind == "dma" and ("s", "m0") in p.wr: need = 1
            if p.kind == "vst" and (p.rd & c.wr): need = 2
            if p.kind in ("valu", "trans") and "readfirstlane" in c.text and p.wr & c.rd: need = 1
            assert d >= need, f"hazard: {p.text} -> {c.text} needs {need}, has {d}"
            d += ws(p)

def build(cfg):
    out = ["; GQA softmax attention, B16 H32 Sq288 Sk1024 D128 bf16, generated by dev/gen.py (hand-designed schedule)",
           f"; @launch grid=(256,1,1) block=(256,1,1) lds={LDS_BYTES}",
           '.amdgcn_target "amdgcn-amd-amdhsa--gfx950"', ".text", f".globl {NAME}", ".p2align 8", f".type {NAME},@function", f"{NAME}:"]
    out += setup(cfg)
    out.append("L_start:")
    evs = []; eps = []; texts = []; pro_text = None
    for e in range(2):
        pro = prologue(cfg)
        segs = [("pro", pro), ("pro2", prologue2(cfg, e))]
        for h in range(2):
            st, bounds = head_stream(cfg, e, h)
            for b in range(8): segs.append(((h, b), st.emit(bounds[b], bounds[b + 1])))
            segs.append((("st", h), stamp(cfg, 5 + 2 * h)))
            segs.append((("epi", h), epilogue(cfg, e, h)))
            segs.append((("st2", h), stamp(cfg, 6 + 2 * h)))
        tr = [x for _, s in segs for x in s]
        ep, ev = resolve(tr); eps.append(ep); evs.append(ev)
        check_hazards(tr)
        d = dict(segs)
        for h in range(2):
            ref = d[(h, 1)]
            for b in range(2, 7):
                cur = d[(h, b)]
                assert len(cur) == len(ref), (h, b, len(cur), len(ref))
                for x, y in zip(ref, cur):
                    assert x.kind == y.kind and x.text == y.text, (h, b, x.text, y.text)
                    if x.kind == "wait":
                        for a in ("nvm", "nlg"):
                            vals = [v for v in (getattr(x, a), getattr(y, a)) if v is not None]
                            setattr(x, a, min(vals) if vals else None)
        t = []
        for k, s in segs:
            if k == "pro":
                p = [x.render() for x in s]
                assert pro_text is None or p == pro_text
                pro_text = p; continue
            if isinstance(k, tuple) and isinstance(k[0], int):
                if 2 <= k[1] <= 6: continue
                if k[1] == 1: t.append(f"L_m{k[0]}{e}:")
            t += [x.render() for x in s]
        texts.append(t)
    assert eps[0] == eps[1]
    if not cfg.nodma: check_lds(evs)
    out += pro_text
    out += [f"s_bitcmp1_b32 s{sW}, 0", "s_cbranch_scc1 L_odd"]
    out += texts[0] + ["s_branch L_fin", ".p2align 6", "L_odd:"] + texts[1] + ["L_fin:"]
    out += ["s_nop 3", f"s_and_b32 s{sT}, s{sT}, s{sMODE}", "s_cbranch_scc1 L_fallback"]
    if cfg.twice:
        out += ["s_add_u32 s90, s90, 1", f"s_cmp_gt_u32 s90, {cfg.twice}", "s_cbranch_scc1 L_done2", "s_waitcnt vmcnt(0) lgkmcnt(0)", "s_barrier", "s_branch L_start", "L_done2:"]
    if cfg.spin:
        out += ["s_waitcnt vmcnt(0)", "L_spin:", "s_memrealtime s[92:93]", "s_waitcnt lgkmcnt(0)", f"s_sub_u32 s92, s92, s{sST}", f"s_cmp_lt_u32 s92, {cfg.spin}", "s_cbranch_scc1 L_spin"]
    if cfg.stamps:
        n = cfg.stamps
        out += ["s_waitcnt vmcnt(0)", "s_barrier", f"s_memrealtime s[{sST+2}:{sST+3}]", f"s_memtime s[{sST+6}:{sST+7}]", "s_waitcnt lgkmcnt(0)",
                f"s_cmp_lg_u32 s{sW}, 0", "s_cbranch_scc1 L_end", f"s_mul_i32 s{sT}, s2, {n*8}", f"v_mov_b32 v20, s{sT}",
                "v_cmp_eq_u32 vcc, 0, v0", "s_and_saveexec_b64 s[50:51], vcc"]
        if cfg.dbg == 2:
            out += ["s_cmp_ge_u32 s2, 8", "s_cbranch_scc1 L_end", f"s_lshl_b32 s{sT}, s2, 3", f"v_mov_b32 v20, s{sT}",
                    f"s_sub_u32 s{sT}, s{sST+2}, s{sST}", f"v_mov_b32 v22, s{sT}", f"s_sub_u32 s{sT}, s{sST+6}, s{sST+4}", f"v_mov_b32 v23, s{sT}",
                    "global_store_dwordx2 v20, v[22:23], s[58:59]"]
        elif cfg.dbg:
            out += ["v_mov_b32 v20, 0", f"s_not_b32 s{sT}, s{sST}", f"v_mov_b32 v22, s{sT}", "global_atomic_umax v20, v22, s[58:59]",
                    f"v_mov_b32 v23, s{sST+2}", "global_atomic_umax v20, v23, s[58:59] offset:4",
                    f"s_sub_u32 s{sT}, s{sST+2}, s{sST}", f"v_mov_b32 v24, s{sT}", "global_atomic_umax v20, v24, s[58:59] offset:8",
                    f"s_sub_u32 s{sT}, s{sST+6}, s{sST+4}", f"v_mov_b32 v25, s{sT}", "global_atomic_umax v20, v25, s[58:59] offset:12"]
            for i in range(4, n):
                out += [f"s_sub_u32 s{sT}, s{sST+2*i}, s{sST if cfg.rt else sST+4}", f"v_mov_b32 v{26+i}, s{sT}", f"global_atomic_add v20, v{26+i}, s[58:59] offset:{4*i}"]
            out += [f"global_atomic_add v20, v24, s[58:59] offset:{4*n}", f"global_atomic_add v20, v25, s[58:59] offset:{4*n+4}"]
        else:
            if cfg.rt:
                for i in range(4, n):
                    r = sST + 2 * i
                    out += [f"s_sub_u32 s{r}, s{r}, s{sST}", f"s_subb_u32 s{r+1}, s{r+1}, s{sST+1}", f"s_add_u32 s{r}, s{r}, s{sST+4}", f"s_addc_u32 s{r+1}, s{r+1}, s{sST+5}"]
            for i in range(n):
                out += [f"v_mov_b32 v{22+2*i}, s{sST+2*i}", f"v_mov_b32 v{23+2*i}, s{sST+2*i+1}", f"global_store_dwordx2 v20, v[{22+2*i}:{23+2*i}], s[58:59] offset:{8*i}"]
    out += ["L_end:", "s_endpgm", "L_fallback:"] + fallback(cfg)
    out += ['.section .rodata,"a"', ".p2align 6", f".amdhsa_kernel {NAME}",
            "  .amdhsa_next_free_vgpr 512", "  .amdhsa_next_free_sgpr 102", "  .amdhsa_accum_offset 256",
            "  .amdhsa_group_segment_fixed_size 0", "  .amdhsa_kernarg_size 48", "  .amdhsa_user_sgpr_count 2",
            "  .amdhsa_user_sgpr_kernarg_segment_ptr 1", "  .amdhsa_system_sgpr_workgroup_id_x 1", ".end_amdhsa_kernel"]
    return "\n".join(out) + "\n"

if __name__ == "__main__":
    path = sys.argv[1]
    kw = {}
    for a in sys.argv[2:]:
        k, v = a.split("=", 1)
        kw[k] = int(v) if re.fullmatch(r"-?\d+", v) else v.replace("+", " ")
    s = build(Cfg(**kw))
    open(path, "w").write(s)
    print(path, len(s), "bytes", s.count("\n"), "lines")
```

```python
import sys, re, math, struct

NAME = "standalone__gqa_softmax__near_ridge_kernel"

PS = 1056
TS = 8 * PS
KB = 0
VB = 4 * TS
QB = 8 * TS
OPS = 1040
XB = 17 * TS
XLB = (XB + 16384 + 511) // 512 * 512
FB = XLB + 1024
LDS_BYTES = 163840
assert FB + 16 <= LDS_BYTES

vK, vV, vDma, vQ, vQx, vLin, vQw, vOw, vOxw, vOr, vXw, vXr, vK0, vT0, vT1 = range(1, 16)
T16 = 16
TSC = 32
NEGM = 40
SB = 60
PB = 76
vRC = 84
vXl = 94; vFl = 95
OB = 96
aQ = 0; aK = 80; aV = 144; aL = 208; aONE = 228; aSV = 232
X = 4

sW = 3
sKS, sVS, sQA, sQB_, sOS = 12, 16, 20, 24, 28
sKV, sM0, sCNT, sQOFF, sOOFF = 32, 33, 34, 35, 36
sC = 38
sTHR, sMODE = 40, 41
sBAD = 42
sHI, sSGN = 45, 46
sT = 48
sOA = 56
sKVA = 57
sST = 60

def f32bits(x): return struct.unpack("<I", struct.pack("<f", x))[0]
C_SCALE = f32bits(math.log2(math.e) / math.sqrt(128.0))
THR = f32bits(2.0 ** 40)

def R(c, n, k=1): return {(c, n + i) for i in range(k)}
def rs(c, n, k=1): return f"{c}{n}" if k == 1 else f"{c}[{n}:{n+k-1}]"

class I:
    def __init__(s, text, kind, rd=(), wr=(), srcc=(), tag=None, vm=None, lg=None, lds=None):
        s.text, s.kind, s.rd, s.wr, s.srcc = text, kind, set(rd), set(wr), set(srcc)
        s.tag, s.vm, s.lg, s.lds = tag, vm, lg, lds
        s.nvm = s.nlg = None
    def render(s):
        if s.kind == "wait":
            p = []
            if s.nvm is not None: p.append(f"vmcnt({s.nvm})")
            if s.nlg is not None: p.append(f"lgkmcnt({s.nlg})")
            return "s_waitcnt " + " ".join(p) if p else "s_nop 0"
        return s.text

def mfma(dc, d, ac, a, bc, b, c):
    ct = "0" if c is None else rs(dc, c, 4)
    cr = set() if c is None else R(dc, c, 4)
    return I(f"v_mfma_f32_16x16x32_bf16 {rs(dc,d,4)}, {rs(ac,a,4)}, {rs(bc,b,4)}, {ct}", "mfma",
             rd=R(ac, a, 4) | R(bc, b, 4) | cr, wr=R(dc, d, 4), srcc=cr)
def valu(text, rd, wr, kind="valu"): return I(text, kind, rd=rd, wr=wr)
def salu(text, wr=()): return I(text, "salu", wr=wr)
def wait(vm=None, lg=None): return I("", "wait", vm=vm, lg=lg)
def bar(): return I("s_barrier", "bar")
def nop(n): return I(f"s_nop {n}", "nop", tag=n)
def label(n): return I(f"{n}:", "label")
def off(o): return f" offset:{o}" if o else ""
def dsr128(dc, d, addr, o, tag, lds): return I(f"ds_read_b128 {rs(dc,d,4)}, v{addr}{off(o)}", "dsr", rd=R("v", addr), wr=R(dc, d, 4), tag=tag, lds=lds)
def dsrtr(dc, d, addr, o, tag, lds): return I(f"ds_read_b64_tr_b16 {rs(dc,d,2)}, v{addr}{off(o)}", "dsr", rd=R("v", addr), wr=R(dc, d, 2), tag=tag, lds=lds)
def dsw(n, addr, src, o, tag, lds):
    return I(f"ds_write_b{32*n} v{addr}, {rs('v',src,n)}{off(o)}", "dsw", rd=R("v", addr) | R("v", src, n), tag=tag, lds=lds)

class Cfg:
    LA = 3
    BOFF = 24
    nt = "nt"
    snt = "nt"
    stamps = 0
    dbg = 0
    spin = 0
    trace = 0
    ramp = 0
    rampat = 0
    slowf = 0
    abl = ''
    ones4 = 0
    slowall = 0
    cpf = 0
    slowe = 0
    slowm = 0
    slowdec = 0
    unroll0 = 0
    twice = 0
    rt = 0
    adj = 0
    dma_span = 68
    exp64 = 0
    spill = 5
    l2hit = 0
    noaux = 0
    nodma = 0
    def __init__(s, **kw):
        for k, v in kw.items():
            assert hasattr(Cfg, k), k
            setattr(s, k, v)

QUADS = {"salu": 1, "wait": 1, "bar": 1, "nop": 1, "valu": 1, "trans": 2, "dsr": 2, "dsw": 3, "dma": 3, "vld": 3, "vst": 3}
ORDER = {"salu": 0, "wait": 0, "bar": 0, "nop": 0, "dsr": 1, "dsw": 1, "dma": 1, "vld": 1, "vst": 1, "valu": 2, "trans": 2}
class Stream:
    def __init__(s):
        s.m = []; s.g = []; s.pos = {}
    def add(s, ins, key=None):
        if key is not None: s.pos[key] = len(s.m)
        s.m.append(ins); s.g.append([])
    def fits(s, i, ins, two_ds=False):
        g = s.g[i] + [ins]
        nds = sum(x.kind == "dsr" for x in g)
        if nds > (2 if two_ds else 1): return False
        q = sum(QUADS[x.kind] for x in g) - (1 if nds == 2 else 0)
        v = sum(QUADS[x.kind] for x in g if x.kind in ("valu", "trans"))
        return q <= 3 and v <= 2
    def put(s, i, ins): s.g[i].append(ins); return i
    def place(s, ins, lo, hi, pref=None, over=False):
        hi = min(hi, len(s.m) - 1)
        if over: lo = min(lo, hi)
        if pref:
            for i in range(lo, hi + 1):
                if pref(s.g[i]) and s.fits(i, ins): return s.put(i, ins)
        for i in range(lo, hi + 1):
            if s.fits(i, ins): return s.put(i, ins)
        for i in range(lo, hi + 1):
            if s.fits(i, ins, True): return s.put(i, ins)
        if over: return s.put(hi, ins)
        raise RuntimeError(f"cannot place {ins.text} in [{lo},{hi}]")
    def late(s, ins, lo, hi):
        for i in range(hi, lo - 1, -1):
            if s.fits(i, ins): return s.put(i, ins)
        raise RuntimeError(f"cannot place late {ins.text} in [{lo},{hi}]")
    def emit(s, lo, hi):
        out = []
        srt = lambda g: sorted(g, key=lambda x: ORDER[x.kind])
        if lo > 0: out += [x for x in srt(s.g[lo - 1]) if ORDER[x.kind] > 0]
        for i in range(lo, hi):
            if s.m[i] is not None: out.append(s.m[i])
            out += [x for x in srt(s.g[i]) if i < hi - 1 or hi == len(s.m) or ORDER[x.kind] == 0]
        return out

def dma(cfg, kv, T, j):
    base = (KB if kv == "K" else VB) + (T % 4) * TS + j * (PS - 1024)
    srd = sKS if kv == "K" else sVS
    return [salu(f"s_add_u32 m0, s{sM0}, {base}", wr={("s", "m0")}),
            I(f"buffer_load_dwordx4 v{vDma}, s[{srd}:{srd+3}], s{sKV} offen{off(1024*j)} {cfg.nt} lds", "dma",
              rd=R("v", vDma) | {("s", "m0")}, tag=(kv, T), lds=("w", (kv, T % 4), (kv, T)))]
def kv_step(cfg, T):
    d = 8192
    if T == 32 and not cfg.adj: d = 8192 + 255 * 262144
    if cfg.l2hit: d = 0
    return salu(f"s_add_u32 s{sKV}, s{sKV}, {d}")
def kread(T, kb, s): return dsr128("a", aK + 32 * (T & 1) + 16 * kb + 4 * s, vK, (T % 4) * TS + 512 * kb + 64 * s, ("Kr", T), ("r", ("K", T % 4), ("K", T)))
def vread(T, dt, kb): return dsrtr("a", aV + 32 * (T & 1) + 4 * dt + 2 * kb, vV, (T % 4) * TS + 512 * kb + 32 * dt, ("Vr", T), ("r", ("V", T % 4), ("V", T)))
def qread(h, q, s):
    if q == X: return dsr128("a", aQ + 16 * q + 4 * s, vQx, 64 * s, ("Qr", h, q), ("r", "QO", ("Q", h)))
    return dsr128("a", aQ + 16 * q + 4 * s, vQ, (q >> 1) * TS + (q & 1) * 512 + 64 * s, ("Qr", h, q), ("r", "QO", ("Q", h)))
def k0read(h, s): return dsr128("v", T16 + 4 * s, vK0, 64 * s, ("K0r", h), ("r", ("K", 0), ("K", 32 * h)))
def k0neg(i): return valu(f"v_bitop3_b32 v{T16+i}, v{T16+i}, v{vT1}, s{sMODE} bitop3:0x28", R("v", T16 + i) | R("v", vT1), R("v", T16 + i))
def negm_init(h, q, r): return valu(f"v_accvgpr_read_b32 v{NEGM+4*q+r}, a{aSV+5*h+q}", R("a", aSV + 5 * h + q), R("v", NEGM + 4 * q + r))
def negm_mfma(q, s): return mfma("v", NEGM + 4 * q, "v", T16 + 4 * s, "a", aQ + 16 * q + 4 * s, NEGM + 4 * q)
def scale_reg(src, t, packed):
    o = [valu(f"v_lshlrev_b32 v{t}, 16, v{src}", R("v", src), R("v", t)),
         valu(f"v_and_b32 v{t+1}, s{sHI}, v{src}", R("v", src), R("v", t + 1))]
    if packed:
        o.append(valu(f"v_pk_mul_f32 v[{t}:{t+1}], v[{t}:{t+1}], s[{sC}:{sC+1}]", R("v", t, 2), R("v", t, 2)))
    else:
        o.append(valu(f"v_mul_f32 v{t}, s{sC}, v{t}", R("v", t), R("v", t)))
        o.append(valu(f"v_mul_f32 v{t+1}, s{sC}, v{t+1}", R("v", t + 1), R("v", t + 1)))
    o.append(valu(f"v_cvt_pk_bf16_f32 v{src}, v{t}, v{t+1}", R("v", t, 2), R("v", src)))
    return o
def stamp(cfg, k):
    op = "s_memrealtime" if cfg.rt else "s_memtime"
    return [I(f"{op} s[{sST+2*k}:{sST+2*k+1}]", "smem")] if cfg.stamps > k else []

def units(e):
    u = []
    for t in range(32):
        if (t & 1) == e: u.append((t, X))
        u += [(t, q) for q in range(4)]
    return u

def head_stream(cfg, e, h):
    U = units(e); N = len(U); assert N == 144
    st = Stream()
    T0 = 32 * h
    start = {}
    for n, (t, q) in enumerate(U): start.setdefault(t, n)
    seen = set()
    def qk(n):
        t, q = U[n]; sb = SB + 8 * (n & 1)
        for kb in range(2):
            for s in range(4):
                st.add(mfma("v", sb + 4 * kb, "a", aK + 32 * (t & 1) + 16 * kb + 4 * s, "a", aQ + 16 * q + 4 * s,
                            NEGM + 4 * q if s == 0 else sb + 4 * kb), key=(n, "q", 4 * kb + s))
    def pv(n):
        t, q = U[n]; pb = PB + 4 * (n & 1); first = q not in seen; seen.add(q)
        for dt in range(8):
            o = OB + 32 * q + 4 * dt
            st.add(mfma("v", o, "a", aV + 32 * (t & 1) + 4 * dt, "v", pb, None if first else o), key=(n + 1, "p", dt))
        st.add(mfma("a", aL + 4 * q, "a", aONE, "v", pb, None if first else aL + 4 * q), key=(n + 1, "p", 8))
    for n in range(N + 1):
        if n < N: qk(n)
        else:
            for k in range(8):
                st.add(negm_mfma(U[k >> 2][1], k & 3) if h == 0 else None, key=(n, "q", k))
        if n == 0:
            for k in range(12): st.add(negm_mfma(U[2 + (k >> 2)][1], k & 3), key=(0, "p", k - 3) if k >= 3 else None)
        else: pv(n - 1)
    P = st.pos
    e64 = "_e64" if cfg.exp64 else ""
    for n in range(N):
        sb = SB + 8 * (n & 1); pb = PB + 4 * (n & 1)
        eg = [(n, "p", 1), (n, "p", 2), (n, "p", 4), (n, "p", 6), (n, "p", 8), (n + 1, "q", 0), (n + 1, "q", 2), (n + 1, "q", 4)]
        cg = [(n, "p", 3), (n, "p", 7), (n + 1, "q", 1), (n + 1, "q", 5)]
        for i in range(8): st.put(P[eg[i]], valu(f"v_exp_f32{e64} v{sb+i}, v{sb+i}", R("v", sb + i), R("v", sb + i), "trans"))
        for i in range(4): st.put(P[cg[i]], valu(f"v_cvt_pk_bf16_f32 v{pb+i}, v{sb+2*i}, v{sb+2*i+1}", R("v", sb + 2 * i, 2), R("v", pb + i)))
    if h == 1:
        for k in (1, 5): st.put(P[(N, "q", k)], nop(0))
        st.put(P[(N, "q", 7)], nop(1))
    last = len(st.m) - 1
    bounds = [P[(18 * b, "q", 0)] for b in range(8)] + [last + 1]
    def gap_at(x):
        n, k = divmod(x, 17)
        return P[(n, "q", k)] if k < 8 else P[(n, "p", k - 8)]
    hasexp = lambda g: any(x.kind == "trans" for x in g)
    hascvt = lambda g: any(x.kind == "valu" for x in g)
    for b in range(1, 7):
        if cfg.unroll0 and h == 0: continue
        st.put(bounds[b + 1] - 1, I(f"s_cbranch_scc1 L_m{h}{e}", "salu"))
        st.put(bounds[b + 1] - 3, salu(f"s_cmp_lg_u32 s{sCNT}, 0"))
        st.put(bounds[b + 1] - 5, salu(f"s_sub_u32 s{sCNT}, s{sCNT}, 1"))
    st.place(salu(f"s_mov_b32 s{sCNT}, 6"), bounds[1] - 12, bounds[1] - 1, hasexp)
    def safe_salu(ins, lo, hi):
        for i in range(lo, hi + 1):
            if any(bounds[b + 1] - 3 <= i <= bounds[b + 1] - 1 for b in range(1, 7)): continue
            if hasexp(st.g[i]) and st.fits(i, ins): return st.put(i, ins)
        raise RuntimeError("salu " + ins.text)
    B = {}
    for t in range(1, 33):
        if h == 1 and t == 32: break
        x = ((t - 1) >> 1) * 153 + ((t - 1) & 1) * 76 + cfg.BOFF
        g = gap_at(x)
        w = wait(vm=[("K", T0 + t), ("V", T0 + t)], lg=[("Kr", T0 + t - 1), ("Vr", T0 + t - 1), ("K0r", h), ("Qr", h), ("Qw", h + 1), ("Ow", h - 1), ("Or", h - 1)])
        i = st.place(w, g, g + 3, hasexp)
        B[t] = st.place(bar(), i + 1, i + 3, hasexp)
    post = []
    if cfg.slowf and h == 0:
        for i in range(300): post.append((i, valu(f"s_nop {max(0, int(cfg.slowf * (1 - i / 300)))}", set(), set())))
    if cfg.slowe and h == 0:
        for n in range(cfg.slowm): post.append((P[(n, "p", 2)], valu(f"s_nop {max(0, round((cfg.slowe - 1) * (1 - cfg.slowdec * n / cfg.slowm)))}", set(), set())))
    if cfg.slowall:
        for n in range(N): post.append((P[(n, "p", 2)], valu(f"s_nop {cfg.slowall - 1}", set(), set())))
    if cfg.trace:
        for t in B:
            st.g[B[t]] += [valu("s_mov_b32 m0, s98", set(), set()), valu("v_writelane_b32 v38, s94, m0", set(), set()), valu("v_writelane_b32 v39, s96, m0", set(), set()),
                           valu("s_add_u32 s98, s98, 1", set(), set()), valu("s_memrealtime s[94:95]", set(), set()), valu("s_memtime s[96:97]", set(), set())]
    for t in B:
        T = T0 + t + cfg.LA
        if T >= 64: continue
        lo = safe_salu(kv_step(cfg, T), B[t] + 1, B[t] + 8)
        if cfg.nodma: continue
        step = cfg.dma_span // 4 if t < 32 else min(cfg.dma_span, last - B[t] - 24) // 4
        for k, (kv, j) in enumerate((("K", 0), ("K", 1), ("V", 0), ("V", 1))):
            m0, ld = dma(cfg, kv, T, j)
            i = safe_salu(m0, max(lo, B[t] + 1 + k * step), B[t] + 1 + k * step + 12)
            lo = st.place(ld, i + 1, i + 8) + 1
    anchors = {}
    if h == 0:
        for b in range(7):
            for i in range(3):
                buf = T16 + 4 * i
                lo = bounds[b] + 85 + 102 * i
                if b >= 1:
                    lo = anchors[(b, i)] = st.place(dsw(4, vQw, buf, PS * i, ("Qw", 1), ("w", "QO", ("Q", 1))), lo, lo + 12)
                lo = st.place(I(f"buffer_load_dwordx4 {rs('v',buf,4)}, v{vLin}, s[{sQB_}:{sQB_+3}], s{sQOFF} offen{off(1024*i)} {cfg.nt}", "vld",
                                rd=R("v", vLin), wr=R("v", buf, 4), tag=("Ql", 1, 3 * b + i)), lo + 2, bounds[b + 1] - 1)
                if i == 2: safe_salu(salu(f"s_add_u32 s{sQOFF}, s{sQOFF}, 3072"), bounds[b + 1], bounds[b + 1] + 20)
    else:
        for b in range(1, 7):
            for i in range(3):
                buf = T16 + 4 * i
                lo = bounds[b] + 60 + 102 * i
                lo = anchors[(b, i)] = st.place(I(f"buffer_store_dwordx4 {rs('v',buf,4)}, v{vLin}, s[{sOS}:{sOS+3}], s{sOOFF} offen{off(1024*i)} {cfg.snt}", "vst",
                                rd=R("v", vLin) | R("v", buf, 4), tag=("Os", 0, 3 * (b - 1) + i)), lo, lo + 24)
                if i == 2: safe_salu(salu(f"s_add_u32 s{sOOFF}, s{sOOFF}, 3072"), lo + 1, bounds[b + 1] - 1)
    def frags(t):
        T = T0 + t
        lo = B[t] + 1 if t else 0
        if t:
            kdead = P[(start[t], "q", 0)] - 9 if t < 32 else last
            for kb in range(2):
                for s in range(4):
                    free = P[(start[t - 1] - 1, "q", 4 * kb + s)] if t >= 2 else 0
                    lo = st.place(kread(T, kb, s), max(lo, free), kdead, None, t == 32) + 1
        if t == 32: return
        if t: st.late(wait(lg=[("Kr", T)]), P[(start[t], "q", 0)] - 8, P[(start[t], "q", 0)] - 1)
        nxtB = B[t + 1] if t + 1 in B else last
        use = P[(start[t] + 1, "p", 0)]
        NSP = cfg.spill if (t and t % 4 == 0) else 0
        for k in range(16):
            dt, kb = k >> 1, k & 1
            free = P[(start[t - 1], "p", dt)] if t >= 2 else 0
            dead = min(use - 10, nxtB - 10); left = 15 - k
            l2 = max(lo, free)
            if NSP:
                if k < 16 - NSP: dead = bounds[t // 4] - 2; left -= NSP
                else: l2 = max(l2, bounds[t // 4])
            if t == 0: lo = st.put(k >> 1, vread(T, dt, kb)); continue
            navail = sum(1 for i in range(l2, dead + 1) if hascvt(st.g[i]) and st.fits(i, vread(T, dt, kb)))
            lo = st.place(vread(T, dt, kb), l2, dead, hascvt if navail > left else None) + 1
        if nxtB > use - 1: st.late(wait(lg=[("Vr", T)]), use - 6, use - 1)
    frags(0)
    for t in B:
        if t < 32: frags(t)
    if h == 0:
        for b in range(1, 7):
            for i in range(3):
                buf = T16 + 4 * i; hi = anchors[(b, i)] - 1
                lo = bounds[b] if i == 0 else anchors[(b, i - 1)] + 1
                lo = st.place(wait(vm=[("Ql", 1, 3 * (b - 1) + i)]), lo, hi, hasexp) + 1
                for r in range(4):
                    for ins in scale_reg(buf + r, TSC + 2 * (r & 1), False): lo = st.place(ins, lo, hi)
            st.place(valu(f"v_add_u32 v{vQw}, {3*PS}, v{vQw}", R("v", vQw), R("v", vQw)), anchors[(b, 2)] + 1, bounds[b + 1] - 1)
        lastu = {q: n for n, (t, q) in enumerate(U)}
        pre = P[(N, "q", 0)]
        lo = st.place(wait(vm=[("Ql", 1, 20)]), B[32] - 12, B[32] - 1, hasexp)
        lo = B[32] + 1
        for s in range(4): lo = st.place(k0read(1, s), lo, pre - 20) + 1
        lo = st.place(wait(lg=[("K0r", 1)]), lo + 5, pre - 12, hasexp) + 1
        for i in range(16): lo = st.place(k0neg(i), lo, pre - 2)
        for q in sorted(range(5), key=lambda q: lastu[q]):
            early = q in (U[0][1], U[1][1])
            lo = P[(lastu[q], "q", 7)]
            for s in range(4): lo = st.place(qread(1, q, s), lo, pre - 8 if early else last, None, True) + 1
            lo = P[(lastu[q], "q", 7)]
            for r in range(4): lo = st.place(negm_init(1, q, r), lo, pre - 2 if early else last, None, True)
        st.late(wait(lg=[("Qr", 1, U[0][1]), ("Qr", 1, U[1][1])]), pre - 3, pre - 1)
        frags(32)
    else:
        for b in range(1, 7):
            for i in range(3):
                j = 3 * (b - 1) + i; buf = T16 + 4 * i; a = anchors[(b, i)]
                lo = st.place(dsr128("v", buf, vOr, OPS * i, ("Or", 0, j), ("r", "QO", ("O", 0))), a - 55, a - 12)
                if i == 2: st.place(valu(f"v_add_u32 v{vOr}, {3*OPS}, v{vOr}", R("v", vOr), R("v", vOr)), lo + 1, bounds[b + 1] - 1)
                st.late(wait(lg=[("Or", 0, j)]), a - 6, a - 1)
    for i, x in post: st.g[i].append(x)
    ab = cfg.abl.split()
    def drop(x):
        t = x.text
        return (("exp" in ab and x.kind == "trans") or ("cvt" in ab and t.startswith("v_cvt_pk") and int(t.split()[1][1:-1]) >= PB)
                or ("kr" in ab and x.tag and x.tag[0] == "Kr" and x.kind == "dsr") or ("vr" in ab and x.tag and x.tag[0] == "Vr" and x.kind == "dsr" and x.tag[1] > 1)
                or ("aux" in ab and (x.kind in ("vld", "vst", "dsw") or (x.kind == "dsr" and x.tag[0] == "Or") or (x.kind == "valu" and (x.wr & R("v", T16, 24)) and "bitop" not in t))))
    if ab:
        for i in range(bounds[1] - 1, len(st.g)):
            st.g[i] = [x for x in st.g[i] if not (isinstance(x.tag, (tuple, type(None))) and drop(x))]
            if "sum" in ab and i >= bounds[1] and st.m[i] is not None and st.m[i].text.startswith("v_mfma_f32_16x16x32_bf16 a["): st.m[i] = None
    return st, bounds

def normalize(q, dts, rc):
    o = []
    for dt in dts:
        b = OB + 32 * q + 4 * dt
        for k in (0, 2): o.append(valu(f"v_pk_mul_f32 v[{b+k}:{b+k+1}], v[{b+k}:{b+k+1}], v[{rc}:{rc+1}] op_sel_hi:[1,0]", R("v", b + k, 2) | R("v", rc), R("v", b + k, 2)))
    for dt in dts:
        b = OB + 32 * q + 4 * dt
        o.append(valu(f"v_cvt_pk_bf16_f32 v{b}, v{b}, v{b+1}", R("v", b, 2), R("v", b)))
        o.append(valu(f"v_cvt_pk_bf16_f32 v{b+1}, v{b+2}, v{b+3}", R("v", b + 2, 2), R("v", b + 1)))
    return o

def epilogue(cfg, e, h):
    o = []
    keep = [4 * e + i for i in range(4)]; send = [4 * (1 - e) + i for i in range(4)]
    for i, dt in enumerate(send): o.append(dsw(4, vXw, OB + 32 * X + 4 * dt, 1024 * i, ("Xw", h), ("w", "X", ("X", h))))
    for q in (X, 0, 1, 2):
        o.append(valu(f"v_accvgpr_read_b32 v{vRC+2*q}, a{aL+4*q}", R("a", aL + 4 * q), R("v", vRC + 2 * q)))
    o.append(valu(f"v_accvgpr_read_b32 v{vRC+6}, a{aL+12}", R("a", aL + 12), R("v", vRC + 6)))
    o.append(dsw(1, vXl, vRC + 2 * X, 0, ("Xw", h), ("w", "X", ("X", h))))
    o.append(valu(f"v_add_f32 v{vRC+1}, v{vRC}, v{vRC+2}", R("v", vRC, 4), R("v", vRC + 1)))
    o.append(valu(f"v_add_f32 v{vRC+3}, v{vRC+4}, v{vRC+6}", R("v", vRC + 4, 4), R("v", vRC + 3)))
    o.append(valu(f"v_add_f32 v{vRC+1}, v{vRC+1}, v{vRC+8}", R("v", vRC + 1) | R("v", vRC + 8), R("v", vRC + 1)))
    o.append(valu(f"v_add_f32 v{vT0}, v{vRC+1}, v{vRC+3}", R("v", vRC + 1) | R("v", vRC + 3), R("v", vT0)))
    o.append(valu(f"v_cmp_nge_f32 vcc, s{sTHR}, v{vT0}", R("v", vT0), set()))
    for q in range(4): o.append(valu(f"v_rcp_f32 v{vRC+2*q}, v{vRC+2*q}", R("v", vRC + 2 * q), R("v", vRC + 2 * q), "trans"))
    o.append(salu(f"s_or_b64 s[{sBAD}:{sBAD+1}], s[{sBAD}:{sBAD+1}], vcc"))
    if h == 1:
        o.append(salu(f"s_or_b32 s{sT}, s{sBAD}, s{sBAD+1}"))
        o.append(valu(f"v_mov_b32 v{vT0}, s{sT}", set(), R("v", vT0)))
        o.append(dsw(1, vFl, vT0, 0, ("Xw", h), ("w", "F", ("F", h))))
    o += normalize(0, range(8), vRC)
    o.append(wait(lg=[("Xw", h), ("Qr", h + 1), ("Or", h - 1), ("Kr", 32)]))
    o.append(bar())
    for i in range(4): o.append(dsr128("v", SB + 4 * i, vXr, 1024 * i, ("Xr", h), ("r", "X", ("X", h))))
    o.append(valu(f"v_xor_b32 v{vT0}, 256, v{vXl}", R("v", vXl), R("v", vT0)))
    o.append(I(f"ds_read_b32 v{vRC+9}, v{vT0}", "dsr", rd=R("v", vT0), wr=R("v", vRC + 9), tag=("Xr", h), lds=("r", "X", ("X", h))))
    if h == 1:
        o.append(valu(f"v_mov_b32 v{vT0}, {FB}", set(), R("v", vT0)))
        o.append(dsr128("v", PB, vT0, 0, ("Fr", h), ("r", "F", ("F", h))))
    def stage(q): return [dsw(2, vOw, OB + 32 * q + 4 * dt, (q >> 1) * 8 * OPS + (q & 1) * 512 + 32 * dt, ("Ow", h), ("w", "QO", ("O", h))) for dt in range(8)]
    def back(g, buf):
        return [dsr128("v", buf + 4 * p, vOr, (8 * g + p) * OPS, ("Op", g, p), None) for p in range(8)]
    def store(g, buf):
        r = []
        for p in range(8):
            if p % 4 == 0 and (g or p): r.append(salu(f"s_add_u32 s{sOOFF}, s{sOOFF}, 4096"))
            r.append(wait(lg=[("Op", g, p)]))
            r.append(I(f"buffer_store_dwordx4 {rs('v',buf+4*p,4)}, v{vLin}, s[{sOS}:{sOS+3}], s{sOOFF} offen{off(1024*(p&3))} {cfg.snt}", "vst",
                       rd=R("v", vLin) | R("v", buf + 4 * p, 4), tag=("Os", 1)))
        return r
    o += stage(0)
    if h == 1:
        o.append(salu(f"s_mul_i32 s{sT}, s{sW}, {16*OPS}")); o.append(salu(f"s_add_u32 s{sT}, s{sT}, {QB}"))
        o.append(valu(f"v_add_u32 v{vOr}, s{sT}, v{vLin}", R("v", vLin), R("v", vOr)))
        o.append(salu(f"s_lshl_b32 s{sT}, s{sW}, 14")); o.append(salu(f"s_add_u32 s{sOOFF}, s{sOA}, s{sT}"))
        o.append(salu(f"s_add_u32 s{sOOFF}, s{sOOFF}, {73728 * (1 if cfg.adj else 256)}"))
    o += normalize(1, range(8), vRC + 2) + stage(1)
    if h == 1: o += back(0, OB)
    o += normalize(2, range(8), vRC + 4) + stage(2)
    if h == 1: o += store(0, OB)
    o += normalize(3, range(8), vRC + 6) + stage(3)
    if h == 1: o += back(1, OB + 32)
    o.append(wait(lg=[("Xr", h)]))
    o.append(valu(f"v_add_f32 v{vRC+8}, v{vRC+8}, v{vRC+9}", R("v", vRC + 8, 2), R("v", vRC + 8)))
    o.append(valu(f"v_rcp_f32 v{vRC+8}, v{vRC+8}", R("v", vRC + 8), R("v", vRC + 8), "trans"))
    for i, dt in enumerate(keep):
        b = OB + 32 * X + 4 * dt
        for k in (0, 2): o.append(valu(f"v_pk_add_f32 v[{b+k}:{b+k+1}], v[{b+k}:{b+k+1}], v[{SB+4*i+k}:{SB+4*i+k+1}]", R("v", b + k, 2) | R("v", SB + 4 * i + k, 2), R("v", b + k, 2)))
    o += normalize(X, keep, vRC + 8)
    for i, dt in enumerate(keep): o.append(dsw(2, vOxw, OB + 32 * X + 4 * dt, 32 * i, ("Ow", h), ("w", "QO", ("O", h))))
    if h == 1:
        o += store(1, OB + 32)
        o.append(wait(lg=[("Ow", h), ("Fr", h)]))
        o.append(bar())
        o.append(salu(f"s_mul_i32 s{sT}, s{sW}, {2*OPS}")); o.append(salu(f"s_add_u32 s{sT}, s{sT}, {QB + 64*OPS}"))
        o.append(valu(f"v_add_u32 v{vOr}, s{sT}, v{vLin}", R("v", vLin), R("v", vOr)))
        o.append(salu(f"s_lshl_b32 s{sT}, s{sW}, 11")); o.append(salu(f"s_add_u32 s{sOOFF}, s{sOA}, s{sT}"))
        o.append(salu(f"s_add_u32 s{sOOFF}, s{sOOFF}, {73728 * (1 if cfg.adj else 256) + 65536}"))
        for p in range(2): o.append(dsr128("v", T16 + 4 * p, vOr, p * OPS, ("Or", 1, p), ("r", "QO", ("O", 1))))
        o.append(valu(f"v_or3_b32 v{PB}, v{PB}, v{PB+1}, v{PB+2}", R("v", PB, 3), R("v", PB)))
        o.append(valu(f"v_or_b32 v{PB}, v{PB}, v{PB+3}", R("v", PB, 4), R("v", PB)))
        for p in range(2):
            o.append(wait(lg=[("Or", 1, p)]))
            o.append(I(f"buffer_store_dwordx4 {rs('v',T16+4*p,4)}, v{vLin}, s[{sOS}:{sOS+3}], s{sOOFF} offen{off(1024*p)} {cfg.snt}", "vst",
                       rd=R("v", vLin) | R("v", T16 + 4 * p, 4), tag=("Os", 1)))
        o.append(valu(f"v_readfirstlane_b32 s{sT}, v{PB}", R("v", PB), set()))
    return o

def setup(cfg):
    L = []
    A = L.append
    A("s_cmp_ge_u32 s2, 256"); A("s_cbranch_scc1 L_end")
    A("s_load_dwordx4 s[4:7], s[0:1], 0"); A("s_load_dwordx4 s[8:11], s[0:1], 16")
    if cfg.stamps:
        A(f"s_load_dwordx2 s[58:59], s[0:1], {32 if cfg.dbg else 40}")
        A(f"s_memrealtime s[{sST}:{sST+1}]"); A(f"s_memtime s[{sST+4}:{sST+5}]")
    A("v_lshrrev_b32 v16, 6, v0"); A("v_and_b32 v17, 63, v0")
    A(f"v_readfirstlane_b32 s{sW}, v16")
    A(f"v_lshlrev_b32 v{vLin}, 4, v17")
    if cfg.cpf:
        A("s_getpc_b64 s[48:49]"); A("L_pc:")
        A("s_add_u32 s48, s48, L_start-L_pc"); A("s_addc_u32 s49, s49, 0")
        if cfg.cpf == 1:
            A("s_lshr_b32 s50, s2, 3"); A("s_and_b32 s50, s50, 3"); A("s_lshl_b32 s50, s50, 15")
            A("v_lshl_add_u32 v24, v0, 7, s50")
            A("v_min_u32 v24, L_end-L_start, v24")
            A("v_mov_b32 v25, s49"); A("v_add_co_u32 v24, vcc, s48, v24"); A("s_nop 1"); A("v_addc_co_u32 v25, vcc, 0, v25, vcc")
            A("global_load_dword v26, v[24:25], off")
        else:
            for k in range(3):
                A(f"v_lshlrev_b32 v24, 7, v0"); A(f"v_add_u32 v24, {32768*k}, v24")
                A("v_min_u32 v24, L_end-L_start, v24")
                A("v_mov_b32 v25, s49"); A("v_add_co_u32 v24, vcc, s48, v24"); A("s_nop 1"); A("v_addc_co_u32 v25, vcc, 0, v25, vcc")
                A(f"global_load_dword v{26+k}, v[24:25], off")
    A("v_lshrrev_b32 v18, 4, v17")
    A("v_and_b32 v19, 7, v17")
    A("v_bfe_u32 v20, v17, 3, 1")
    A(f"v_lshlrev_b32 v{vK0}, 4, v18")
    A(f"v_mul_u32_u24 v21, {PS}, v19"); A("v_lshl_add_u32 v21, v20, 8, v21")
    A(f"v_add_u32 v{vK}, v21, v{vK0}")
    A("v_bfe_u32 v21, v17, 2, 3")
    A(f"v_mul_u32_u24 v21, {PS}, v21"); A("v_lshrrev_b32 v22, 5, v17"); A("v_lshl_add_u32 v21, v22, 8, v21")
    A("v_and_b32 v22, 3, v17"); A("v_lshl_add_u32 v21, v22, 3, v21"); A(f"v_add_u32 v{vV}, {VB}, v21")
    A(f"v_lshl_add_u32 v{vDma}, v16, 11, v{vLin}")
    A(f"v_mul_u32_u24 v21, {2*TS}, v16"); A(f"v_add_u32 v21, {QB}, v21"); A(f"v_add_u32 v{vQ}, v21, v{vK}")
    A("v_lshrrev_b32 v22, 1, v16")
    A(f"v_lshl_add_u32 v21, v22, 9, v{vK}"); A(f"v_add_u32 v{vQx}, {QB + 8*TS}, v21")
    A(f"v_mul_u32_u24 v21, {OPS}, v19"); A("v_lshl_add_u32 v21, v20, 8, v21"); A("v_lshl_add_u32 v21, v18, 3, v21")
    A(f"v_mul_u32_u24 v23, {16*OPS}, v16"); A(f"v_add_u32 v23, {QB}, v23"); A(f"v_add_u32 v{vOw}, v23, v21")
    A("v_lshl_add_u32 v21, v22, 9, v21"); A("v_and_b32 v23, 1, v16"); A("v_lshl_add_u32 v21, v23, 7, v21"); A(f"v_add_u32 v{vOxw}, {QB + 64*OPS}, v21")
    A(f"v_lshl_add_u32 v21, v16, 12, v{vLin}"); A(f"v_add_u32 v{vXw}, {XB}, v21")
    A("v_xor_b32 v21, 0x1000, v21"); A(f"v_add_u32 v{vXr}, {XB}, v21")
    assert XLB % 512 == 0
    A(f"v_lshlrev_b32 v21, 2, v0"); A(f"v_add_u32 v{vXl}, {XLB}, v21")
    A(f"v_lshlrev_b32 v21, 2, v16"); A(f"v_add_u32 v{vFl}, {FB}, v21")
    A(f"v_mov_b32 v{vT1}, 0x80008000")
    A(f"v_mov_b32 v21, 0x3f803f80")
    if cfg.ones4: A("v_and_b32 v22, 3, v17"); A("v_cmp_eq_u32 vcc, 0, v22"); A("s_nop 1"); A("v_cndmask_b32 v21, 0, v21, vcc")
    for i in range(4): A(f"v_accvgpr_write_b32 a{aONE+i}, v21")
    for i in range(10): A(f"v_accvgpr_write_b32 a{aSV+i}, 0")
    A(f"s_mov_b32 s{sC}, {C_SCALE:#x}"); A(f"s_mov_b32 s{sC+1}, {C_SCALE:#x}"); A(f"s_mov_b32 s{sTHR}, {THR:#x}")
    A(f"s_mov_b32 s{sHI}, 0xffff0000"); A(f"s_mov_b32 s{sMODE}, -1")
    A(f"s_mul_i32 s{sM0}, s{sW}, {2*PS}")
    if cfg.twice: A("s_mov_b32 s90, 0")
    if cfg.trace: A("s_mov_b32 s98, 0"); A("s_memrealtime s[94:95]"); A("s_memtime s[96:97]")
    if cfg.adj: A(f"s_lshl_b32 s{sT}, s2, 1")
    else: A(f"s_mov_b32 s{sT}, s2")
    A(f"s_mul_i32 s{sOA}, s{sT}, 73728"); A(f"s_lshl_b32 s{sKVA}, s{sT}, 18")
    A(f"s_mul_i32 s{sT}, s{sW}, 18432"); A(f"s_add_u32 s{sT}, s{sT}, s{sOA}")
    A("s_waitcnt lgkmcnt(0)")
    for d, p, n in ((sKS, 6, 134217728), (sVS, 8, 134217728), (sOS, 10, 37748736)):
        A(f"s_mov_b32 s{d}, s{p}"); A(f"s_mov_b32 s{d+1}, s{p+1}"); A(f"s_mov_b32 s{d+2}, {n}"); A(f"s_mov_b32 s{d+3}, 0x20000")
    A(f"s_add_u32 s{sQA}, s4, s{sT}"); A(f"s_addc_u32 s{sQA+1}, s5, 0"); A(f"s_mov_b32 s{sQA+2}, 18432"); A(f"s_mov_b32 s{sQA+3}, 0x20000")
    A(f"s_add_u32 s{sQB_}, s{sQA}, {73728 * (1 if cfg.adj else 256)}"); A(f"s_addc_u32 s{sQB_+1}, s{sQA+1}, 0"); A(f"s_mov_b32 s{sQB_+2}, 18432"); A(f"s_mov_b32 s{sQB_+3}, 0x20000")
    return L

def rampcode(cfg, lab):
    return [salu(f"s_mul_i32 s91, s2, {cfg.ramp}"), salu("s_lshr_b32 s91, s91, 8"), salu("s_memrealtime s[88:89]"), salu("s_waitcnt lgkmcnt(0)"), label(lab),
            salu("s_memrealtime s[92:93]"), salu("s_waitcnt lgkmcnt(0)"), salu("s_sub_u32 s92, s92, s88"), salu("s_cmp_lt_u32 s92, s91"), salu(f"s_cbranch_scc1 {lab}")]
def prologue(cfg):
    o = []
    if cfg.ramp and cfg.rampat == 0: o += rampcode(cfg, "L_ramp")
    o.append(salu(f"s_mov_b32 s{sKV}, s{sKVA}"))
    o.append(salu(f"s_mov_b64 s[{sBAD}:{sBAD+1}], 0"))
    def D(kv, T):
        r = []
        for j in range(2):
            m0, ld = dma(cfg, kv, T, j); r += [m0, nop(0), ld]
        return r
    o += D("K", 0)
    for j in range(18):
        if j % 4 == 0: o.append(salu(f"s_mov_b32 s{sQOFF}, {1024*j}"))
        o.append(I(f"buffer_load_dwordx4 {rs('v',OB+4*j,4)}, v{vLin}, s[{sQA}:{sQA+3}], s{sQOFF} offen{off(1024*(j&3))} {cfg.nt}", "vld",
                   rd=R("v", vLin), wr=R("v", OB + 4 * j, 4), tag=("Ql", 0, j)))
    o += D("V", 0)
    o.append(salu(f"s_mov_b32 s{sQOFF}, 0"))
    o.append(salu(f"s_mul_i32 s{sT}, s{sW}, {18*PS}")); o.append(salu(f"s_add_u32 s{sT}, s{sT}, {QB}"))
    o.append(valu(f"v_add_u32 v{vQw}, s{sT}, v{vLin}", R("v", vLin), R("v", vQw)))
    o.append(salu(f"s_mul_i32 s{sT}, s{sW}, {18*OPS}")); o.append(salu(f"s_add_u32 s{sT}, s{sT}, {QB}"))
    o.append(valu(f"v_add_u32 v{vOr}, s{sT}, v{vLin}", R("v", vLin), R("v", vOr)))
    o.append(salu(f"s_mul_i32 s{sT}, s{sW}, 18432")); o.append(salu(f"s_add_u32 s{sOOFF}, s{sT}, s{sOA}"))
    for q in range(5):
        for r in range(4): o.append(negm_init(0, q, r))
    later = []
    for T in range(1, cfg.LA + 1): later.append([kv_step(cfg, T)] + D("K", T)); later.append(D("V", T))
    for j in range(18):
        o.append(wait(vm=[("Ql", 0, j)]))
        for r in range(4): o += scale_reg(OB + 4 * j + r, TSC + 2 * r, True)
        o.append(dsw(4, vQw, OB + 4 * j, PS * j, ("Qw", 0), ("w", "QO", ("Q", 0))))
        if j % 2 == 1 and later: o += later.pop(0)
    assert not later
    o += stamp(cfg, 4)
    if cfg.ramp and cfg.rampat == 1: o += rampcode(cfg, "L_ramp")
    o.append(wait(vm=[("K", 0), ("V", 0)], lg=[("Qw", 0)])); o.append(bar())
    for s in range(4): o.append(k0read(0, s))
    return o

def prologue2(cfg, e):
    U = units(e)
    o = []
    for n in range(2):
        for s in range(4): o.append(qread(0, U[n][1], s))
    o.append(wait(lg=[("K0r", 0)]))
    for kb in range(2):
        for s in range(4): o.append(kread(0, kb, s))
    for i in range(16): o.append(k0neg(i))
    for n in range(2, 5):
        for s in range(4): o.append(qread(0, U[n][1], s))
    o.append(wait(lg=[("Qr", 0, U[0][1]), ("Qr", 0, U[1][1])]))
    for n in range(2):
        for s in range(4): o.append(negm_mfma(U[n][1], s))
    o.append(wait(lg=[("Kr", 0), ("Qr", 0)]))
    return o

def fallback(cfg):
    L = []; A = L.append
    A("s_waitcnt vmcnt(0) lgkmcnt(0)"); A("s_barrier")
    A(f"s_mov_b32 s{sMODE}, 0")
    A("v_and_b32 v16, 63, v0"); A("v_lshrrev_b32 v17, 4, v16")
    A("v_and_b32 v18, 7, v16"); A("v_bfe_u32 v19, v16, 3, 1"); A("v_lshl_add_u32 v18, v18, 2, v19")
    A("v_lshlrev_b32 v18, 8, v18"); A("v_lshl_add_u32 v18, v17, 4, v18")
    A("v_and_b32 v19, 15, v16"); A("v_lshlrev_b32 v19, 8, v19"); A("v_lshl_add_u32 v19, v17, 4, v19")
    A(f"s_mov_b32 s{sT+4}, s4"); A(f"s_mov_b32 s{sT+5}, s5"); A(f"s_mov_b32 s{sT+6}, 37748736"); A(f"s_mov_b32 s{sT+7}, 0x20000")
    for h in range(2):
        hq = 73728 * (1 if cfg.adj else 256) * h; hk = 262144 * (1 if cfg.adj else 256) * h
        for q in range(5):
            if q < 4:
                A(f"s_lshl_b32 s{sT}, s{sW}, 14"); A(f"s_add_u32 s{sT}, s{sT}, {hq + (q >> 1) * 8192 + (q & 1) * 512}")
            else:
                A(f"s_lshr_b32 s{sT}, s{sW}, 1"); A(f"s_lshl_b32 s{sT}, s{sT}, 9"); A(f"s_add_u32 s{sT}, s{sT}, {hq + 65536}")
            A(f"s_add_u32 s{sT}, s{sT}, s{sOA}")
            for s in range(4): A(f"buffer_load_dwordx4 {rs('v', OB+16*q+4*s, 4)}, v18, s[{sT+4}:{sT+7}], s{sT} offen{off(64*s)}")
        A("s_waitcnt vmcnt(0)")
        for r in range(80):
            for ins in scale_reg(OB + r, TSC + 2 * (r & 3), True): A(ins.text)
        for i in range(5): A(f"v_mov_b32 v{NEGM+i}, 0xff800000")
        A(f"s_add_u32 s{sT}, s{sKVA}, {hk}"); A(f"s_mov_b32 s{sT+1}, 64")
        A(f"L_fb{h}:")
        for s in range(4): A(f"buffer_load_dwordx4 {rs('v', SB+4*s, 4)}, v19, s[{sKS}:{sKS+3}], s{sT} offen{off(64*s)}")
        A("s_waitcnt vmcnt(0)")
        for q in range(5):
            for s in range(4): A(mfma("v", 192 + 4 * q, "v", SB + 4 * s, "v", OB + 16 * q + 4 * s, None if s == 0 else 192 + 4 * q).text)
        A("s_nop 7"); A("s_nop 1")
        for q in range(5):
            A(f"v_max3_f32 v{NEGM+q}, v{NEGM+q}, v{192+4*q}, v{193+4*q}"); A(f"v_max3_f32 v{NEGM+q}, v{NEGM+q}, v{194+4*q}, v{195+4*q}")
        A(f"s_add_u32 s{sT}, s{sT}, 4096"); A(f"s_sub_u32 s{sT+1}, s{sT+1}, 1"); A(f"s_cmp_lg_u32 s{sT+1}, 0"); A(f"s_cbranch_scc1 L_fb{h}")
        for x in (16, 32):
            A(f"v_xor_b32 v20, {x}, v16"); A("v_lshlrev_b32 v20, 2, v20")
            for q in range(5): A(f"ds_bpermute_b32 v{SB+q}, v20, v{NEGM+q}")
            A("s_waitcnt lgkmcnt(0)")
            for q in range(5): A(f"v_max_f32 v{NEGM+q}, v{NEGM+q}, v{SB+q}")
        for q in range(5): A(f"v_xor_b32 v{NEGM+q}, 0x80000000, v{NEGM+q}")
        for q in range(5): A(f"v_accvgpr_write_b32 a{aSV+5*h+q}, v{NEGM+q}")
    A("s_nop 1")
    A("s_branch L_start")
    return L

def match(tag, want): return tag is not None and any(tag[:len(w)] == w for w in want)
def resolve(tr):
    vm = []; lg = []; vdone = 0; ldone = 0; pend = {}; epoch = 0; ev = []
    for ins in tr:
        for r in ins.rd | ins.wr:
            if r in pend:
                c, idx = pend[r]
                assert idx < (vdone if c == "vm" else ldone), f"unwaited load of {r} at {ins.text}"
                del pend[r]
        if ins.kind == "wait":
            ins.nvm = ins.nlg = None
            for want, lst, mx, c in ((ins.vm, vm, 63, "vm"), (ins.lg, lg, 14, "lg")):
                if not want: continue
                idx = max((i for i, x in enumerate(lst) if match(x.tag, want)), default=-1)
                if idx < 0: continue
                n = min(len(lst) - 1 - idx, mx)
                if c == "vm": ins.nvm = n; vdone = max(vdone, len(lst) - n)
                else: ins.nlg = n; ldone = max(ldone, len(lst) - n)
            for x in vm[:vdone] + lg[:ldone]:
                if x.lds and not hasattr(x, "edone"): x.edone = epoch
        elif ins.kind == "bar": epoch += 1
        elif ins.kind in ("dma", "vld", "vst"):
            vm.append(ins)
            assert len(vm) - vdone <= 63
            for r in ins.wr: pend[r] = ("vm", len(vm) - 1)
        elif ins.kind in ("dsr", "dsw"):
            lg.append(ins)
            for r in ins.wr: pend[r] = ("lg", len(lg) - 1)
        if ins.lds: ins.eissue = epoch; ev.append(ins)
    return epoch, ev
def check_lds(evs):
    reg = {}
    for ev in evs:
        for x in ev: reg.setdefault(x.lds[1], {}).setdefault(x.lds[2], {"r": [], "w": []})[x.lds[0]].append(x)
    INF = 10 ** 9
    for r, cont in reg.items():
        order = sorted(cont, key=lambda c: min(x.eissue for x in cont[c]["w"]) if cont[c]["w"] else -1)
        for i, c in enumerate(order):
            w, rd = cont[c]["w"], cont[c]["r"]
            if w and rd:
                assert max(getattr(x, "edone", INF) for x in w) < min(x.eissue for x in rd), f"LDS RAW {r} {c}"
            if i + 1 < len(order):
                nw = cont[order[i + 1]]["w"]
                assert max(getattr(x, "edone", INF) for x in rd + w) < min(x.eissue for x in nw), f"LDS WAR {r} {c}->{order[i+1]}"
def check_hazards(tr):
    seq = [x for x in tr if x.kind != "label"]
    def ws(x): return x.tag + 1 if x.kind == "nop" else 1
    for i, c in enumerate(seq):
        d = 0
        for j in range(i - 1, max(-1, i - 12), -1):
            p = seq[j]; need = 0
            isv = c.kind in ("valu", "trans"); mem = c.kind in ("dsr", "dsw", "dma", "vld", "vst")
            if p.kind == "mfma":
                if (isv or mem) and p.wr & (c.rd | c.wr): need = 8
                if c.kind == "mfma":
                    if p.wr & (c.rd - c.srcc): need = 8
                    if p.wr & c.srcc and p.wr != c.srcc: need = 6
                if isv and p.srcc & c.wr: need = max(need, 3)
            if p.kind in ("valu", "trans") and c.kind == "mfma" and p.wr & c.rd: need = 2
            if p.kind == "trans" and c.kind == "valu" and p.wr & c.rd: need = 1
            if p.kind == "salu" and c.kind == "dma" and ("s", "m0") in p.wr: need = 1
            if p.kind == "vst" and (p.rd & c.wr): need = 2
            if p.kind in ("valu", "trans") and "readfirstlane" in c.text and p.wr & c.rd: need = 1
            assert d >= need, f"hazard: {p.text} -> {c.text} needs {need}, has {d}"
            d += ws(p)

def build(cfg):
    out = ["; GQA softmax attention, B16 H32 Sq288 Sk1024 D128 bf16, generated by dev/gen.py (hand-designed schedule)",
           f"; @launch grid=(256,1,1) block=(256,1,1) lds={LDS_BYTES}",
           '.amdgcn_target "amdgcn-amd-amdhsa--gfx950"', ".text", f".globl {NAME}", ".p2align 8", f".type {NAME},@function", f"{NAME}:"]
    out += setup(cfg)
    out.append("L_start:")
    evs = []; eps = []; texts = []; pro_text = None
    for e in range(2):
        pro = prologue(cfg)
        segs = [("pro", pro), ("pro2", prologue2(cfg, e))]
        for h in range(2):
            st, bounds = head_stream(cfg, e, h)
            for b in range(8): segs.append(((h, b), st.emit(bounds[b], bounds[b + 1])))
            segs.append((("st", h), stamp(cfg, 5 + 2 * h)))
            segs.append((("epi", h), epilogue(cfg, e, h)))
            segs.append((("st2", h), stamp(cfg, 6 + 2 * h)))
        tr = [x for _, s in segs for x in s]
        ep, ev = resolve(tr); eps.append(ep); evs.append(ev)
        if not cfg.abl: check_hazards(tr)
        d = dict(segs)
        for h in range(2):
            if cfg.unroll0 and h == 0: continue
            ref = d[(h, 1)]
            for b in range(2, 7):
                cur = d[(h, b)]
                assert len(cur) == len(ref), (h, b, len(cur), len(ref))
                for x, y in zip(ref, cur):
                    assert x.kind == y.kind and x.text == y.text, (h, b, x.text, y.text)
                    if x.kind == "wait":
                        for a in ("nvm", "nlg"):
                            vals = [v for v in (getattr(x, a), getattr(y, a)) if v is not None]
                            setattr(x, a, min(vals) if vals else None)
        t = []
        for k, s in segs:
            if k == "pro":
                p = [x.render() for x in s]
                assert pro_text is None or p == pro_text
                pro_text = p; continue
            if isinstance(k, tuple) and isinstance(k[0], int):
                if 2 <= k[1] <= 6 and not (cfg.unroll0 and k[0] == 0): continue
                if k[1] == 1: t.append(f"L_m{k[0]}{e}:")
            t += [x.render() for x in s]
        texts.append(t)
    assert eps[0] == eps[1]
    if not cfg.nodma and not cfg.abl: check_lds(evs)
    out += pro_text
    out += [f"s_bitcmp1_b32 s{sW}, 0", "s_cbranch_scc1 L_odd"]
    out += texts[0] + ["s_branch L_fin", ".p2align 6", "L_odd:"] + texts[1] + ["L_fin:"]
    if cfg.abl or cfg.nodma or cfg.l2hit: out += [f"s_mov_b32 s{sT}, 0"]
    out += ["s_nop 3", f"s_and_b32 s{sT}, s{sT}, s{sMODE}", "s_cbranch_scc1 L_fallback"]
    if cfg.twice:
        out += ["s_add_u32 s90, s90, 1", f"s_cmp_gt_u32 s90, {cfg.twice}", "s_cbranch_scc1 L_done2", "s_waitcnt vmcnt(0) lgkmcnt(0)", "s_barrier", "s_branch L_start", "L_done2:"]
    if cfg.trace:
        out += ["s_waitcnt lgkmcnt(0)", "s_mov_b32 m0, s98", "v_writelane_b32 v38, s94, m0", "v_writelane_b32 v39, s96, m0", f"s_cmp_lg_u32 s{sW}, 0", "s_cbranch_scc1 L_notr",
                f"s_lshl_b32 s{sT}, s2, 9", f"s_add_u32 s{sT}, s{sT}, 0x100000", f"v_lshl_add_u32 v20, v0, 3, s{sT}", "global_store_dwordx2 v20, v[38:39], s[58:59]", "L_notr:"]
    if cfg.spin:
        out += ["s_waitcnt vmcnt(0)", "L_spin:", "s_memrealtime s[92:93]", "s_waitcnt lgkmcnt(0)", f"s_sub_u32 s92, s92, s{sST}", f"s_cmp_lt_u32 s92, {cfg.spin}", "s_cbranch_scc1 L_spin"]
    if cfg.stamps:
        n = cfg.stamps
        out += ["s_waitcnt vmcnt(0)", "s_barrier", f"s_memrealtime s[{sST+2}:{sST+3}]", f"s_memtime s[{sST+6}:{sST+7}]", "s_waitcnt lgkmcnt(0)",
                f"s_cmp_lg_u32 s{sW}, 0", "s_cbranch_scc1 L_end", f"s_mul_i32 s{sT}, s2, {n*8}", f"v_mov_b32 v20, s{sT}",
                "v_cmp_eq_u32 vcc, 0, v0", "s_and_saveexec_b64 s[50:51], vcc"]
        if cfg.dbg == 2:
            out += ["s_cmp_ge_u32 s2, 8", "s_cbranch_scc1 L_end", f"s_lshl_b32 s{sT}, s2, 3", f"v_mov_b32 v20, s{sT}",
                    f"s_sub_u32 s{sT}, s{sST+2}, s{sST}", f"v_mov_b32 v22, s{sT}", f"s_sub_u32 s{sT}, s{sST+6}, s{sST+4}", f"v_mov_b32 v23, s{sT}",
                    "global_store_dwordx2 v20, v[22:23], s[58:59]"]
        elif cfg.dbg:
            out += ["v_mov_b32 v20, 0", f"s_not_b32 s{sT}, s{sST}", f"v_mov_b32 v22, s{sT}", "global_atomic_umax v20, v22, s[58:59]",
                    f"v_mov_b32 v23, s{sST+2}", "global_atomic_umax v20, v23, s[58:59] offset:4",
                    f"s_sub_u32 s{sT}, s{sST+2}, s{sST}", f"v_mov_b32 v24, s{sT}", "global_atomic_umax v20, v24, s[58:59] offset:8",
                    f"s_sub_u32 s{sT}, s{sST+6}, s{sST+4}", f"v_mov_b32 v25, s{sT}", "global_atomic_umax v20, v25, s[58:59] offset:12"]
            for i in range(4, n):
                out += [f"s_sub_u32 s{sT}, s{sST+2*i}, s{sST if cfg.rt else sST+4}", f"v_mov_b32 v{26+i}, s{sT}", f"global_atomic_add v20, v{26+i}, s[58:59] offset:{4*i}"]
            out += [f"global_atomic_add v20, v24, s[58:59] offset:{4*n}", f"global_atomic_add v20, v25, s[58:59] offset:{4*n+4}"]
        else:
            if cfg.rt:
                for i in range(4, n):
                    r = sST + 2 * i
                    out += [f"s_sub_u32 s{r}, s{r}, s{sST}", f"s_subb_u32 s{r+1}, s{r+1}, s{sST+1}", f"s_add_u32 s{r}, s{r}, s{sST+4}", f"s_addc_u32 s{r+1}, s{r+1}, s{sST+5}"]
            for i in range(n):
                out += [f"v_mov_b32 v{22+2*i}, s{sST+2*i}", f"v_mov_b32 v{23+2*i}, s{sST+2*i+1}", f"global_store_dwordx2 v20, v[{22+2*i}:{23+2*i}], s[58:59] offset:{8*i}"]
    out += ["L_end:", "s_endpgm", "L_fallback:"] + fallback(cfg)
    out += ['.section .rodata,"a"', ".p2align 6", f".amdhsa_kernel {NAME}",
            "  .amdhsa_next_free_vgpr 512", "  .amdhsa_next_free_sgpr 102", "  .amdhsa_accum_offset 256",
            "  .amdhsa_group_segment_fixed_size 0", "  .amdhsa_kernarg_size 48", "  .amdhsa_user_sgpr_count 2",
            "  .amdhsa_user_sgpr_kernarg_segment_ptr 1", "  .amdhsa_system_sgpr_workgroup_id_x 1", ".end_amdhsa_kernel"]
    return "\n".join(out) + "\n"

if __name__ == "__main__":
    path = sys.argv[1]
    kw = {}
    for a in sys.argv[2:]:
        k, v = a.split("=", 1)
        kw[k] = int(v) if re.fullmatch(r"-?\d+", v) else v.replace("+", " ")
    s = build(Cfg(**kw))
    open(path, "w").write(s)
    print(path, len(s), "bytes", s.count("\n"), "lines")
```

```python
import sys, re, math, struct

NAME = "standalone__gqa_softmax__near_ridge_kernel"

PS = 1056
TS = 8 * PS
KB = 0
VB = 4 * TS
QB = 8 * TS
XB = 17 * TS
XLB = (XB + 16384 + 1023) // 1024 * 1024
FB = XLB + 1024
LDS_BYTES = 163840
assert FB + 16 <= LDS_BYTES

vK, vV, vDma, vQ, vQx, vLin, vQw, vOw, vOxw, vOr, vXw, vXr, vK0, vT0, vT1 = range(1, 16)
T16 = 16
TSC = 32
NEGM = 40
SB = 60
PB = 76
vRC = 84
vLx = 86; vLp = 87
vG = 88
vOg = 89; vOxr = 90; vOxg = 91; vXlr = 92; vOr2 = 93
vXl = 94; vFl = 95
OB = 96
aQ = 0; aK = 80; aV = 144; aL = 208; aONE = 228; aSV = 232
X = 4

sW = 3
sKS, sVS, sQA, sQB_, sOS = 12, 16, 20, 24, 28
sKV, sM0, sCNT, sQOFF, sOOFF = 32, 33, 34, 35, 36
sC = 38
sTHR, sMODE = 40, 41
sO1 = 42
sO1X = 43
sHI = 45
sT = 48
sOA = 56
sKVA = 57
sST = 60

def f32bits(x): return struct.unpack("<I", struct.pack("<f", x))[0]
C_SCALE = f32bits(math.log2(math.e) / math.sqrt(128.0))
THR = f32bits(2.0 ** 40)

def R(c, n, k=1): return {(c, n + i) for i in range(k)}
def rs(c, n, k=1): return f"{c}{n}" if k == 1 else f"{c}[{n}:{n+k-1}]"

class I:
    def __init__(s, text, kind, rd=(), wr=(), srcc=(), tag=None, vm=None, lg=None, lds=None):
        s.text, s.kind, s.rd, s.wr, s.srcc = text, kind, set(rd), set(wr), set(srcc)
        s.tag, s.vm, s.lg, s.lds = tag, vm, lg, lds
        s.nvm = s.nlg = None; s.after = []
    def render(s):
        if s.kind == "wait":
            p = []
            if s.nvm is not None: p.append(f"vmcnt({s.nvm})")
            if s.nlg is not None: p.append(f"lgkmcnt({s.nlg})")
            return "s_waitcnt " + " ".join(p) if p else "s_nop 0"
        return s.text
def chain(lst):
    for a, b in zip(lst, lst[1:]): b.after.append(a)
    return lst

def mfma(dc, d, ac, a, bc, b, c):
    ct = "0" if c is None else rs(dc, c, 4)
    cr = set() if c is None else R(dc, c, 4)
    return I(f"v_mfma_f32_16x16x32_bf16 {rs(dc,d,4)}, {rs(ac,a,4)}, {rs(bc,b,4)}, {ct}", "mfma",
             rd=R(ac, a, 4) | R(bc, b, 4) | cr, wr=R(dc, d, 4), srcc=cr)
def valu(text, rd, wr, kind="valu"): return I(text, kind, rd=rd, wr=wr)
def salu(text, wr=()): return I(text, "salu", wr=wr)
def wait(vm=None, lg=None): return I("", "wait", vm=vm, lg=lg)
def bar(): return I("s_barrier", "bar")
def nop(n): return I(f"s_nop {n}", "nop", tag=n)
def label(n): return I(f"{n}:", "label")
def off(o): return f" offset:{o}" if o else ""
def dsr128(dc, d, addr, o, tag, lds): return I(f"ds_read_b128 {rs(dc,d,4)}, v{addr}{off(o)}", "dsr", rd=R("v", addr), wr=R(dc, d, 4), tag=tag, lds=lds)
def dsrtr(dc, d, addr, o, tag, lds): return I(f"ds_read_b64_tr_b16 {rs(dc,d,2)}, v{addr}{off(o)}", "dsr", rd=R("v", addr), wr=R(dc, d, 2), tag=tag, lds=lds)
def dsw(n, addr, src, o, tag, lds):
    return I(f"ds_write_b{32*n} v{addr}, {rs('v',src,n)}{off(o)}", "dsw", rd=R("v", addr) | R("v", src, n), tag=tag, lds=lds)

class Cfg:
    LA = 3
    LA0 = 3
    peel = 0
    BOFF = 24
    W = 6
    W2 = 4
    nt = "nt"
    snt = "nt"
    adj = 0
    dma_span = 68
    eshift = 8
    ebit = 0
    spill = 5
    ones4 = 1
    cpf = 1
    soft = 0
    stamps = 0
    rt = 0
    pst = 0
    trace = 0
    dbg = 0
    nodma = 0
    slowe = 0
    slowm = 18
    slowdec = 0
    slowall = 0
    def __init__(s, **kw):
        for k, v in kw.items():
            assert hasattr(Cfg, k), k
            setattr(s, k, v)

QUADS = {"salu": 1, "wait": 1, "bar": 1, "nop": 1, "valu": 1, "trans": 2, "dsr": 2, "dsw": 3, "dma": 3, "vld": 3, "vst": 3}
ORDER = {"salu": 0, "wait": 0, "bar": 0, "nop": 0, "dsr": 1, "dsw": 1, "dma": 1, "vld": 1, "vst": 1, "valu": 2, "trans": 2}
class Stream:
    def __init__(s):
        s.m = []; s.g = []; s.pos = {}; s.flip = set()
    def add(s, ins, key=None):
        if key is not None: s.pos[key] = len(s.m)
        s.m.append(ins); s.g.append([])
    def fits(s, i, ins, two_ds=False):
        g = s.g[i] + [ins]
        nds = sum(x.kind == "dsr" for x in g)
        if nds > (2 if two_ds else 1): return False
        q = sum(QUADS[x.kind] for x in g) - (1 if nds == 2 else 0)
        v = sum(QUADS[x.kind] for x in g if x.kind in ("valu", "trans"))
        return q <= 3 and v <= 2
    def put(s, i, ins): s.g[i].append(ins); return i
    def place(s, ins, lo, hi, pref=None):
        if pref:
            for i in range(lo, hi + 1):
                if pref(s.g[i]) and s.fits(i, ins): return s.put(i, ins)
        for i in range(lo, hi + 1):
            if s.fits(i, ins): return s.put(i, ins)
        for i in range(lo, hi + 1):
            if s.fits(i, ins, True): return s.put(i, ins)
        raise RuntimeError(f"cannot place {ins.text} in [{lo},{hi}]")
    def late(s, ins, lo, hi):
        for i in range(hi, lo - 1, -1):
            if s.fits(i, ins): return s.put(i, ins)
        return s.put(hi, ins)
    def spread(s, lst, lo, hi):
        lst = [x if isinstance(x, tuple) else (x, 0) for x in lst]
        chain([x for x, _ in lst])
        n = len(lst); cur = lo
        dm = [max(d, 1) if k and ORDER[x.kind] < ORDER[lst[k - 1][0].kind] else d for k, (x, d) in enumerate(lst)]
        for k, (ins, _) in enumerate(lst):
            a = cur + dm[k]
            lim = hi - sum(dm[k + 1:])
            assert a <= lim, f"spread overflow {ins.text} {a} > {lim}"
            tgt = min(lim, max(a, lo + (k * (hi - lo + 1)) // n))
            i = next((j for j in range(a, tgt + 1) if s.fits(j, ins)), None)
            if i is None:
                i = tgt
                if ORDER[ins.kind] == 1:
                    i = next((j for j in range(tgt, min(tgt + 3, lim) + 1) if not any(ORDER[y.kind] == 1 for y in s.g[j])), tgt)
            s.put(i, ins); cur = i
        return cur
    def srt(s, i):
        if i in s.flip: return sorted(s.g[i], key=lambda x: {0: 0, 1: 2, 2: 1}[ORDER[x.kind]])
        return sorted(s.g[i], key=lambda x: ORDER[x.kind])
    def emit(s, lo, hi):
        out = []
        if lo > 0: out += [x for x in s.srt(lo - 1) if ORDER[x.kind] > 0]
        for i in range(lo, hi):
            if s.m[i] is not None: out.append(s.m[i])
            out += [x for x in s.srt(i) if i < hi - 1 or hi == len(s.m) or ORDER[x.kind] == 0]
        return out

def dma(cfg, kv, T, j):
    base = (KB if kv == "K" else VB) + (T % 4) * TS + j * (PS - 1024)
    srd = sKS if kv == "K" else sVS
    return [salu(f"s_add_u32 m0, s{sM0}, {base}", wr={("s", "m0")}),
            I(f"buffer_load_dwordx4 v{vDma}, s[{srd}:{srd+3}], s{sKV} offen{off(1024*j)} {cfg.nt} lds", "dma",
              rd=R("v", vDma) | {("s", "m0")}, tag=(kv, T), lds=("w", (kv, T % 4), (kv, T)))]
def kv_step(cfg, T):
    d = 8192
    if T == 32 and not cfg.adj: d = 8192 + 255 * 262144
    return salu(f"s_add_u32 s{sKV}, s{sKV}, {d}")
def kread(T, kb, s): return dsr128("a", aK + 32 * (T & 1) + 16 * kb + 4 * s, vK, (T % 4) * TS + 512 * kb + 64 * s, ("Kr", T), ("r", ("K", T % 4), ("K", T)))
def vread(T, dt, kb): return dsrtr("a", aV + 32 * (T & 1) + 4 * dt + 2 * kb, vV, (T % 4) * TS + 512 * kb + 32 * dt, ("Vr", T), ("r", ("V", T % 4), ("V", T)))
def qoff(q): return (q >> 1) * TS + (q & 1) * 512
def qread(h, q, s):
    if q == X: return dsr128("a", aQ + 16 * q + 4 * s, vQx, 64 * s, ("Qr", h, q), ("r", "QO", ("Q", h), q))
    return dsr128("a", aQ + 16 * q + 4 * s, vQ, qoff(q) + 64 * s, ("Qr", h, q), ("r", "QO", ("Q", h), q))
def k0read(h, s): return dsr128("v", T16 + 4 * s, vK0, 64 * s, ("K0r", h), ("r", ("K", 0), ("K", 32 * h)))
def k0neg(i): return valu(f"v_bitop3_b32 v{T16+i}, v{T16+i}, v{vT1}, s{sMODE} bitop3:0x28", R("v", T16 + i) | R("v", vT1), R("v", T16 + i))
def negm_init(h, q, r): return valu(f"v_accvgpr_read_b32 v{NEGM+4*q+r}, a{aSV+5*h+q}", R("a", aSV + 5 * h + q), R("v", NEGM + 4 * q + r))
def negm_mfma(q, s): return mfma("v", NEGM + 4 * q, "v", T16 + 4 * s, "a", aQ + 16 * q + 4 * s, NEGM + 4 * q)
def scale_reg(src, t, packed):
    o = [valu(f"v_lshlrev_b32 v{t}, 16, v{src}", R("v", src), R("v", t)),
         valu(f"v_and_b32 v{t+1}, s{sHI}, v{src}", R("v", src), R("v", t + 1))]
    if packed:
        o.append(valu(f"v_pk_mul_f32 v[{t}:{t+1}], v[{t}:{t+1}], s[{sC}:{sC+1}]", R("v", t, 2), R("v", t, 2)))
    else:
        o.append(valu(f"v_mul_f32 v{t}, s{sC}, v{t}", R("v", t), R("v", t)))
        o.append(valu(f"v_mul_f32 v{t+1}, s{sC}, v{t+1}", R("v", t + 1), R("v", t + 1)))
    o.append(valu(f"v_cvt_pk_bf16_f32 v{src}, v{t}, v{t+1}", R("v", t, 2), R("v", src)))
    return o
def stamp(cfg, k, pro=False):
    if bool(cfg.pst) != pro: return []
    op = "s_memrealtime" if cfg.rt else "s_memtime"
    return [I(f"{op} s[{sST+2*k}:{sST+2*k+1}]", "salu")] if cfg.stamps > k else []
def ostore(cfg, buf, voff, soff, o, tag):
    return I(f"buffer_store_dwordx4 {rs('v',buf,4)}, v{voff}, s[{sOS}:{sOS+3}], s{soff} offen{off(o)} {cfg.snt}", "vst", rd=R("v", voff) | R("v", buf, 4), tag=tag)

def norm_dt(b, packed):
    if packed:
        o = [valu(f"v_pk_mul_f32 v[{b+k}:{b+k+1}], v[{b+k}:{b+k+1}], v[{vRC}:{vRC+1}] op_sel_hi:[1,0]", R("v", b + k, 2) | R("v", vRC), R("v", b + k, 2)) for k in (0, 2)]
    else:
        o = [valu(f"v_mul_f32 v{b+k}, v{vRC}, v{b+k}", R("v", b + k) | R("v", vRC), R("v", b + k)) for k in range(4)]
    return o + [valu(f"v_cvt_pk_bf16_f32 v{b}, v{b}, v{b+1}", R("v", b, 2), R("v", b)), valu(f"v_cvt_pk_bf16_f32 v{b+1}, v{b+2}, v{b+3}", R("v", b + 2, 2), R("v", b + 1))]
def q_head(q):
    return [valu(f"v_accvgpr_read_b32 v{vT0}, a{aL+4*q}", R("a", aL + 4 * q), R("v", vT0)),
            valu(f"v_rcp_f32 v{vRC}, v{vT0}", R("v", vT0), R("v", vRC), "trans"),
            valu(f"v_add_f32 v{vG}, v{vG}, v{vT0}", R("v", vG) | R("v", vT0), R("v", vG))]
def q_stage(h, q, packed=False):
    o = []
    for dt in range(8):
        b = OB + 32 * q + 4 * dt
        o += norm_dt(b, packed) + [dsw(2, vOw, b, qoff(q) + 32 * dt, ("Ow", h), ("w", "QO", ("O", h), q))]
    return o
def q_out(cfg, q, lat=8):
    b = OB + 32 * q
    o = [dsr128("v", b + 4 * i, vOr2, qoff(q) + i * PS, ("Op", q, i), ("r", "QO", ("O", 1), q)) for i in range(4)]
    if q == 2: o.append(salu(f"s_add_u32 s{sO1}, s{sO1}, 8192"))
    for i in range(4):
        o += [(wait(lg=[("Op", q, i)]), lat if i == 0 else 0), ostore(cfg, b + 4 * i, vOg, sO1, 1024 * i + 512 * (q & 1), ("Os", 1))]
    return o
def x_send(e, h):
    o = [valu(f"v_accvgpr_read_b32 v{vLx}, a{aL+4*X}", R("a", aL + 4 * X), R("v", vLx))]
    o += [dsw(4, vXw, OB + 32 * X + 16 * (1 - e) + 4 * i, 1024 * i, ("Xw", h), ("w", "X", ("X", h))) for i in range(4)]
    o += [dsw(1, vXl, vLx, 0, ("Xw", h), ("w", "X", ("X", h)))]
    return o
def x_recv(e, h):
    snd = OB + 32 * X + 16 * (1 - e)
    o = [I(f"ds_read_b32 v{vLp}, v{vXlr}", "dsr", rd=R("v", vXlr), wr=R("v", vLp), tag=("Xr", h), lds=("r", "X", ("X", h)))]
    o += [dsr128("v", snd + 4 * i, vXr, 1024 * i, ("Xr", h), ("r", "X", ("X", h))) for i in range(4)]
    return o
def x_stage(e, h):
    kp = OB + 32 * X + 16 * e; snd = OB + 32 * X + 16 * (1 - e)
    o = [wait(lg=[("Xr", h)]), valu(f"v_add_f32 v{vLx}, v{vLx}, v{vLp}", R("v", vLx, 2), R("v", vLx)),
         valu(f"v_rcp_f32 v{vRC}, v{vLx}", R("v", vLx), R("v", vRC), "trans"),
         valu(f"v_add_f32 v{vG}, v{vG}, v{vLx}", R("v", vG) | R("v", vLx), R("v", vG))]
    for i in range(4):
        o += [valu(f"v_add_f32 v{kp+4*i+k}, v{kp+4*i+k}, v{snd+4*i+k}", R("v", kp + 4 * i + k) | R("v", snd + 4 * i + k), R("v", kp + 4 * i + k)) for k in range(4)]
        o += norm_dt(kp + 4 * i, False) + [dsw(2, vOxw, kp + 4 * i, 32 * i, ("Ow", h), ("w", "QO", ("O", h), X))]
    return o
def x_out(cfg, e):
    snd = OB + 32 * X + 16 * (1 - e)
    o = [dsr128("v", snd + 4 * k, vOxr, 4 * k * PS, ("Op", X, k), ("r", "QO", ("O", 1), X)) for k in range(2)]
    o += [(wait(lg=[("Op", X, 0)]), 5), ostore(cfg, snd, vOxg, sO1X, 0, ("Os", 1)), salu(f"s_add_u32 s{sO1X}, s{sO1X}, 4096"),
          wait(lg=[("Op", X, 1)]), ostore(cfg, snd + 4, vOxg, sO1X, 0, ("Os", 1))]
    return o

def units(e):
    u = []
    for t in range(30):
        if (t & 1) == e: u.append((t, X))
        u += [(t, q) for q in range(4)]
    return u + [(30, 0), (30, 1), (30 + e, X), (31, 0), (31, 1), (30, 2), (31, 2), (30, 3), (31, 3)]

def initial_ops(cfg):
    ops = [("K", 0, 0), ("K", 0, 1)] + [("Q", j) for j in range(18)] + [("V", 0, 0), ("V", 0, 1)]
    for T in range(1, cfg.LA0 + 1): ops += [("K", T, 0), ("K", T, 1), ("V", T, 0), ("V", T, 1)]
    return ops

def main_stream(cfg, e):
    U = units(e); N = len(U); assert N == 144
    st = Stream()
    first = {}; lastu = {}; lastq = {}
    for n, (t, q) in enumerate(U): first.setdefault(t, n); lastu[t] = n; lastq[q] = n
    firstq = {}
    for n, (t, q) in enumerate(U): firstq.setdefault(q, n)
    for h in range(2):
        for n in range(N + 1):
            if n < N:
                t, q = U[n]; sb = SB + 8 * (n & 1)
                for kb in range(2):
                    for s in range(4):
                        st.add(mfma("v", sb + 4 * kb, "a", aK + 32 * (t & 1) + 16 * kb + 4 * s, "a", aQ + 16 * q + 4 * s,
                                    NEGM + 4 * q if s == 0 else sb + 4 * kb), key=(h, n, "q", 4 * kb + s))
            else:
                for k in range(8): st.add(negm_mfma(U[k >> 2][1], k & 3) if h == 0 else None, key=(h, n, "q", k))
            if n == 0:
                for k in range(12): st.add(negm_mfma(U[2 + (k >> 2)][1], k & 3), key=(h, 0, "p", k - 3))
            else:
                t, q = U[n - 1]; pb = PB + 4 * ((n - 1) & 1); z = firstq[q] == n - 1
                for dt in range(8):
                    o = OB + 32 * q + 4 * dt
                    st.add(mfma("v", o, "a", aV + 32 * (t & 1) + 4 * dt, "v", pb, None if z else o), key=(h, n, "p", dt))
                st.add(mfma("a", aL + 4 * q, "a", aONE, "v", pb, None if z else aL + 4 * q), key=(h, n, "p", 8))
    P = st.pos
    last = len(st.m) - 1
    for h in range(2):
        for n in range(N):
            sb = SB + 8 * (n & 1); pb = PB + 4 * (n & 1)
            eg = [(n, "p", 1), (n, "p", 2), (n, "p", 4), (n, "p", 6), (n, "p", 8), (n + 1, "q", 0), (n + 1, "q", 2), (n + 1, "q", 4)]
            cg = [(n, "p", 3), (n, "p", 7), (n + 1, "q", 1), (n + 1, "q", 5)]
            for i in range(8): st.put(P[(h,) + eg[i]], valu(f"v_exp_f32 v{sb+i}, v{sb+i}", R("v", sb + i), R("v", sb + i), "trans"))
            for i in range(4): st.put(P[(h,) + cg[i]], valu(f"v_cvt_pk_bf16_f32 v{pb+i}, v{sb+2*i}, v{sb+2*i+1}", R("v", sb + 2 * i, 2), R("v", pb + i)))
    for k in (1, 5): st.put(P[(1, N, "q", k)], nop(0))
    st.put(P[(1, N, "q", 7)], nop(1))
    bounds = {(h, b): P[(h, 18 * b, "q", 0)] for h in range(2) for b in range(8)}
    def G(h, x):
        n, k = divmod(x, 17)
        return P[(h, n, "q", k)] if k < 8 else P[(h, n, "p", k - 8)]
    hasexp = lambda g: any(x.kind == "trans" for x in g)
    hascvt = lambda g: any(x.kind == "valu" for x in g)
    noscc = set()
    for h in range(2):
        b0 = 1 + (cfg.peel if h == 0 else 0)
        for b in range(b0, 7):
            z = bounds[(h, b + 1)]
            st.put(z - 1, I(f"s_cbranch_scc1 L_m{h}{e}", "salu")); st.put(z - 3, salu(f"s_cmp_lg_u32 s{sCNT}, 0")); st.put(z - 5, salu(f"s_sub_u32 s{sCNT}, s{sCNT}, 1"))
            noscc |= {z - 3, z - 2, z - 1}
        st.place(salu(f"s_mov_b32 s{sCNT}, {7 - b0}"), bounds[(h, b0)] - 12, bounds[(h, b0)] - 1, hasexp)
    def safe_salu(ins, lo, hi):
        for pref in (hasexp, lambda g: True):
            for i in range(lo, hi + 1):
                if i not in noscc and pref(st.g[i]) and st.fits(i, ins): return st.put(i, ins)
        raise RuntimeError("salu " + ins.text)
    B = {}
    for T in range(1, 65):
        h, t = divmod(T - 1, 32); t += 1
        x = ((t - 1) >> 1) * 153 + ((t - 1) & 1) * 76 + cfg.BOFF
        if t == 30: x = min(x, 2232)
        if t == 31: x = 135 * 17
        if t == 32: x = 140 * 17 + 8
        g = G(h, x)
        lg = [("Kr", T - 1), ("Vr", T - 1), ("K0r", h), ("Qr", h), ("Qw", h + 1), ("Or", h - 1)]
        if T > 34: lg.append(("Ow", 0))
        if t == 32: lg += [("Xw", h), ("Qr", h + 1, X)]
        if t == 1: lg.append(("Xr", h - 1))
        i = st.place(wait(vm=[("K", T), ("V", T)], lg=lg), g, g + 3, hasexp)
        B[T] = st.place(bar(), i + 1, i + 3, hasexp)
    post = []
    if cfg.slowe:
        for n in range(cfg.slowm): post.append((P[(0, n, "p", 2)], valu(f"s_nop {max(0, round((cfg.slowe - 1) * (1 - cfg.slowdec * n / cfg.slowm)))}", set(), set())))
    if cfg.slowall:
        for h in range(2):
            for n in range(N): post.append((P[(h, n, "p", 2)], valu(f"s_nop {cfg.slowall - 1}", set(), set())))
    if cfg.trace:
        for T in range(1, 64):
            st.g[B[T]] += [valu(x, set(), set()) for x in ("s_mov_b32 m0, s98", "v_writelane_b32 v38, s94, m0", "v_writelane_b32 v39, s96, m0",
                                                           "s_add_u32 s98, s98, 1", "s_memrealtime s[94:95]", "s_memtime s[96:97]")]
    def dma_list(ops, lo, span):
        step = span // len(ops); cur = lo
        for k, (kv, T, j) in enumerate(ops):
            a = max(cur, lo + k * step)
            if kv == "K" and j == 0: a = safe_salu(kv_step(cfg, T), a, a + 8)
            if cfg.nodma: continue
            m0, ld = dma(cfg, kv, T, j)
            i = safe_salu(m0, a, a + 12)
            cur = st.place(ld, i + 1, i + 10) + 1
        return cur
    rest = initial_ops(cfg)[20 + cfg.W + cfg.W2:]
    tile_ops = lambda T: [("K", T, 0), ("K", T, 1), ("V", T, 0), ("V", T, 1)]
    for k in range(16): st.put(k >> 1, vread(0, k >> 1, k & 1))
    assert all(op[1] >= 2 for op in rest)
    nxt = cfg.LA0 + 1
    for T in range(1, 64):
        ops = rest; rest = []
        while nxt <= min(63, T + (cfg.LA0 if T < 29 else cfg.LA)): ops = ops + tile_ops(nxt); nxt += 1
        if not ops: break
        cap = 8 if T < 29 else 6
        if len(ops) > cap: ops, rest = ops[:cap], ops[cap:]
        sh = cfg.eshift * e if len(ops) == 4 else 0
        z = dma_list(ops, B[T] + 1 + sh, min(cfg.dma_span, B[T + 1] - B[T] - 8))
        assert z <= B[T + 1] - 1, (T, z, B[T + 1])
    anchors = {}
    for b in range(7):
        for i in range(3):
            buf = T16 + 4 * i
            lo = bounds[(0, b)] + 76 + 102 * i + cfg.eshift * e
            if b >= 1: lo = anchors[(0, b, i)] = st.place(dsw(4, vQw, buf, PS * i, ("Qw", 1), ("w", "QO", ("Q", 1))), lo, lo + 16)
            lo = st.place(I(f"buffer_load_dwordx4 {rs('v',buf,4)}, v{vLin}, s[{sQB_}:{sQB_+3}], s{sQOFF} offen{off(1024*i)} {cfg.nt}", "vld",
                            rd=R("v", vLin), wr=R("v", buf, 4), tag=("Ql", 1, 3 * b + i)), lo + 1, bounds[(0, b + 1)] - 2)
            if i == 2: safe_salu(salu(f"s_add_u32 s{sQOFF}, s{sQOFF}, 3072"), bounds[(0, b + 1)], bounds[(0, b + 1)] + 20)
    for b in range(1, 7):
        for i in range(3):
            lo = bounds[(1, b)] + 60 + 102 * i + cfg.eshift * e
            lo = anchors[(1, b, i)] = st.place(ostore(cfg, T16 + 4 * i, vLin, sOOFF, 1024 * i, ("Os", 0, 3 * (b - 1) + i)), lo, lo + 24)
            if i == 2: safe_salu(salu(f"s_add_u32 s{sOOFF}, s{sOOFF}, 3072"), lo + 1, bounds[(1, b + 1)] - 1)
    def frags(T):
        h, t = divmod(T, 32)
        hp, tp = divmod(T - 2, 32)
        lo = B[T] + 1
        kuse = P[(h, first[t], "q", 0)]; vuse = P[(h, first[t] + 1, "p", 0)]
        for kb in range(2):
            for s in range(4):
                free = P[(hp, lastu[tp], "q", 4 * kb + s)] if T >= 2 else 0
                lo = st.place(kread(T, kb, s), max(lo, free), kuse - 9) + 1
        st.late(wait(lg=[("Kr", T)]), kuse - 8, kuse - 1)
        NSP = cfg.spill if (t and t % 4 == 0) else 0
        for k in range(16):
            dt, kb = k >> 1, k & 1
            free = P[(hp, lastu[tp] + 1, "p", dt)] if T >= 2 else 0
            dead = min(vuse - 10, B[T + 1] - 10); left = 15 - k
            l2 = max(lo, free)
            if NSP:
                if k < 16 - NSP: dead = bounds[(h, t // 4)] - 2; left -= NSP
                else: l2 = max(l2, bounds[(h, t // 4)])
            r = vread(T, dt, kb)
            navail = sum(1 for i in range(l2, dead + 1) if hascvt(st.g[i]) and st.fits(i, r))
            nany = sum(1 for i in range(l2, dead + 1) if st.fits(i, r))
            if nany <= left and st.fits(l2 - 1, r, True) and l2 - 1 >= free and k: lo = st.put(l2 - 1, r) + 1
            else: lo = st.place(r, l2, dead, hascvt if navail > left else None) + 1
        if B[T + 1] > vuse - 1: st.late(wait(lg=[("Vr", T)]), vuse - 6, vuse - 1)
    vuse = P[(0, 1, "p", 0)]
    st.late(wait(lg=[("Vr", 0)]), vuse - 6, vuse - 1)
    for T in range(1, 64): frags(T)
    for b in range(1, 7):
        for i in range(3):
            buf = T16 + 4 * i; hi = anchors[(0, b, i)] - 1
            lo = bounds[(0, b)] if i == 0 else anchors[(0, b, i - 1)] + 1
            lo = st.place(wait(vm=[("Ql", 1, 3 * (b - 1) + i)]), lo, hi, hasexp) + 1
            for r in range(4):
                for ins in scale_reg(buf + r, TSC + 2 * (r & 1), False): lo = st.place(ins, lo, hi)
        st.place(valu(f"v_add_u32 v{vQw}, {3*PS}, v{vQw}", R("v", vQw), R("v", vQw)), anchors[(0, b, 2)] + 1, bounds[(0, b + 1)] - 2)
        for i in range(3):
            j = 3 * (b - 1) + i; a = anchors[(1, b, i)]
            lo = st.place(dsr128("v", T16 + 4 * i, vOr, PS * i, ("Or", 0, j), ("r", "QO", ("O", 0))), a - 55, a - 12)
            if i == 2: st.place(valu(f"v_add_u32 v{vOr}, {3*PS}, v{vOr}", R("v", vOr), R("v", vOr)), lo + 1, bounds[(1, b + 1)] - 2)
            st.late(wait(lg=[("Or", 0, j)]), a - 6, a - 1)
    S = lambda h, n: P[(h, n, "q", 0)]
    pre = S(0, N)
    st.place(wait(vm=[("Ql", 1, 20)]), B[30] + 1, B[31] - 1, hasexp)
    qrd = {}
    for q in range(5):
        k = [u[1] for u in U[:5]].index(q)
        use = pre + 4 * k if k < 2 else P[(1, 0, "p", 4 * (k - 2) - 3)]
        lo = P[(0, lastq[q], "q", 7)]
        qrd[q] = [qread(1, q, s) for s in range(4)]
        st.spread(qrd[q], lo, min(lo + 12, use - 9))
        st.spread([negm_init(1, q, r) for r in range(4)], lo + 2, min(lo + 20, use - 3))
        st.late(wait(lg=[("Qr", 1, q)]), use - 4, use - 1)
    st.spread([k0read(1, s) for s in range(4)] + [(wait(lg=[("K0r", 1)]), 8)] + [k0neg(i) for i in range(16)], B[32] + 1, pre - 3)
    done = lambda h, q: S(h, lastq[q] + 2) + 4 if lastq[q] + 2 <= N else S(1, 0) + 4
    for h in range(2):
        st.spread(x_send(e, h), done(h, X), B[32 * h + 32] - 8)
        st.spread(x_recv(e, h), B[32 * h + 32] + 1, B[32 * h + 32] + 10)
    use = lambda q: P[(1, firstq[q] + 1, "p", 0)] - 1
    def stg(q):
        c = q_head(q) + q_stage(0, q)
        c[9].after.append(qrd[q][3])
        return c
    a = done(0, 0)
    z = P[(1, 4, "p", 0)] - 1; span = z - a
    cuts = [a + span * k // 9 for k in (0, 2, 3, 5, 7, 9)]
    assert cuts[1] <= use(0) and cuts[2] <= use(X) and cuts[3] <= use(1) and cuts[4] <= use(2), (cuts, [use(q) for q in range(5)])
    assert cuts[1] > B[32] + 18 and cuts[2] >= done(0, 1) and cuts[3] >= done(0, 2) and cuts[4] >= done(0, 3), (cuts, B[32])
    one = lambda x: x[0] if isinstance(x, tuple) else x
    def seq(chains, cuts):
        for k, c in enumerate(chains):
            if k: one(c[0]).after.append(one(chains[k - 1][-1]))
            st.spread(c, cuts[k] + (k > 0), cuts[k + 1])
    seq([stg(0), x_stage(e, 0), stg(1), stg(2), stg(3)], cuts)
    a = done(1, 0)
    cuts = [a, a + 18, a + 37, done(1, 2) - 1, last - 1]
    assert cuts[1] >= done(1, 1) and cuts[2] > B[64] + 18
    seq([q_head(0) + q_stage(1, 0), q_head(1) + q_stage(1, 1), x_stage(e, 1), q_head(2) + q_stage(1, 2)], cuts)
    seq([q_out(cfg, 0, 5), q_out(cfg, 1, 5), x_out(cfg, e)], [cuts[1] + 1, cuts[2], cuts[3], last - 8])
    for x in q_out(cfg, 2)[:5]: st.put(last, x)
    if cfg.soft:
        for i in range(S(0, 1), S(0, cfg.soft)):
            if [x.kind for x in st.srt(i)] == ["dsr", "valu"]: st.flip.add(i)
    for i, x in post: st.g[i].append(x)
    return st, bounds

def tail(cfg):
    o = [nop(3)] + q_head(3)
    o.append(valu(f"v_cmp_nge_f32 vcc, s{sTHR}, v{vG}", R("v", vG), set()))
    st = q_stage(1, 3, True)
    o += st[:5]
    o.append(salu(f"s_or_b32 s{sT}, vcc_lo, vcc_hi"))
    o.append(valu(f"v_mov_b32 v{vT0}, s{sT}", set(), R("v", vT0)))
    o.append(dsw(1, vFl, vT0, 0, ("Fw",), ("w", "F", ("F",))))
    one = lambda x: x[0] if isinstance(x, tuple) else x
    o2 = [one(x) for x in q_out(cfg, 2)[5:]]
    for k in range(1, 8):
        o += st[5 * k: 5 * k + 5]
        if k % 2: o += o2[k - 1: k + 1]
    o += [one(x) for x in q_out(cfg, 3)]
    o.append(valu(f"v_mov_b32 v{vT0}, {FB}", set(), R("v", vT0)))
    o += [wait(lg=[("Fw",)]), bar(), dsr128("v", PB, vT0, 0, ("Fr",), ("r", "F", ("F",))), wait(lg=[("Fr",)])]
    o.append(valu(f"v_or3_b32 v{PB}, v{PB}, v{PB+1}, v{PB+2}", R("v", PB, 3), R("v", PB)))
    o.append(valu(f"v_or_b32 v{PB}, v{PB}, v{PB+3}", R("v", PB, 4), R("v", PB)))
    o += [nop(0), valu(f"v_readfirstlane_b32 s{sT}, v{PB}", R("v", PB), set())]
    return chain(o)

def setup(cfg):
    L = []
    A = L.append
    eb, xb = cfg.ebit, 1 - cfg.ebit
    A("s_cmp_ge_u32 s2, 256"); A("s_cbranch_scc1 L_end")
    A("s_load_dwordx4 s[4:7], s[0:1], 0"); A("s_load_dwordx4 s[8:11], s[0:1], 16")
    if cfg.stamps:
        A(f"s_load_dwordx2 s[58:59], s[0:1], {32 if cfg.dbg else 40}")
        A(f"s_memrealtime s[{sST}:{sST+1}]"); A(f"s_memtime s[{sST+4}:{sST+5}]")
    A("v_lshrrev_b32 v16, 6, v0"); A("v_and_b32 v17, 63, v0")
    A(f"v_readfirstlane_b32 s{sW}, v16")
    A(f"v_lshlrev_b32 v{vLin}, 4, v17")
    if cfg.cpf:
        A("s_getpc_b64 s[48:49]"); A("L_pc:")
        A("s_add_u32 s48, s48, L_start-L_pc"); A("s_addc_u32 s49, s49, 0")
        A("s_lshr_b32 s50, s2, 3"); A("s_and_b32 s50, s50, 3"); A("s_lshl_b32 s50, s50, 15")
        A("v_lshl_add_u32 v28, v0, 7, s50"); A("v_min_u32 v28, L_end-L_start, v28")
        A("v_mov_b32 v29, s49"); A("v_add_co_u32 v28, vcc, s48, v28"); A("s_nop 1"); A("v_addc_co_u32 v29, vcc, 0, v29, vcc")
        A("global_load_dword v30, v[28:29], off")
    A("v_lshrrev_b32 v18, 4, v17")
    A("v_and_b32 v19, 7, v17")
    A("v_bfe_u32 v20, v17, 3, 1")
    A(f"v_bfe_u32 v24, v16, {eb}, 1"); A(f"v_bfe_u32 v25, v16, {xb}, 1")
    A(f"v_lshlrev_b32 v{vK0}, 4, v18")
    A(f"v_mul_u32_u24 v21, {PS}, v19"); A("v_lshl_add_u32 v26, v20, 8, v21")
    A(f"v_add_u32 v{vK}, v26, v{vK0}")
    A("v_bfe_u32 v21, v17, 2, 3"); A(f"v_mul_u32_u24 v21, {PS}, v21"); A("v_lshrrev_b32 v22, 5, v17"); A("v_lshl_add_u32 v21, v22, 8, v21")
    A("v_and_b32 v23, 3, v17"); A("v_lshl_add_u32 v21, v23, 3, v21"); A(f"v_add_u32 v{vV}, {VB}, v21")
    A(f"v_lshl_add_u32 v{vDma}, v16, 11, v{vLin}")
    A(f"v_mul_u32_u24 v27, {2*TS}, v16"); A(f"v_add_u32 v27, {QB}, v27"); A(f"v_add_u32 v{vQ}, v27, v{vK}")
    A(f"v_lshl_add_u32 v21, v25, 9, v{vK}"); A(f"v_add_u32 v{vQx}, {QB + 8*TS}, v21")
    A("v_xor_b32 v21, v22, v20"); A("v_lshl_add_u32 v21, v21, 4, v26"); A("v_and_b32 v23, 1, v18"); A("v_lshl_add_u32 v21, v23, 3, v21")
    A(f"v_add_u32 v{vOw}, v27, v21")
    A("v_lshl_add_u32 v21, v25, 9, v21"); A("v_lshl_add_u32 v21, v24, 7, v21"); A(f"v_add_u32 v{vOxw}, {QB + 8*TS}, v21")
    A(f"v_and_b32 v21, 31, v17"); A("v_lshlrev_b32 v21, 4, v21"); A(f"v_lshl_add_u32 v{vOg}, v22, 12, v21")
    A("v_lshlrev_b32 v23, 4, v23"); A("v_xor_b32 v21, v23, v21"); A(f"v_mul_u32_u24 v23, {4*PS}, v22"); A(f"v_add3_u32 v{vOr2}, v21, v23, v27")
    A(f"v_xor_b32 v21, v19, v20"); A("v_lshlrev_b32 v21, 4, v21"); A("v_lshl_add_u32 v21, v20, 8, v21"); A(f"v_mul_u32_u24 v23, {PS}, v18"); A("v_add_u32 v21, v21, v23")
    A("v_lshl_add_u32 v21, v25, 9, v21"); A("v_lshl_add_u32 v21, v24, 7, v21"); A(f"v_add_u32 v{vOxr}, {QB + 8*TS}, v21")
    A("v_lshlrev_b32 v21, 4, v19"); A("v_lshl_add_u32 v21, v20, 8, v21"); A("v_lshl_add_u32 v21, v18, 10, v21")
    A("v_lshl_add_u32 v21, v25, 9, v21"); A(f"v_lshl_add_u32 v{vOxg}, v24, 7, v21")
    A(f"v_lshl_add_u32 v21, v16, 12, v{vLin}"); A(f"v_add_u32 v{vXw}, {XB}, v21")
    A(f"v_xor_b32 v21, {0x1000 << eb}, v21"); A(f"v_add_u32 v{vXr}, {XB}, v21")
    A(f"v_lshlrev_b32 v21, 2, v0"); A(f"v_add_u32 v{vXl}, {XLB}, v21"); A(f"v_xor_b32 v{vXlr}, {256 << eb}, v{vXl}")
    A(f"v_lshlrev_b32 v21, 2, v16"); A(f"v_add_u32 v{vFl}, {FB}, v21")
    A(f"v_mov_b32 v{vT1}, 0x80008000")
    A(f"v_mov_b32 v21, 0x3f803f80")
    if cfg.ones4: A("v_and_b32 v22, 3, v17"); A("v_cmp_eq_u32 vcc, 0, v22"); A("s_nop 1"); A("v_cndmask_b32 v21, 0, v21, vcc")
    for i in range(4): A(f"v_accvgpr_write_b32 a{aONE+i}, v21")
    for i in range(10): A(f"v_accvgpr_write_b32 a{aSV+i}, 0")
    A(f"s_mov_b32 s{sC}, {C_SCALE:#x}"); A(f"s_mov_b32 s{sC+1}, {C_SCALE:#x}"); A(f"s_mov_b32 s{sTHR}, {THR:#x}")
    A(f"s_mov_b32 s{sHI}, 0xffff0000"); A(f"s_mov_b32 s{sMODE}, -1")
    A(f"s_mul_i32 s{sM0}, s{sW}, {2*PS}")
    if cfg.trace: A("s_mov_b32 s98, 0"); A("s_memrealtime s[94:95]"); A("s_memtime s[96:97]")
    if cfg.adj: A(f"s_lshl_b32 s{sT}, s2, 1")
    else: A(f"s_mov_b32 s{sT}, s2")
    A(f"s_mul_i32 s{sOA}, s{sT}, 73728"); A(f"s_lshl_b32 s{sKVA}, s{sT}, 18")
    A(f"s_mul_i32 s{sT}, s{sW}, 18432"); A(f"s_add_u32 s{sT}, s{sT}, s{sOA}")
    A("s_waitcnt lgkmcnt(0)")
    for d, p, n in ((sKS, 6, 134217728), (sVS, 8, 134217728), (sOS, 10, 37748736)):
        A(f"s_mov_b32 s{d}, s{p}"); A(f"s_mov_b32 s{d+1}, s{p+1}"); A(f"s_mov_b32 s{d+2}, {n}"); A(f"s_mov_b32 s{d+3}, 0x20000")
    A(f"s_add_u32 s{sQA}, s4, s{sT}"); A(f"s_addc_u32 s{sQA+1}, s5, 0"); A(f"s_mov_b32 s{sQA+2}, 18432"); A(f"s_mov_b32 s{sQA+3}, 0x20000")
    A(f"s_add_u32 s{sQB_}, s{sQA}, {73728 * (1 if cfg.adj else 256)}"); A(f"s_addc_u32 s{sQB_+1}, s{sQA+1}, 0"); A(f"s_mov_b32 s{sQB_+2}, 18432"); A(f"s_mov_b32 s{sQB_+3}, 0x20000")
    return L

def issue_op(cfg, op):
    if op[0] == "Q":
        j = op[1]
        r = [salu(f"s_mov_b32 s{sQOFF}, {1024*j}")] if j % 4 == 0 else []
        return r + [I(f"buffer_load_dwordx4 {rs('v',OB+4*j,4)}, v{vLin}, s[{sQA}:{sQA+3}], s{sQOFF} offen{off(1024*(j&3))} {cfg.nt}", "vld",
                      rd=R("v", vLin), wr=R("v", OB + 4 * j, 4), tag=("Ql", 0, j))]
    kv, T, j = op
    m0, ld = dma(cfg, kv, T, j)
    return ([kv_step(cfg, T)] if (kv == "K" and j == 0 and T) else []) + [m0, nop(0), ld]
def prologue(cfg):
    o = stamp(cfg, 4, True)
    o.append(salu(f"s_mov_b32 s{sKV}, s{sKVA}"))
    ops = initial_ops(cfg)
    issue = lambda op: issue_op(cfg, op)
    nxt = 2 + cfg.W
    for op in ops[:nxt]: o += issue(op)
    hb = 73728 * (1 if cfg.adj else 256)
    o.append(salu(f"s_mul_i32 s{sT}, s{sW}, {18*PS}")); o.append(salu(f"s_add_u32 s{sT}, s{sT}, {QB}"))
    o.append(valu(f"v_add_u32 v{vQw}, s{sT}, v{vLin}", R("v", vLin), R("v", vQw)))
    o.append(valu(f"v_bfe_u32 v{vT0}, v{vLin}, 8, 1", R("v", vLin), R("v", vT0)))
    o.append(valu(f"v_lshlrev_b32 v{vT0}, 4, v{vT0}", R("v", vT0), R("v", vT0)))
    o.append(valu(f"v_xor_b32 v{vT0}, v{vT0}, v{vLin}", R("v", vT0) | R("v", vLin), R("v", vT0)))
    o.append(valu(f"v_add_u32 v{vOr}, s{sT}, v{vT0}", R("v", vT0), R("v", vOr)))
    o.append(salu(f"s_mul_i32 s{sT}, s{sW}, 18432")); o.append(salu(f"s_add_u32 s{sOOFF}, s{sT}, s{sOA}"))
    o.append(salu(f"s_lshl_b32 s{sT}, s{sW}, 14")); o.append(salu(f"s_add_u32 s{sO1}, s{sT}, s{sOA}")); o.append(salu(f"s_add_u32 s{sO1}, s{sO1}, {hb}"))
    o.append(salu(f"s_add_u32 s{sO1X}, s{sOA}, {hb + 65536}"))
    o.append(valu(f"v_mov_b32 v{vG}, 0", set(), R("v", vG)))
    for q in range(5):
        for r in range(4): o.append(negm_init(0, q, r))
    for j in range(18):
        o.append(wait(vm=[("Ql", 0, j)]))
        if j in (0, 8, 17): o += stamp(cfg, {0: 5, 8: 6, 17: 7}[j], True)
        if nxt < len(ops): o += issue(ops[nxt])
        nxt += 1
        for r in range(4): o += scale_reg(OB + 4 * j + r, TSC + 2 * r, True)
        o.append(dsw(4, vQw, OB + 4 * j, PS * j, ("Qw", 0), ("w", "QO", ("Q", 0))))
    assert nxt == 20 + cfg.W and cfg.W >= 2
    o.append(salu(f"s_mov_b32 s{sQOFF}, 0"))
    o.append(wait(vm=[("K", 0)], lg=[("Qw", 0)])); o.append(bar())
    o += stamp(cfg, 8, True)
    for s in range(4): o.append(k0read(0, s))
    return o

def prologue2(cfg, e):
    U = units(e)
    o = []
    for n in range(2):
        for s in range(4): o.append(qread(0, U[n][1], s))
    for op in initial_ops(cfg)[20 + cfg.W: 20 + cfg.W + cfg.W2]: o += issue_op(cfg, op)
    o.append(wait(lg=[("K0r", 0)]))
    for kb in range(2):
        for s in range(4): o.append(kread(0, kb, s))
    for i in range(16): o.append(k0neg(i))
    o.append(wait(lg=[("Qr", 0, U[0][1]), ("Qr", 0, U[1][1])]))
    late = [qread(0, U[n][1], s) for n in range(2, 5) for s in range(4)]
    for n in range(2):
        for s in range(4):
            o.append(negm_mfma(U[n][1], s)); o += late[:2]; late = late[2:]
    o.append(wait(vm=[("V", 0)], lg=[("Kr", 0), ("Qr", 0)])); o.append(bar())
    o += stamp(cfg, 9, True)
    return o

def fallback(cfg):
    L = []; A = L.append
    xb = 1 - cfg.ebit
    A("s_waitcnt vmcnt(0) lgkmcnt(0)"); A("s_barrier")
    A(f"s_mov_b32 s{sMODE}, 0")
    A("v_and_b32 v16, 63, v0"); A("v_lshrrev_b32 v17, 4, v16")
    A("v_and_b32 v18, 7, v16"); A("v_bfe_u32 v19, v16, 3, 1"); A("v_lshl_add_u32 v18, v18, 2, v19")
    A("v_lshlrev_b32 v18, 8, v18"); A("v_lshl_add_u32 v18, v17, 4, v18")
    A("v_and_b32 v19, 15, v16"); A("v_lshlrev_b32 v19, 8, v19"); A("v_lshl_add_u32 v19, v17, 4, v19")
    A(f"s_mov_b32 s{sT+4}, s4"); A(f"s_mov_b32 s{sT+5}, s5"); A(f"s_mov_b32 s{sT+6}, 37748736"); A(f"s_mov_b32 s{sT+7}, 0x20000")
    for h in range(2):
        hq = 73728 * (1 if cfg.adj else 256) * h; hk = 262144 * (1 if cfg.adj else 256) * h
        for q in range(5):
            if q < 4:
                A(f"s_lshl_b32 s{sT}, s{sW}, 14"); A(f"s_add_u32 s{sT}, s{sT}, {hq + (q >> 1) * 8192 + (q & 1) * 512}")
            else:
                A(f"s_bfe_u32 s{sT}, s{sW}, {0x10000 + xb:#x}"); A(f"s_lshl_b32 s{sT}, s{sT}, 9"); A(f"s_add_u32 s{sT}, s{sT}, {hq + 65536}")
            A(f"s_add_u32 s{sT}, s{sT}, s{sOA}")
            for s in range(4): A(f"buffer_load_dwordx4 {rs('v', OB+16*q+4*s, 4)}, v18, s[{sT+4}:{sT+7}], s{sT} offen{off(64*s)}")
        A("s_waitcnt vmcnt(0)")
        for r in range(80):
            for ins in scale_reg(OB + r, TSC + 2 * (r & 1), True): A(ins.text)
        for i in range(5): A(f"v_mov_b32 v{NEGM+i}, 0xff800000")
        A(f"s_add_u32 s{sT}, s{sKVA}, {hk}"); A(f"s_mov_b32 s{sT+1}, 64")
        A(f"L_fb{h}:")
        for s in range(4): A(f"buffer_load_dwordx4 {rs('v', SB+4*s, 4)}, v19, s[{sKS}:{sKS+3}], s{sT} offen{off(64*s)}")
        A("s_waitcnt vmcnt(0)")
        for q in range(5):
            for s in range(4): A(mfma("v", 192 + 4 * q, "v", SB + 4 * s, "v", OB + 16 * q + 4 * s, None if s == 0 else 192 + 4 * q).text)
        A("s_nop 7"); A("s_nop 1")
        for q in range(5):
            A(f"v_max3_f32 v{NEGM+q}, v{NEGM+q}, v{192+4*q}, v{193+4*q}"); A(f"v_max3_f32 v{NEGM+q}, v{NEGM+q}, v{194+4*q}, v{195+4*q}")
        A(f"s_add_u32 s{sT}, s{sT}, 4096"); A(f"s_sub_u32 s{sT+1}, s{sT+1}, 1"); A(f"s_cmp_lg_u32 s{sT+1}, 0"); A(f"s_cbranch_scc1 L_fb{h}")
        for x in (16, 32):
            A(f"v_xor_b32 v20, {x}, v16"); A("v_lshlrev_b32 v20, 2, v20")
            for q in range(5): A(f"ds_bpermute_b32 v{SB+q}, v20, v{NEGM+q}")
            A("s_waitcnt lgkmcnt(0)")
            for q in range(5): A(f"v_max_f32 v{NEGM+q}, v{NEGM+q}, v{SB+q}")
        for q in range(5): A(f"v_xor_b32 v{NEGM+q}, 0x80000000, v{NEGM+q}")
        for q in range(5): A(f"v_accvgpr_write_b32 a{aSV+5*h+q}, v{NEGM+q}")
    A("s_nop 1")
    A("s_branch L_start")
    return L

def match(tag, want): return isinstance(tag, tuple) and any(tag[:len(w)] == w for w in want)
def resolve(tr):
    vm = []; lg = []; vdone = 0; ldone = 0; pend = {}; epoch = 0; ev = []
    for k, ins in enumerate(tr): ins.idx = k
    for ins in tr:
        for a in ins.after: assert a.idx < ins.idx, f"order: {a.text} must precede {ins.text}"
        for r in ins.rd | ins.wr:
            if r in pend:
                c, idx = pend[r]
                assert idx < (vdone if c == "vm" else ldone), f"unwaited load of {r} at {ins.text} ({ins.idx})"
                del pend[r]
        if ins.kind == "wait":
            ins.nvm = ins.nlg = None
            v0, l0 = vdone, ldone
            for want, lst, mx, c in ((ins.vm, vm, 63, "vm"), (ins.lg, lg, 14, "lg")):
                if not want: continue
                idx = next((i for i in range(len(lst) - 1, -1, -1) if match(lst[i].tag, want)), -1)
                if idx < 0: continue
                n = min(len(lst) - 1 - idx, mx)
                if c == "vm": ins.nvm = n; vdone = max(vdone, len(lst) - n)
                else: ins.nlg = n; ldone = max(ldone, len(lst) - n)
            for x in vm[v0:vdone] + lg[l0:ldone]: x.edone = epoch
        elif ins.kind == "bar": epoch += 1
        elif ins.kind in ("dma", "vld", "vst"):
            vm.append(ins)
            assert len(vm) - vdone <= 62
            for r in ins.wr: pend[r] = ("vm", len(vm) - 1)
        elif ins.kind in ("dsr", "dsw"):
            lg.append(ins)
            for r in ins.wr: pend[r] = ("lg", len(lg) - 1)
        if ins.lds: ins.eissue = epoch; ev.append(ins)
    return epoch, ev
def check_lds(evs):
    INF = 10 ** 9
    def before(a, b, msg): assert max(getattr(x, "edone", INF) for x in a) < min(x.eissue for x in b), msg
    reg = {}
    for ev in evs:
        for x in ev: reg.setdefault(x.lds[1], {}).setdefault(x.lds[2], {"r": [], "w": []})[x.lds[0]].append(x)
    for r, cont in reg.items():
        if r == "QO": continue
        order = sorted(cont, key=lambda c: min(x.eissue for x in cont[c]["w"]))
        for i, c in enumerate(order):
            before(cont[c]["w"], cont[c]["r"], f"LDS RAW {r} {c}")
            if i + 1 < len(order): before(cont[c]["r"] + cont[c]["w"], cont[order[i + 1]]["w"], f"LDS WAR {r} {c}")
    c = reg["QO"]
    for h in range(2): before(c[("Q", h)]["w"], c[("Q", h)]["r"], "Q RAW")
    before(c[("Q", 0)]["r"], c[("Q", 1)]["w"], "Q0->Q1")
    before([x for x in c[("Q", 1)]["r"] if x.lds[3] == X], [x for x in c[("O", 0)]["w"] if x.lds[3] == X], "Q1x->O0x")
    before(c[("O", 0)]["w"], c[("O", 0)]["r"], "O0 RAW")
    before(c[("O", 0)]["r"], c[("O", 1)]["w"], "O0->O1")
    for ev in evs:
        for q in range(5):
            sel = lambda m, cc: [x.idx for x in ev if x.lds[1] == "QO" and x.lds[0] == m and x.lds[2] == cc and len(x.lds) > 3 and x.lds[3] == q]
            assert max(sel("r", ("Q", 1))) < min(sel("w", ("O", 0))) and max(sel("w", ("O", 1))) < min(sel("r", ("O", 1)))
def check_hazards(tr):
    seq = [x for x in tr if x.kind != "label"]
    def ws(x): return x.tag + 1 if x.kind == "nop" else 1
    for i, c in enumerate(seq):
        d = 0
        for j in range(i - 1, max(-1, i - 12), -1):
            p = seq[j]; need = 0
            isv = c.kind in ("valu", "trans"); mem = c.kind in ("dsr", "dsw", "dma", "vld", "vst")
            if p.kind == "mfma":
                if (isv or mem) and p.wr & (c.rd | c.wr): need = 8
                if c.kind == "mfma":
                    if p.wr & (c.rd - c.srcc): need = 8
                    if p.wr & c.srcc and p.wr != c.srcc: need = 6
                if isv and p.srcc & c.wr: need = max(need, 3)
            if p.kind in ("valu", "trans") and c.kind == "mfma" and p.wr & c.rd: need = 2
            if p.kind == "trans" and c.kind == "valu" and p.wr & c.rd: need = 1
            if p.kind == "salu" and c.kind == "dma" and ("s", "m0") in p.wr: need = 1
            if p.kind == "vst" and (p.rd & c.wr): need = 2
            if p.kind in ("valu", "trans") and "readfirstlane" in c.text and p.wr & c.rd: need = 1
            assert d >= need, f"hazard: {p.text} -> {c.text} needs {need}, has {d}"
            d += ws(p)
def check_values(tr):
    state = {}
    for x in tr:
        for r in x.rd:
            if r in state: state[r] = (state[r][0], True)
        for r in x.wr:
            if r in state and not state[r][1] and r[0] in "va" and r not in x.rd:
                p = state[r][0]
                dead_ok = (p.kind == "mfma" and r[0] == "a") or (match(p.tag, [("Ql", 1)]) and p.tag[2] >= 18)
                assert dead_ok, f"value of {r} from '{p.text}' overwritten unread by '{x.text}'"
            state[r] = (x, False)

def build(cfg):
    out = ["; GQA softmax attention, B16 H32 Sq288 Sk1024 D128 bf16 (schedule emitted by my own generator script)",
           f"; @launch grid=(256,1,1) block=(256,1,1) lds={LDS_BYTES}",
           '.amdgcn_target "amdgcn-amd-amdhsa--gfx950"', ".text", f".globl {NAME}", ".p2align 8", f".type {NAME},@function", f"{NAME}:"]
    out += setup(cfg)
    out.append("L_start:")
    evs = []; eps = []; texts = []; common = {}
    for e in range(2):
        segs = [("pro", prologue(cfg)), ("pro2", prologue2(cfg, e))]
        st, bounds = main_stream(cfg, e)
        cuts = [bounds[(h, b)] for h in range(2) for b in range(8)] + [len(st.m)]
        for k in range(16): segs.append((divmod(k, 8), st.emit(cuts[k], cuts[k + 1])))
        segs.append(("tail", stamp(cfg, 4) + tail(cfg) + stamp(cfg, 5)))
        tr = [x for _, s in segs for x in s]
        ep, ev = resolve(tr); eps.append(ep); evs.append(ev)
        check_hazards(tr); check_values(tr)
        d = dict(segs)
        for h in range(2):
            b0 = 1 + (cfg.peel if h == 0 else 0)
            ref = d[(h, b0)]
            for b in range(b0 + 1, 7):
                cur = d[(h, b)]
                assert len(cur) == len(ref), (h, b, len(cur), len(ref))
                for x, y in zip(ref, cur):
                    assert x.kind == y.kind and x.text == y.text, (h, b, x.text, y.text)
                    if x.kind == "wait":
                        for a in ("nvm", "nlg"):
                            vals = [v for v in (getattr(x, a), getattr(y, a)) if v is not None]
                            setattr(x, a, min(vals) if vals else None)
        t = []
        for k, s in segs:
            p = [x.render() for x in s]
            if k in ("pro", "tail"):
                assert common.setdefault(k, p) == p; continue
            if isinstance(k, tuple):
                b0 = 1 + (cfg.peel if k[0] == 0 else 0)
                if b0 < k[1] <= 6: continue
                if k[1] == b0: t.append(f"L_m{k[0]}{e}:")
            t += p
        texts.append(t)
    assert eps[0] == eps[1]
    if not cfg.nodma: check_lds(evs)
    out += common["pro"]
    out += [f"s_bitcmp1_b32 s{sW}, {cfg.ebit}", "s_cbranch_scc1 L_odd"]
    out += texts[0] + ["s_branch L_tail", ".p2align 6", "L_odd:"] + texts[1] + ["L_tail:"] + common["tail"]
    if cfg.nodma: out += [f"s_mov_b32 s{sT}, 0"]
    out += ["s_nop 3", f"s_and_b32 s{sT}, s{sT}, s{sMODE}", "s_cbranch_scc1 L_fallback"]
    if cfg.trace:
        out += ["s_waitcnt lgkmcnt(0)", "s_mov_b32 m0, s98", "v_writelane_b32 v38, s94, m0", "v_writelane_b32 v39, s96, m0", f"s_cmp_lg_u32 s{sW}, 0", "s_cbranch_scc1 L_notr",
                f"s_lshl_b32 s{sT}, s2, 9", f"s_add_u32 s{sT}, s{sT}, 0x100000", f"v_lshl_add_u32 v20, v0, 3, s{sT}", "global_store_dwordx2 v20, v[38:39], s[58:59]", "L_notr:"]
    if cfg.stamps:
        n = cfg.stamps
        out += ["s_waitcnt vmcnt(0)", "s_barrier", f"s_memrealtime s[{sST+2}:{sST+3}]", f"s_memtime s[{sST+6}:{sST+7}]", "s_waitcnt lgkmcnt(0)",
                f"s_cmp_lg_u32 s{sW}, 0", "s_cbranch_scc1 L_end", f"s_mul_i32 s{sT}, s2, {n*8}", f"v_mov_b32 v20, s{sT}",
                "v_cmp_eq_u32 vcc, 0, v0", "s_and_saveexec_b64 s[50:51], vcc"]
        if cfg.dbg:
            out += ["s_cmp_ge_u32 s2, 8", "s_cbranch_scc1 L_end", f"s_lshl_b32 s{sT}, s2, 3", f"v_mov_b32 v20, s{sT}",
                    f"s_sub_u32 s{sT}, s{sST+2}, s{sST}", f"v_mov_b32 v22, s{sT}", f"s_sub_u32 s{sT}, s{sST+6}, s{sST+4}", f"v_mov_b32 v23, s{sT}",
                    "global_store_dwordx2 v20, v[22:23], s[58:59]"]
        else:
            if cfg.rt:
                for i in range(4, n):
                    r = sST + 2 * i
                    out += [f"s_sub_u32 s{r}, s{r}, s{sST}", f"s_subb_u32 s{r+1}, s{r+1}, s{sST+1}", f"s_add_u32 s{r}, s{r}, s{sST+4}", f"s_addc_u32 s{r+1}, s{r+1}, s{sST+5}"]
            for i in range(n):
                out += [f"v_mov_b32 v{22+2*i}, s{sST+2*i}", f"v_mov_b32 v{23+2*i}, s{sST+2*i+1}", f"global_store_dwordx2 v20, v[{22+2*i}:{23+2*i}], s[58:59] offset:{8*i}"]
    out += ["L_end:", "s_endpgm", "L_fallback:"] + fallback(cfg)
    out += ['.section .rodata,"a"', ".p2align 6", f".amdhsa_kernel {NAME}",
            "  .amdhsa_next_free_vgpr 512", "  .amdhsa_next_free_sgpr 102", "  .amdhsa_accum_offset 256",
            "  .amdhsa_group_segment_fixed_size 0", "  .amdhsa_kernarg_size 48", "  .amdhsa_user_sgpr_count 2",
            "  .amdhsa_user_sgpr_kernarg_segment_ptr 1", "  .amdhsa_system_sgpr_workgroup_id_x 1", ".end_amdhsa_kernel"]
    return "\n".join(out) + "\n"

def parse(args):
    kw = {}
    for a in args:
        k, v = a.split("=", 1)
        kw[k] = int(v) if re.fullmatch(r"-?\d+", v) else v.replace("+", " ")
    return Cfg(**kw)
if __name__ == "__main__":
    s = build(parse(sys.argv[2:]))
    open(sys.argv[1], "w").write(s)
    print(sys.argv[1], len(s), "bytes", s.count("\n"), "lines")
```

```python
import sys, re, math, struct

NAME = "standalone__gqa_softmax__near_ridge_kernel"

PS = 1056
TS = 8 * PS
KB = 0
VB = 4 * TS
QB = 8 * TS
XB = 17 * TS
XLB = (XB + 16384 + 1023) // 1024 * 1024
FB = XLB + 1024
LDS_BYTES = 163840
assert FB + 16 <= LDS_BYTES

vK, vV, vLin, vAux, vG, vQ, vOw, vOr2, vOg, vT0, vLx, vLp, vTR0 = range(1, 14)
vRC = 14; vTR1 = 15
T16 = 16
TSC = 32
NEGM = 36
SB = 56
PB = 80
OB = 96
aQ = 0; aK = 80; aV = 144; aL = 208; aONE = 228; aSV = 232
aQx, aK0, aSGN, aXw, aXr, aXl, aXlr, aOxw, aOxr, aOxg, aFl = range(242, 253)
X = 4

sW = 3
sKS, sVS, sQA, sQB_, sOS = 12, 16, 20, 24, 28
sKV, sM0, sCNT, sQOFF, sOOFF = 32, 33, 34, 35, 36
sC = 38
sTHR, sMODE = 40, 41
sO1 = 42
sO1X = 43
sHI = 45
sQG, sQX = 46, 47
sT = 48
sOA = 56
sKVA = 57
sST = 60

def f32bits(x): return struct.unpack("<I", struct.pack("<f", x))[0]
C_SCALE = f32bits(math.log2(math.e) / math.sqrt(128.0))
THR = f32bits(2.0 ** 40)

def R(c, n, k=1): return {(c, n + i) for i in range(k)}
def rs(c, n, k=1): return f"{c}{n}" if k == 1 else f"{c}[{n}:{n+k-1}]"

class I:
    def __init__(s, text, kind, rd=(), wr=(), srcc=(), tag=None, vm=None, lg=None, lds=None):
        s.text, s.kind, s.rd, s.wr, s.srcc = text, kind, set(rd), set(wr), set(srcc)
        s.tag, s.vm, s.lg, s.lds = tag, vm, lg, lds
        s.nvm = s.nlg = None; s.after = []
    def render(s):
        if s.kind == "wait":
            p = []
            if s.nvm is not None: p.append(f"vmcnt({s.nvm})")
            if s.nlg is not None: p.append(f"lgkmcnt({s.nlg})")
            return "s_waitcnt " + " ".join(p) if p else "s_nop 0"
        return s.text
def chain(lst):
    for a, b in zip(lst, lst[1:]): b.after.append(a)
    return lst

def mfma(dc, d, ac, a, bc, b, c):
    ct = "0" if c is None else rs(dc, c, 4)
    cr = set() if c is None else R(dc, c, 4)
    return I(f"v_mfma_f32_16x16x32_bf16 {rs(dc,d,4)}, {rs(ac,a,4)}, {rs(bc,b,4)}, {ct}", "mfma",
             rd=R(ac, a, 4) | R(bc, b, 4) | cr, wr=R(dc, d, 4), srcc=cr)
def valu(text, rd, wr, kind="valu"): return I(text, kind, rd=rd, wr=wr)
def salu(text, wr=()): return I(text, "salu", wr=wr)
def wait(vm=None, lg=None): return I("", "wait", vm=vm, lg=lg)
def bar(): return I("s_barrier", "bar")
def nop(n): return I(f"s_nop {n}", "nop", tag=n)
def label(n): return I(f"{n}:", "label")
def off(o): return f" offset:{o}" if o else ""
def dsr128(dc, d, addr, o, tag, lds): return I(f"ds_read_b128 {rs(dc,d,4)}, v{addr}{off(o)}", "dsr", rd=R("v", addr), wr=R(dc, d, 4), tag=tag, lds=lds)
def dsrtr(dc, d, addr, o, tag, lds): return I(f"ds_read_b64_tr_b16 {rs(dc,d,2)}, v{addr}{off(o)}", "dsr", rd=R("v", addr), wr=R(dc, d, 2), tag=tag, lds=lds)
def dsw(n, addr, src, o, tag, lds):
    return I(f"ds_write_b{32*n} v{addr}, {rs('v',src,n)}{off(o)}", "dsw", rd=R("v", addr) | R("v", src, n), tag=tag, lds=lds)

class Cfg:
    W = 6
    nt = "nt"
    snt = "sc0 sc1"
    adj = 0
    BK = 114
    BV = 5
    BF = 74
    kd0 = 50
    kd1 = 82
    vd0 = 80
    vd1 = 112
    sw = 14
    qpk = 0
    k20 = 100
    eshift = 4
    ebit = 0
    ones4 = 1
    cpf = 1
    pk = 1
    opat = 'o030'
    soft = 0
    pairF = 0
    stamps = 0
    rt = 0
    pst = 0
    trace = 0
    dbg = 0
    nodma = 0
    def __init__(s, **kw):
        for k, v in kw.items():
            assert hasattr(Cfg, k), k
            setattr(s, k, v)

QUADS = {"hold": 1, "holdm": 3, "pk": 9, "salu": 1, "wait": 1, "bar": 1, "nop": 1, "valu": 1, "trans": 2, "dsr": 2, "dsw": 3, "dma": 3, "vld": 3, "vst": 3}
ORDER = {"hold": 0, "holdm": 1, "pk": 2, "salu": 0, "wait": 0, "bar": 0, "nop": 0, "dsr": 1, "dsw": 1, "dma": 1, "vld": 1, "vst": 1, "valu": 2, "trans": 2}
class Stream:
    def __init__(s):
        s.m = []; s.g = []; s.pos = {}; s.flip = set()
    def add(s, ins, key=None):
        if key is not None: s.pos[key] = len(s.m)
        s.m.append(ins); s.g.append([])
    def fits(s, i, ins, two_ds=False):
        g = s.g[i] + [ins]
        nds = sum(x.kind == "dsr" for x in g)
        if nds > (2 if two_ds else 1): return False
        q = sum(QUADS[x.kind] for x in g) - (1 if nds == 2 else 0)
        v = sum(QUADS[x.kind] for x in g if x.kind in ("valu", "trans"))
        return q <= 3 and v <= 2
    def put(s, i, ins): s.g[i].append(ins); return i
    def place(s, ins, lo, hi, pref=None):
        if pref:
            for i in range(lo, hi + 1):
                if pref(s.g[i]) and s.fits(i, ins): return s.put(i, ins)
        for i in range(lo, hi + 1):
            if s.fits(i, ins): return s.put(i, ins)
        for i in range(lo, hi + 1):
            if s.fits(i, ins, True): return s.put(i, ins)
        raise RuntimeError(f"cannot place {ins.text} in [{lo},{hi}]")
    def late(s, ins, lo, hi):
        for i in range(hi, lo - 1, -1):
            if s.fits(i, ins): return s.put(i, ins)
        return s.put(hi, ins)
    def spread(s, lst, lo, hi, asap=False):
        lst = [x if isinstance(x, tuple) else (x, 0) for x in lst]
        chain([x for x, _ in lst])
        n = sum(x.kind != "pk" for x, _ in lst); cur = lo; npk = 0
        dm = [max(d, 1) if k and ORDER[x.kind] < ORDER[lst[k - 1][0].kind] else d for k, (x, d) in enumerate(lst)]
        for k, (ins, _) in enumerate(lst):
            a = cur + dm[k]
            lim = hi - sum(dm[k + 1:])
            assert a <= lim, f"spread overflow {ins.text} {a} > {lim}"
            tgt = min(lim, max(a, lo + ((k - npk) * (hi - lo + 1)) // n))
            if asap: tgt = lim
            if ins.kind == "pk": s.put(a, ins); cur = a; npk += 1; continue
            i = next((j for j in range(a, tgt + 1) if s.fits(j, ins)), None)
            if i is None:
                i = tgt
                if ORDER[ins.kind] == 1:
                    i = next((j for j in range(tgt, min(tgt + 3, lim) + 1) if not any(ORDER[y.kind] == 1 for y in s.g[j])), tgt)
            s.put(i, ins); cur = i
        return cur
    def srt(s, i):
        if any(getattr(x, "inorder", False) for x in s.g[i]): return list(s.g[i])
        if i in s.flip: return sorted(s.g[i], key=lambda x: {0: 0, 1: 2, 2: 1}[ORDER[x.kind]])
        return sorted(s.g[i], key=lambda x: ORDER[x.kind])
    def emit(s, lo, hi):
        out = []
        if lo > 0: out += [x for x in s.srt(lo - 1) if ORDER[x.kind] > 0]
        for i in range(lo, hi):
            if s.m[i] is not None: out.append(s.m[i])
            out += [x for x in s.srt(i) if i < hi - 1 or hi == len(s.m) or ORDER[x.kind] == 0]
        return out

def dma(cfg, kv, S, j):
    base = (KB if kv == "K" else VB) + (S & 1) * 2 * TS + j * (PS - 1024)
    srd = sKS if kv == "K" else sVS
    return [salu(f"s_add_u32 m0, s{sM0}, {base}", wr={("s", "m0")}),
            I(f"buffer_load_dwordx4 v{vLin}, s[{srd}:{srd+3}], s{sKV} offen{off(1024*j)} {cfg.nt} lds", "dma",
              rd=R("v", vLin) | {("s", "m0")}, tag=(kv, S, j), lds=("w", (kv, S & 1), (kv, S)))]
def kv_step(cfg, S):
    d = 16384
    if S == 16 and not cfg.adj: d = 16384 + 255 * 262144
    return salu(f"s_add_u32 s{sKV}, s{sKV}, {d}")
def kread(e, S, r, kb, s): return dsr128("a", aK + 32 * r + 16 * kb + 4 * s, vK, (2 * (S & 1) + (e ^ r)) * TS + 512 * kb + 64 * s, ("Kr", S, r), ("r", ("K", S & 1), ("K", S)))
def vread(e, S, r, dt, kb): return dsrtr("a", aV + 32 * r + 4 * dt + 2 * kb, vV, (2 * (S & 1) + (e ^ r)) * TS + 512 * kb + 32 * dt, ("Vr", S, r, dt >> 2), ("r", ("V", S & 1), ("V", S)))
def qoff(q): return (q >> 1) * TS + (q & 1) * 512
def unpark(v, a): return valu(f"v_accvgpr_read_b32 v{v}, a{a}", R("a", a), R("v", v))
def qreads(h, q):
    if q == X: return [unpark(TSC, aQx)] + [dsr128("a", aQ + 16 * q + 4 * s, TSC, 64 * s, ("Qr", h, q), ("r", "QO", ("Q", h), q)) for s in range(4)]
    return [dsr128("a", aQ + 16 * q + 4 * s, vQ, qoff(q) + 64 * s, ("Qr", h, q), ("r", "QO", ("Q", h), q)) for s in range(4)]
def k0reads(h): return [unpark(TSC + 2, aK0), unpark(TSC + 3, aSGN)] + [dsr128("v", T16 + 4 * s, TSC + 2, 64 * s, ("K0r", h), ("r", ("K", 0), ("K", 16 * h))) for s in range(4)]
def k0neg(i): return valu(f"v_bitop3_b32 v{T16+i}, v{T16+i}, v{TSC+3}, s{sMODE} bitop3:0x28", R("v", T16 + i) | R("v", TSC + 3), R("v", T16 + i))
def negm_init(h, q, r): return valu(f"v_accvgpr_read_b32 v{NEGM+4*q+r}, a{aSV+5*h+q}", R("a", aSV + 5 * h + q), R("v", NEGM + 4 * q + r))
def negm_mfma(q, s): return mfma("v", NEGM + 4 * q, "v", T16 + 4 * s, "a", aQ + 16 * q + 4 * s, NEGM + 4 * q)
def scale_reg(src, t, packed):
    o = [valu(f"v_lshlrev_b32 v{t}, 16, v{src}", R("v", src), R("v", t)),
         valu(f"v_and_b32 v{t+1}, s{sHI}, v{src}", R("v", src), R("v", t + 1))]
    if packed:
        o.append(valu(f"v_pk_mul_f32 v[{t}:{t+1}], v[{t}:{t+1}], s[{sC}:{sC+1}]", R("v", t, 2), R("v", t, 2)))
    else:
        o.append(valu(f"v_mul_f32 v{t}, s{sC}, v{t}", R("v", t), R("v", t)))
        o.append(valu(f"v_mul_f32 v{t+1}, s{sC}, v{t+1}", R("v", t + 1), R("v", t + 1)))
    o.append(valu(f"v_cvt_pk_bf16_f32 v{src}, v{t}, v{t+1}", R("v", t, 2), R("v", src)))
    return o
def scale_piece(src, t):
    c = [scale_reg(src + r, t + 2 * r, True) for r in range(4)]
    return [x for r in range(4) for x in c[r][:2]] + [c[r][2] for r in range(4)] + [c[r][3] for r in range(4)]
def stamp(cfg, k, pro=False):
    if bool(cfg.pst) != pro: return []
    op = "s_memrealtime" if cfg.rt else "s_memtime"
    return [I(f"{op} s[{sST+2*k}:{sST+2*k+1}]", "salu")] if cfg.stamps > k else []
def ostore(cfg, buf, voff, soff, o, tag):
    return I(f"buffer_store_dwordx4 {rs('v',buf,4)}, v{voff}, s[{sOS}:{sOS+3}], s{soff} offen{off(o)} {cfg.snt}", "vst", rd=R("v", voff) | R("v", buf, 4), tag=tag)

def muls(b, n, packed):
    if packed: return [valu(f"v_pk_mul_f32 v[{b+k}:{b+k+1}], v[{b+k}:{b+k+1}], v[{vRC}:{vRC+1}] op_sel_hi:[1,0]", R("v", b + k, 2) | R("v", vRC), R("v", b + k, 2), "pk") for k in range(0, n, 2)]
    return [valu(f"v_mul_f32 v{b+k}, v{vRC}, v{b+k}", R("v", b + k) | R("v", vRC), R("v", b + k)) for k in range(n)]
def cvts(b): return [valu(f"v_cvt_pk_bf16_f32 v{b}, v{b}, v{b+1}", R("v", b, 2), R("v", b)), valu(f"v_cvt_pk_bf16_f32 v{b+1}, v{b+2}, v{b+3}", R("v", b + 2, 2), R("v", b + 1))]
def q_head(q):
    return [valu(f"v_accvgpr_read_b32 v{vT0}, a{aL+4*q}", R("a", aL + 4 * q), R("v", vT0)),
            valu(f"v_rcp_f32 v{vRC}, v{vT0}", R("v", vT0), R("v", vRC), "trans"),
            valu(f"v_add_f32 v{vG}, v{vG}, v{vT0}", R("v", vG) | R("v", vT0), R("v", vG))]
def q_stage(h, q, packed):
    o = muls(OB + 32 * q, 32, True) if packed else []
    for dt in range(8):
        b = OB + 32 * q + 4 * dt
        o += ([] if packed else muls(b, 4, False)) + cvts(b) + [dsw(2, vOw, b, qoff(q) + 32 * dt, ("Ow", h), ("w", "QO", ("O", h), q))]
    return o
def q_out(cfg, q, lat=8):
    b = OB + 32 * q
    o = [dsr128("v", b + 4 * i, vOr2, qoff(q) + i * PS, ("Op", q, i), ("r", "QO", ("O", 1), q)) for i in range(4)]
    if q == 2: o.append(salu(f"s_add_u32 s{sO1}, s{sO1}, 8192"))
    for i in range(4):
        o += [(wait(lg=[("Op", q, i)]), lat if i == 0 else 0), ostore(cfg, b + 4 * i, vOg, sO1, 1024 * i + 512 * (q & 1), ("Os", 1))]
    return o
def x_send(e, h):
    o = [unpark(TSC, aXw), unpark(TSC + 1, aXl), valu(f"v_accvgpr_read_b32 v{vLx}, a{aL+4*X}", R("a", aL + 4 * X), R("v", vLx))]
    o += [dsw(4, TSC, OB + 32 * X + 16 * (1 - e) + 4 * i, 1024 * i, ("Xw", h), ("w", "X", ("X", h))) for i in range(4)]
    o += [dsw(1, TSC + 1, vLx, 0, ("Xw", h), ("w", "X", ("X", h))), unpark(TSC, aXr), unpark(TSC + 1, aXlr)]
    return o
def x_recv(e, h):
    snd = OB + 32 * X + 16 * (1 - e)
    o = [I(f"ds_read_b32 v{vLp}, v{TSC+1}", "dsr", rd=R("v", TSC + 1), wr=R("v", vLp), tag=("Xr", h), lds=("r", "X", ("X", h)))]
    o += [dsr128("v", snd + 4 * i, TSC, 1024 * i, ("Xr", h), ("r", "X", ("X", h))) for i in range(4)]
    return o + [unpark(TSC, aOxw)]
def x_stage(e, h, packed):
    kp = OB + 32 * X + 16 * e; snd = OB + 32 * X + 16 * (1 - e)
    o = [wait(lg=[("Xr", h)]), valu(f"v_add_f32 v{vLx}, v{vLx}, v{vLp}", R("v", vLx, 2), R("v", vLx)),
         valu(f"v_rcp_f32 v{vRC}, v{vLx}", R("v", vLx), R("v", vRC), "trans"),
         valu(f"v_add_f32 v{vG}, v{vG}, v{vLx}", R("v", vG) | R("v", vLx), R("v", vG))]
    if packed:
        o += [valu(f"v_pk_add_f32 v[{kp+k}:{kp+k+1}], v[{kp+k}:{kp+k+1}], v[{snd+k}:{snd+k+1}]", R("v", kp + k, 2) | R("v", snd + k, 2), R("v", kp + k, 2), "pk") for k in range(0, 16, 2)]
        o += muls(kp, 16, True)
    for i in range(4):
        if not packed:
            o += [valu(f"v_add_f32 v{kp+4*i+k}, v{kp+4*i+k}, v{snd+4*i+k}", R("v", kp + 4 * i + k) | R("v", snd + 4 * i + k), R("v", kp + 4 * i + k)) for k in range(4)]
            o += muls(kp + 4 * i, 4, False)
        o += cvts(kp + 4 * i) + [dsw(2, TSC, kp + 4 * i, 32 * i, ("Ow", h), ("w", "QO", ("O", h), X))]
    return o
def x_out(cfg, e):
    snd = OB + 32 * X + 16 * (1 - e)
    o = [unpark(TSC, aOxr), unpark(TSC + 1, aOxg)]
    o += [dsr128("v", snd + 4 * k, TSC, 4 * k * PS, ("Op", X, k), ("r", "QO", ("O", 1), X)) for k in range(2)]
    o += [(wait(lg=[("Op", X, 0)]), 6), ostore(cfg, snd, TSC + 1, sO1X, 0, ("Os", 1)), salu(f"s_add_u32 s{sO1X}, s{sO1X}, 4096"),
          wait(lg=[("Op", X, 1)]), ostore(cfg, snd + 4, TSC + 1, sO1X, 0, ("Os", 1))]
    return o

def start_ops():
    kv = lambda c, S: [(c, S, j) for j in range(4)]
    return kv("K", 0) + [("X", 0), ("X", 1)] + [("G", j) for j in range(8)] + kv("V", 0) + [("G", j) for j in range(8, 16)] + kv("K", 1) + kv("V", 1)
def land(op): return OB + 32 + 4 * op[1] if op[0] == "X" else OB + 64 + 4 * op[1]
def op_tag(op): return ("Ql", 0) + op if op[0] in "XG" else op
def issue_op(cfg, op, pad=True):
    if op[0] in "XG":
        j = op[1]; so = sQX if op[0] == "X" else sQG
        r = [salu(f"s_add_u32 s{sQG}, s{sQG}, 4096")] if (op[0] == "G" and j and j % 4 == 0) else []
        return r + [I(f"buffer_load_dwordx4 {rs('v',land(op),4)}, v{vLin}, s[{sQA}:{sQA+3}], s{so} offen{off(1024*(j&3))} {cfg.nt}", "vld",
                      rd=R("v", vLin), wr=R("v", land(op), 4), tag=op_tag(op))]
    kv, S, j = op
    m0, ld = dma(cfg, kv, S, j)
    return ([kv_step(cfg, S)] if (kv == "K" and j == 0 and S) else []) + [m0, nop(0), ld]
def start_step(cfg, i, tmp):
    ops = start_ops(); op = ops[i]
    o = [wait(vm=[op_tag(op)])]
    if i + cfg.W < len(ops): o += issue_op(cfg, ops[i + cfg.W])
    if op[0] == "X": o += scale_piece(land(op), tmp) + [dsw(4, vLx, land(op), PS * op[1], ("Qw", 0, X), ("w", "QO", ("Q", 0), X))]
    if op[0] == "G": o += scale_piece(land(op), tmp) + [dsw(4, vT0, land(op), PS * op[1], ("Qw", 0, op[1] >> 3), ("w", "QO", ("Q", 0), op[1] >> 3))]
    return o

QK0 = {X: 0, 0: 26, 1: 51, 2: 85, 3: 119}
PV0 = {X: 42, 0: 67, 1: 101, 2: 135, 3: 161}
CH0 = {X: 0, 0: 2, 1: 6, 2: 10, 3: 14}
EXP0 = {0: 34, 1: 66, 2: 97, 3: 128}
UO = (X, 0, 1, 2, 3)
def sbuf(q, c): return SB + 4 * ((CH0[q] + c) % 6)
def pbuf(S, q, r): return PB + 8 * ((5 * S + UO.index(q)) & 1) + 4 * r

def main_stream(cfg, e):
    st = Stream()
    def qk(S, q):
        if S % 16 == 0 and not (S == 0 and q == X):
            if S == 0 and q == 2: st.add(None, key="g1a"); st.add(None, key="g1b")
            for s in range(4): st.add(negm_mfma(q, s), key=("n", S, q, s))
        for c in range(2 if q == X else 4):
            for s in range(4):
                st.add(mfma("v", sbuf(q, c), "a", aK + 16 * c + 4 * s, "a", aQ + 16 * q + 4 * s, NEGM + 4 * q if s == 0 else sbuf(q, c)), key=153 * S + QK0[q] + 4 * c + s)
    def pv(S, q):
        k = 153 * S + PV0[q]; z = S % 16 == 0
        for dt in range(9):
            for r in range(1 if q == X else 2):
                dc, d, a = ("v", OB + 32 * q + 4 * dt, aV + 32 * r + 4 * dt) if dt < 8 else ("a", aL + 4 * q, aONE)
                st.add(mfma(dc, d, "a", a, "v", pbuf(S, q, r), None if (z and r == 0) else d), key=k); k += 1
    for S in range(33):
        if S < 32: qk(S, X)
        else:
            for k in range(8): st.add(None, key=153 * S + k)
        if S: pv(S - 1, 3)
        if S == 32: break
        qk(S, 0)
        if S == 0: st.add(None, key="v0a"); st.add(None, key="v0b")
        pv(S, X)
        for q in (1, 2, 3): qk(S, q); pv(S, q - 1)
    P = st.pos
    G = lambda S, r: P[153 * S + r]
    last = len(st.m) - 1
    moves = []
    for S in range(32):
        for q in UO:
            if q == X: eg, cg = ([9 + 3 * i for i in range(8)], [13, 19, 25, 31]) if S else (list(range(26, 34)), [35, 35, 39, 39])
            else:
                eg = [EXP0[q] + 2 * i for i in range(16)]; cg = [EXP0[q] + 4 * i + 3 for i in range(8)]
                if q in (1, 2): cg[7] += 1
            for i, g in enumerate(eg):
                r = sbuf(q, i >> 2) + (i & 3)
                st.put(G(S, g), valu(f"v_exp_f32 v{r}, v{r}", R("v", r), R("v", r), "trans"))
                if i % 2 == 0 and q != X and 85 < 153 * S + g < 290 and (i >> 1) % 4 < cfg.pairF: moves.append((G(S, g), G(S, eg[i + 1])))
            for i, g in enumerate(cg):
                r = sbuf(q, i >> 1) + 2 * (i & 1); d = pbuf(S, q, i >> 2) + (i & 3)
                st.put(G(S, g), valu(f"v_cvt_pk_bf16_f32 v{d}, v{r}, v{r+1}", R("v", r, 2), R("v", d)))
    for k in (2, 6): st.put(G(32, k), nop(0))
    st.put(G(32, 7), nop(1))
    bounds = {(h, b): (G(16 * h + 2 * b, 0) if (h, b) != (1, 0) else P[("n", 16, X, 0)]) for h in range(2) for b in range(8)}
    bounds[(0, 8)] = bounds[(1, 0)]; bounds[(1, 8)] = last + 1
    hasexp = lambda g: any(x.kind == "trans" for x in g)
    hascvt = lambda g: any(x.kind == "valu" for x in g)
    noscc = set()
    for h in range(2):
        for b in range(1, 7):
            z = bounds[(h, b + 1)]
            st.put(z - 1, I(f"s_cbranch_scc1 L_m{h}{e}", "salu")); st.put(z - 3, salu(f"s_cmp_lg_u32 s{sCNT}, 0")); st.put(z - 5, salu(f"s_sub_u32 s{sCNT}, s{sCNT}, 1"))
            noscc |= {z - 3, z - 2, z - 1}
        st.put(bounds[(h, 1)] - 5, salu(f"s_mov_b32 s{sCNT}, 6"))
        for k in (3, 1): st.put(bounds[(h, 1)] - k, I("", "hold"))
    def safe_salu(ins, lo, hi):
        for pref in (hasexp, lambda g: True):
            for i in range(lo, hi + 1):
                if i not in noscc and pref(st.g[i]) and st.fits(i, ins): return st.put(i, ins)
        raise RuntimeError("salu " + ins.text)
    BV = {}; BK = {}; BX = {}; BF = {}; bars = []
    def barrier(g, vm, lg, fix=False):
        i = st.place(wait(vm=vm, lg=lg), g, g + 3, hasexp)
        i = st.place(bar(), i + 1, i + 4, hasexp) if not fix else st.put(i + 2, bar())
        bars.append(i); return i
    for k in range(14, 18):
        for x in start_step(cfg, k, None): st.put(P["v0a"], x); x.inorder = True
    for x in (wait(lg=[("Kr", 0), ("K0r", 0)]), bar()): st.put(P["v0a"], x); x.inorder = True
    BV[0] = P["v0a"]; bars.append(BV[0])
    for S in range(32):
        h = S >> 4
        any_ = {1: [("Qr", 0)], 14: [("Qw", 1)], 17: [("Ow", 0), ("Xr", 0)]}.get(S, [])
        if S: BV[S] = barrier(G(S, cfg.BV), [("V", S)], [("Kr", S), ("K0r", h)], cfg.BV == 5)
        if S % 16 == 15: BX[h] = BF[S] = barrier(G(S, cfg.BF or 72), None, [("Xw", h), ("Qr", h + 1, X), ("Or", h - 1)] + ([("Vr", S)] if cfg.BF else []))
        elif cfg.BF and cfg.sw <= S < 30: BF[S] = barrier(G(S, cfg.BF if S else 86), None, [("Vr", S)])
        if S < 31: BK[S + 1] = barrier(G(S, cfg.BK), [("K", S + 1)], [("Vr", S)] + any_)
    for S in range(1, 32):
        if not st.g[G(S, 7)]: st.put(G(S, 7), wait(lg=[("Kr", S)]))
    if cfg.trace:
        for i in sorted(set(bars) - set(BF.values())):
            for t in ("s_mov_b32 m0, s98", f"v_writelane_b32 v{vTR0}, s94, m0", f"v_writelane_b32 v{vTR1}, s96, m0", "s_add_u32 s98, s98, 1", "s_memrealtime s[94:95]", "s_memtime s[96:97]"):
                st.g[i].append(valu(t, set(), set()))
    for k in range(16): st.put(P["v0a"], vread(e, 0, 0, k >> 1, k & 1))
    st.put(P["v0b"], wait(lg=[("Vr", 0, 0, 0)]))
    st.put(G(0, 45), wait(lg=[("Vr", 0, 0, 1)]))
    st.late(wait(lg=[("Qr", 0, 0)]), G(0, 4), G(0, 7)); st.late(wait(lg=[("Kr", 0, 1)]), G(0, 30), G(0, 33))
    lo, hi = G(0, 43), G(0, 84)
    for k in range(8):
        g = lo + (hi - lo) * (k + 1) // 8 if k < 7 else P["g1a"]
        while st.g[g]: g += 1
        for x in start_step(cfg, 18 + k, OB + 64): st.put(g, x); x.inorder = True
    for x in qreads(0, 2) + qreads(0, 3): st.put(P["g1a"], x); x.inorder = True
    for op in start_ops()[26 + cfg.W:]:
        for x in issue_op(cfg, op): st.put(P["g1a"], x); x.inorder = True
    st.put(P["g1b"], wait(lg=[("Qr", 0, 2)]))
    st.late(wait(lg=[("Qr", 0, 3)]), G(0, 110), G(0, 118))
    for S in range(31):
        w0, w1 = (cfg.kd0, cfg.kd1), (cfg.vd0, cfg.vd1)
        if S == 0: plan = [("K", 2, cfg.k20, cfg.k20 + 16)] + ([("V", 2, 106, 122)] if cfg.sw == 0 else [])
        elif S < cfg.sw: plan = [("V", S + 1) + w0, ("K", S + 2) + w1]
        elif S == cfg.sw: plan = [("V", S + 1, 46, 66), ("K", S + 2, 66, 90), ("V", S + 2, 90, 114)]
        else: plan = [("K", S + 2) + w0, ("V", S + 2) + w1]
        cur = 0
        for kv, S2, a, b in plan:
            if S2 > 31: continue
            cur = max(cur, BV[S] + 1) if (kv == "K" or S2 == S + 1) else max(cur, (BF[S] if cfg.BF else BK[S + 1]) + 1)
            for j in range(4):
                g = max(cur, G(S, a + (b - a) * j // 4 + (cfg.eshift * e if S and len(plan) < 3 else 0)))
                if kv == "K" and j == 0: g = safe_salu(kv_step(cfg, S2), max(cur, g - 4), g + 8)
                if cfg.nodma: continue
                m0, ld = dma(cfg, kv, S2, j)
                i = safe_salu(m0, g, g + 12)
                cur = st.place(ld, i + 1, i + 10) + 1
    anchors = {}
    def qload(j, buf, o): return I(f"buffer_load_dwordx4 {rs('v',buf,4)}, v{vLin}, s[{sQB_}:{sQB_+3}], s{sQOFF} offen{off(o)} {cfg.nt}", "vld",
                                   rd=R("v", vLin), wr=R("v", buf, 4), tag=("Ql", 1, j))
    sh = cfg.eshift * e
    st.place(qload(0, T16, 0), G(1, 68 + sh), G(1, 100))
    for b in range(1, 7):
        j = 3 * (b - 1)
        st.place(qload(j + 1, T16 + 4, 1024), G(2 * b, sh), G(2 * b, 20))
        st.place(qload(j + 2, T16 + 8, 2048), G(2 * b, 68 + sh), G(2 * b, 100))
        lo = st.place(qload(j + 3, T16, 3072), G(2 * b + 1, sh), G(2 * b + 1, 20))
        safe_salu(salu(f"s_add_u32 s{sQOFF}, s{sQOFF}, 3072"), lo + 1, lo + 20)
        for i, g in enumerate((106, 153 + 68, 153 + 106)):
            anchors[(b, i)] = st.place(dsw(4, vAux, T16 + 4 * i, PS * i, ("Qw", 1), ("w", "QO", ("Q", 1))), G(2 * b, g + sh), G(2 * b, g + 30))
    onum = {0: int(cfg.opat[1]), 7: int(cfg.opat[3])}; onum.update({b: int(cfg.opat[2]) for b in range(1, 7)})
    assert sum(onum.values()) == 18 and onum[0] == 0
    osite = []; j = 0
    for b in range(1, 8):
        n = onum[b]
        pos = {1: (108,), 2: (108, 261), 3: (108, 153, 261)}[n] if b < 7 else [60 + 120 * i // max(n, 1) for i in range(n)]
        for i in range(n):
            lo = G(16 + 2 * b, pos[i] + cfg.eshift * e)
            lo = st.place(ostore(cfg, T16 + 4 * (i % 4), vLin, sOOFF, 1024 * (i % 4), ("Os", 0, j)), lo, lo + 24)
            osite.append((b, i, n, j, lo)); j += 1
            if i == n - 1 or i % 4 == 3: safe_salu(salu(f"s_add_u32 s{sOOFF}, s{sOOFF}, {1024 * (i % 4 + 1)}"), lo + 1, lo + 12)
    def reads(lst):
        lo = 0
        for k, (r, a, z) in enumerate(lst):
            a = max(a, lo)
            def room(pred, frm):
                cur = frm
                for (_, a2, z2) in lst[k:]:
                    cur = next((i for i in range(max(cur, a2), z2 + 1) if pred(i)), None)
                    if cur is None: return False
                    cur += 1
                return True
            if room(lambda i: hascvt(st.g[i]) and st.fits(i, r), a): lo = st.place(r, a, z, hascvt) + 1
            elif room(lambda i: st.fits(i, r), a): lo = st.place(r, a, z) + 1
            elif k and a - 1 >= lst[k][1] and st.fits(a - 1, r, True): lo = st.put(a - 1, r) + 1
            else:
                i = next((i for i in range(a, z + 1) if st.fits(i, r, True)), None)
                lo = st.put(min(a, z) if i is None else i, r) + 1
    reads([(vread(e, 0, 1, k >> 1, k & 1), G(0, 42), G(0, 58 + (k >> 3) * 8)) for k in range(16)])
    for S in range(32):
        if S:
            reads([(vread(e, S, 0, k >> 1, k & 1), max(BV[S] + 1, G(S, 8 + (k & 14))), G(S, 33 + (k >> 3) * 4)) for k in range(16)] +
                  [(vread(e, S, 1, k >> 1, k & 1), G(S, 9 + (k & 14)), G(S, 58 + (k >> 3) * 8)) for k in range(16)])
            st.late(wait(lg=[("Vr", S, 0, 0)]), G(S, 38), G(S, 41)); st.late(wait(lg=[("Vr", S, 0, 1)]), G(S, 42), G(S, 45))
        st.late(wait(lg=[("Vr", S, 1, 0)]), G(S, 63), G(S, 67)); st.late(wait(lg=[("Vr", S, 1, 1)]), G(S, 71), G(S, 75))
        if S < 31:
            reads([(kread(e, S + 1, j >> 3, (j >> 2) & 1, j & 3), max(BK[S + 1] + 1, G(S, 119 + j)), G(S, 143 if j < 8 else 149)) for j in range(16)])
            st.late(wait(lg=[("Kr", S + 1, 0)]), G(S, 146), G(S, 151))
    for b in range(1, 7):
        for i in range(3):
            buf = T16 + 4 * i
            lo = (G(2 * b, 26), G(2 * b + 1, 6), G(2 * b + 1, 62))[i]
            if cfg.qpk:
                c = scale_piece(buf, T16 + 12)
                for x in c[8:12]: x.kind = "pk"
            else: c = [x for r in range(4) for x in scale_reg(buf + r, TSC + 2 * (r & 1), False)]
            st.spread([wait(vm=[("Ql", 1, 3 * (b - 1) + i)])] + c, lo, anchors[(b, i)] - 1 if i != 1 else G(2 * b + 1, 61), True)
        st.spread([valu(f"v_add_u32 v{vAux}, {3*PS}, v{vAux}", R("v", vAux), R("v", vAux))], anchors[(b, 2)] + 1, bounds[(0, b + 1)] - 2, True)
    st.spread([valu(f"v_bfe_u32 v{TSC}, v{vLin}, 8, 1", R("v", vLin), R("v", TSC)), valu(f"v_lshlrev_b32 v{TSC}, 4, v{TSC}", R("v", TSC), R("v", TSC)),
               valu(f"v_subrev_u32 v{vAux}, {18*PS}, v{vAux}", R("v", vAux), R("v", vAux)),
               valu(f"v_xor_b32 v{vAux}, v{TSC}, v{vAux}", R("v", vAux) | R("v", TSC), R("v", vAux))], G(14, 60), G(14, 110), True)
    lo = 0
    for b, i, n, j, a in osite:
        lo = st.place(dsr128("v", T16 + 4 * (i % 4), vAux, PS * i, ("Or", 0, j), ("r", "QO", ("O", 0))), max(a - 40, lo + 1), a - 10)
        if i == n - 1 and b < 7: lo = st.spread([valu(f"v_add_u32 v{vAux}, {n*PS}, v{vAux}", R("v", vAux), R("v", vAux))], lo + 1, bounds[(1, b + 1)] - 2, True)
        st.late(wait(lg=[("Or", 0, j)]), a - 6, a - 1)
    one = lambda x: x[0] if isinstance(x, tuple) else x
    st.place(wait(vm=[("Ql", 1, 18)]), G(15, 80), G(15, 110), hasexp)
    qrd = {}
    for q in UO:
        use = P[("n", 16, q, 0)]
        lo = G(15, QK0[q] + (7 if q == X else 15))
        qrd[q] = qreads(1, q)
        st.spread(qrd[q], lo, lo + 30, True)
        st.spread([negm_init(1, q, r) for r in range(4)], lo + 2, min(lo + 60, use - 3), True)
        st.late(wait(lg=[("Qr", 1, q)]), use - 4, use - 1)
    k0 = k0reads(1)
    st.spread(k0[:2], G(15, 100), BK[16], True)
    k0[2].after.append(k0[1])
    st.spread(k0[2:] + [(wait(lg=[("K0r", 1)]), 8)] + [k0neg(i) for i in range(16)], BK[16] + 1, P[("n", 16, X, 0)] - 3)
    def seq(chains, cuts, asap=False):
        for k, c in enumerate(chains):
            if k: one(c[0]).after.append(one(chains[k - 1][-1]))
            st.spread(c, cuts[k] + (k > 0), cuts[k + 1], asap)
    done = lambda S, q: G(S, PV0[q] + (8 if q == X else 17)) + 5
    xs = {}
    for h in range(2):
        S = 16 * h + 15
        xs[h] = (x_send(e, h), x_recv(e, h), x_stage(e, h, cfg.pk))
        if h == 0: xs[h][0][0].after.append(qrd[X][-1])
        st.spread(xs[h][0], done(S, X), BX[h] - 5)
        xs[h][1][0].after.append(xs[h][0][-1]); xs[h][2][0].after.append(xs[h][1][-1])
        st.spread(xs[h][1], BX[h] + 1, BX[h] + 8)
    def stg(h, q):
        c = q_head(q) + q_stage(h, q, cfg.pk)
        if h == 0: next(x for x in c if x.kind == "dsw").after.append(qrd[q][-1])
        return c
    use = lambda q: G(16, PV0[q]) - 1
    cuts = [BX[0] + 16, G(15, 112), G(16, 8), G(16, 66), G(16, 116), use(3)]
    for k, q in enumerate(UO): assert cuts[k] >= done(15, q) and cuts[k + 1] <= use(q), (q, cuts)
    seq([xs[0][2], stg(0, 0), stg(0, 1), stg(0, 2), stg(0, 3)], cuts)
    cuts = [BX[1] + 14, G(31, 100), done(31, 1) + 2, done(31, 2) + 3, last - 1]
    c = [xs[1][2], stg(1, 0), stg(1, 1), stg(1, 2)]
    w = [(cuts[0], cuts[1]), (cuts[1] + 1, cuts[2]), (cuts[2] + 1, G(31, 148)), (cuts[3], last - 1)]
    for k in range(4):
        if k: one(c[k][0]).after.append(one(c[k - 1][-1]))
        st.spread(c[k], *w[k])
    xo = x_out(cfg, e); xo[0].after.append(xs[1][2][-1])
    seq([xo, q_out(cfg, 0, 6), q_out(cfg, 1, 6)], [cuts[1] + 1, cuts[2], G(31, 148), last - 6])
    for x in q_out(cfg, 2)[:5]: st.put(last, x)
    for a, b in moves: st.g[b].insert(0, st.g[a].pop(0))
    if cfg.soft:
        for i in range(G(0, 85), G(1, 140)):
            if [x.kind for x in st.srt(i)] == ["dsr", "valu"]: st.flip.add(i)
    for g in st.g: g[:] = [x for x in g if x.kind not in ("hold", "holdm")]
    return st, bounds

def tail(cfg):
    one = lambda x: x[0] if isinstance(x, tuple) else x
    o = [unpark(TSC + 2, aFl), nop(2)] + q_head(3)
    o.append(valu(f"v_cmp_nge_f32 vcc, s{sTHR}, v{vG}", R("v", vG), set()))
    o2 = [one(x) for x in q_out(cfg, 2)[5:]]
    for dt in range(8):
        b = OB + 96 + 4 * dt
        o += muls(b, 4, True) + cvts(b) + [dsw(2, vOw, b, qoff(3) + 32 * dt, ("Ow", 1), ("w", "QO", ("O", 1), 3))]
        if dt == 0:
            o += [salu(f"s_or_b32 s{sT}, vcc_lo, vcc_hi"), valu(f"v_mov_b32 v{vT0}, s{sT}", set(), R("v", vT0)), dsw(1, TSC + 2, vT0, 0, ("Fw",), ("w", "F", ("F",)))]
        if dt % 2: o += o2[dt - 1: dt + 1]
    o += [one(x) for x in q_out(cfg, 3)]
    o.append(valu(f"v_mov_b32 v{vT0}, {FB}", set(), R("v", vT0)))
    o += [wait(lg=[("Fw",)]), bar(), dsr128("v", PB, vT0, 0, ("Fr",), ("r", "F", ("F",))), wait(lg=[("Fr",)])]
    o.append(valu(f"v_or3_b32 v{PB}, v{PB}, v{PB+1}, v{PB+2}", R("v", PB, 3), R("v", PB)))
    o.append(valu(f"v_or_b32 v{PB}, v{PB}, v{PB+3}", R("v", PB, 4), R("v", PB)))
    o += [nop(0), valu(f"v_readfirstlane_b32 s{sT}, v{PB}", R("v", PB), set())]
    return chain(o)

def setup(cfg):
    L = []
    A = L.append
    A("s_cmp_ge_u32 s2, 256"); A("s_cbranch_scc1 L_end")
    A("s_load_dwordx4 s[4:7], s[0:1], 0"); A("s_load_dwordx4 s[8:11], s[0:1], 16")
    if cfg.stamps:
        A(f"s_load_dwordx2 s[58:59], s[0:1], {32 if cfg.dbg else 40}")
        A(f"s_memrealtime s[{sST}:{sST+1}]"); A(f"s_memtime s[{sST+4}:{sST+5}]")
    A("v_lshrrev_b32 v16, 6, v0"); A("v_and_b32 v17, 63, v0")
    A(f"v_readfirstlane_b32 s{sW}, v16")
    A(f"v_lshlrev_b32 v{vLin}, 4, v17")
    if cfg.adj: A(f"s_lshl_b32 s{sT}, s2, 1")
    else: A(f"s_mov_b32 s{sT}, s2")
    A(f"s_mul_i32 s{sOA}, s{sT}, 73728"); A(f"s_lshl_b32 s{sKVA}, s{sT}, 18")
    A(f"s_mul_i32 s{sM0}, s{sW}, {4*PS}"); A(f"s_mov_b32 s{sMODE}, -1")
    for d, n in ((sKS, 134217728), (sVS, 134217728), (sOS, 37748736), (sQA, 73728), (sQB_, 18432)):
        A(f"s_mov_b32 s{d+2}, {n}"); A(f"s_mov_b32 s{d+3}, 0x20000")
    for i in range(10): A(f"v_accvgpr_write_b32 a{aSV+i}, 0")
    if cfg.trace: A("s_mov_b32 s98, 0"); A("s_memrealtime s[94:95]"); A("s_memtime s[96:97]")
    A(f"s_mul_i32 s{sT}, s{sW}, 18432"); A(f"s_add_u32 s{sT}, s{sT}, {73728 * (1 if cfg.adj else 256)}")
    A("s_waitcnt lgkmcnt(0)")
    for d, p in ((sKS, 6), (sVS, 8), (sOS, 10)): A(f"s_mov_b64 s[{d}:{d+1}], s[{p}:{p+1}]")
    A(f"s_add_u32 s{sQA}, s4, s{sOA}"); A(f"s_addc_u32 s{sQA+1}, s5, 0")
    A(f"s_add_u32 s{sQB_}, s{sQA}, s{sT}"); A(f"s_addc_u32 s{sQB_+1}, s{sQA+1}, 0")
    return L

def lane_setup(cfg):
    L = []; A = L.append
    eb, xb = cfg.ebit, 1 - cfg.ebit
    park = lambda a, v=21: A(f"v_accvgpr_write_b32 a{a}, v{v}")
    A("v_lshrrev_b32 v16, 6, v0"); A("v_and_b32 v17, 63, v0")
    A("v_lshrrev_b32 v18, 4, v17")
    A("v_and_b32 v19, 7, v17")
    A("v_bfe_u32 v20, v17, 3, 1")
    A(f"v_bfe_u32 v24, v16, {eb}, 1"); A(f"v_bfe_u32 v25, v16, {xb}, 1")
    A(f"v_mul_u32_u24 v21, {PS}, v19"); A("v_lshl_add_u32 v26, v20, 8, v21")
    A(f"v_lshlrev_b32 v21, 4, v18"); park(aK0); A(f"v_add_u32 v{vK}, v26, v21")
    A("v_bfe_u32 v21, v17, 2, 3"); A(f"v_mul_u32_u24 v21, {PS}, v21"); A("v_lshrrev_b32 v22, 5, v17"); A("v_lshl_add_u32 v21, v22, 8, v21")
    A("v_and_b32 v23, 3, v17"); A("v_lshl_add_u32 v21, v23, 3, v21"); A(f"v_add_u32 v{vV}, {VB}, v21")
    A(f"v_mul_u32_u24 v27, {2*TS}, v16"); A(f"v_add_u32 v27, {QB}, v27"); A(f"v_add_u32 v{vQ}, v27, v{vK}")
    A(f"v_add_u32 v{vT0}, v27, v{vLin}")
    A(f"v_mul_u32_u24 v21, {2*PS}, v16"); A(f"v_add_u32 v21, {QB + 8*TS}, v21"); A(f"v_add_u32 v{vLx}, v21, v{vLin}")
    A(f"v_mul_u32_u24 v21, {18*PS}, v16"); A(f"v_add_u32 v21, {QB}, v21"); A(f"v_add_u32 v{vAux}, v21, v{vLin}")
    A(f"v_lshl_add_u32 v21, v25, 9, v{vK}"); A(f"v_add_u32 v21, {QB + 8*TS}, v21"); park(aQx)
    A("v_xor_b32 v21, v22, v20"); A("v_lshl_add_u32 v21, v21, 4, v26"); A("v_and_b32 v23, 1, v18"); A("v_lshl_add_u32 v21, v23, 3, v21")
    A(f"v_add_u32 v{vOw}, v27, v21")
    A("v_lshl_add_u32 v21, v25, 9, v21"); A("v_lshl_add_u32 v21, v24, 7, v21"); A(f"v_add_u32 v21, {QB + 8*TS}, v21"); park(aOxw)
    A(f"v_and_b32 v21, 31, v17"); A("v_lshlrev_b32 v21, 4, v21"); A(f"v_lshl_add_u32 v{vOg}, v22, 12, v21")
    A("v_lshlrev_b32 v23, 4, v23"); A("v_xor_b32 v21, v23, v21"); A(f"v_mul_u32_u24 v23, {4*PS}, v22"); A(f"v_add3_u32 v{vOr2}, v21, v23, v27")
    A(f"v_xor_b32 v21, v19, v20"); A("v_lshlrev_b32 v21, 4, v21"); A("v_lshl_add_u32 v21, v20, 8, v21"); A(f"v_mul_u32_u24 v23, {PS}, v18"); A("v_add_u32 v21, v21, v23")
    A("v_lshl_add_u32 v21, v25, 9, v21"); A("v_lshl_add_u32 v21, v24, 7, v21"); A(f"v_add_u32 v21, {QB + 8*TS}, v21"); park(aOxr)
    A("v_lshlrev_b32 v21, 4, v19"); A("v_lshl_add_u32 v21, v20, 8, v21"); A("v_lshl_add_u32 v21, v18, 10, v21")
    A("v_lshl_add_u32 v21, v25, 9, v21"); A(f"v_lshl_add_u32 v21, v24, 7, v21"); park(aOxg)
    A(f"v_lshl_add_u32 v22, v16, 12, v{vLin}"); A(f"v_add_u32 v21, {XB}, v22"); park(aXw)
    A(f"v_xor_b32 v22, {0x1000 << eb}, v22"); A(f"v_add_u32 v21, {XB}, v22"); park(aXr)
    A(f"v_lshlrev_b32 v21, 2, v0"); A(f"v_add_u32 v21, {XLB}, v21"); park(aXl); A(f"v_xor_b32 v21, {256 << eb}, v21"); park(aXlr)
    A(f"v_lshlrev_b32 v21, 2, v16"); A(f"v_add_u32 v21, {FB}, v21"); park(aFl)
    A(f"v_mov_b32 v21, 0x80008000"); park(aSGN)
    A(f"v_mov_b32 v21, 0x3f803f80")
    if cfg.ones4: A("v_and_b32 v22, 3, v17"); A("v_cmp_eq_u32 vcc, 0, v22"); A("s_nop 1"); A("v_cndmask_b32 v21, 0, v21, vcc")
    for i in range(4): park(aONE + i)
    A(f"v_mov_b32 v{vG}, 0")
    A(f"s_mov_b32 s{sC}, {C_SCALE:#x}"); A(f"s_mov_b32 s{sC+1}, {C_SCALE:#x}"); A(f"s_mov_b32 s{sTHR}, {THR:#x}"); A(f"s_mov_b32 s{sHI}, 0xffff0000")
    hb = 73728 * (1 if cfg.adj else 256)
    A(f"s_mul_i32 s{sT}, s{sW}, 18432"); A(f"s_add_u32 s{sOOFF}, s{sT}, s{sOA}")
    A(f"s_lshl_b32 s{sT}, s{sW}, 14"); A(f"s_add_u32 s{sO1}, s{sT}, s{sOA}"); A(f"s_add_u32 s{sO1}, s{sO1}, {hb}")
    A(f"s_add_u32 s{sO1X}, s{sOA}, {hb + 65536}"); A(f"s_mov_b32 s{sQOFF}, 0")
    return [salu(x) for x in L]

def prologue(cfg):
    o = stamp(cfg, 4, True)
    o += [salu(f"s_lshl_b32 s{sKV}, s{sW}, 12"), salu(f"s_add_u32 s{sKV}, s{sKV}, s{sKVA}"), salu(f"s_lshl_b32 s{sQG}, s{sW}, 14"),
          salu(f"s_lshl_b32 s{sQX}, s{sW}, 11"), salu(f"s_add_u32 s{sQX}, s{sQX}, 65536")]
    for op in start_ops()[:cfg.W]: o += issue_op(cfg, op)
    if cfg.cpf:
        for t in ("s_getpc_b64 s[48:49]", "L_pc:", "s_lshr_b32 s50, s2, 3", "s_and_b32 s50, s50, 3", "s_lshl_b32 s50, s50, 15",
                  "v_lshl_add_u32 v28, v0, 7, s50", "v_min_u32 v28, L_end-L_pc, v28", "v_mov_b32 v29, s49", "v_add_co_u32 v28, vcc, s48, v28", "s_nop 1",
                  "v_addc_co_u32 v29, vcc, 0, v29, vcc"): o.append(salu(t))
        o.append(I(f"global_load_dword v{vLp}, v[28:29], off", "vld", tag=("code",)))
    o += lane_setup(cfg)
    for q in range(5):
        for r in range(4): o.append(negm_init(0, q, r))
    for i in range(7):
        o += start_step(cfg, i, SB)
        if i in (0, 6): o += stamp(cfg, {0: 5, 6: 6}[i], True)
    o.append(wait(lg=[("Qw", 0, X)])); o.append(bar())
    o += k0reads(0) + qreads(0, X)
    return o

def prologue2(cfg, e):
    o = [kread(e, 0, 0, j >> 2, j & 3) for j in range(8)]
    o += start_step(cfg, 7, SB)
    o += [wait(lg=[("K0r", 0)])] + [k0neg(i) for i in range(16)]
    o += [kread(e, 0, 1, j >> 2, j & 3) for j in range(8)]
    for i in range(8, 14): o += start_step(cfg, i, SB)
    o += stamp(cfg, 7, True)
    o += qreads(0, 0) + qreads(0, 1)
    o.append(wait(lg=[("Qr", 0, X), ("Kr", 0, 0)]))
    o += [negm_mfma(X, s) for s in range(4)]
    o += stamp(cfg, 8, True)
    return o

def fallback(cfg):
    L = []; A = L.append
    xb = 1 - cfg.ebit
    A("s_waitcnt vmcnt(0) lgkmcnt(0)"); A("s_barrier")
    A(f"s_mov_b32 s{sMODE}, 0")
    A("v_and_b32 v16, 63, v0"); A("v_lshrrev_b32 v17, 4, v16")
    A("v_and_b32 v18, 7, v16"); A("v_bfe_u32 v19, v16, 3, 1"); A("v_lshl_add_u32 v18, v18, 2, v19")
    A("v_lshlrev_b32 v18, 8, v18"); A("v_lshl_add_u32 v18, v17, 4, v18")
    A("v_and_b32 v19, 15, v16"); A("v_lshlrev_b32 v19, 8, v19"); A("v_lshl_add_u32 v19, v17, 4, v19")
    A(f"s_mov_b32 s{sT+4}, s4"); A(f"s_mov_b32 s{sT+5}, s5"); A(f"s_mov_b32 s{sT+6}, 37748736"); A(f"s_mov_b32 s{sT+7}, 0x20000")
    for h in range(2):
        hq = 73728 * (1 if cfg.adj else 256) * h; hk = 262144 * (1 if cfg.adj else 256) * h
        for q in range(5):
            if q < 4:
                A(f"s_lshl_b32 s{sT}, s{sW}, 14"); A(f"s_add_u32 s{sT}, s{sT}, {hq + (q >> 1) * 8192 + (q & 1) * 512}")
            else:
                A(f"s_bfe_u32 s{sT}, s{sW}, {0x10000 + xb:#x}"); A(f"s_lshl_b32 s{sT}, s{sT}, 9"); A(f"s_add_u32 s{sT}, s{sT}, {hq + 65536}")
            A(f"s_add_u32 s{sT}, s{sT}, s{sOA}")
            for s in range(4): A(f"buffer_load_dwordx4 {rs('v', OB+16*q+4*s, 4)}, v18, s[{sT+4}:{sT+7}], s{sT} offen{off(64*s)}")
        A("s_waitcnt vmcnt(0)")
        for r in range(80):
            for ins in scale_reg(OB + r, TSC + 2 * (r & 1), True): A(ins.text)
        for i in range(5): A(f"v_mov_b32 v{NEGM+i}, 0xff800000")
        A(f"s_add_u32 s{sT}, s{sKVA}, {hk}"); A(f"s_mov_b32 s{sT+1}, 64")
        A(f"L_fb{h}:")
        for s in range(4): A(f"buffer_load_dwordx4 {rs('v', SB+4*s, 4)}, v19, s[{sKS}:{sKS+3}], s{sT} offen{off(64*s)}")
        A("s_waitcnt vmcnt(0)")
        for q in range(5):
            for s in range(4): A(mfma("v", 192 + 4 * q, "v", SB + 4 * s, "v", OB + 16 * q + 4 * s, None if s == 0 else 192 + 4 * q).text)
        A("s_nop 7"); A("s_nop 1")
        for q in range(5):
            A(f"v_max3_f32 v{NEGM+q}, v{NEGM+q}, v{192+4*q}, v{193+4*q}"); A(f"v_max3_f32 v{NEGM+q}, v{NEGM+q}, v{194+4*q}, v{195+4*q}")
        A(f"s_add_u32 s{sT}, s{sT}, 4096"); A(f"s_sub_u32 s{sT+1}, s{sT+1}, 1"); A(f"s_cmp_lg_u32 s{sT+1}, 0"); A(f"s_cbranch_scc1 L_fb{h}")
        for x in (16, 32):
            A(f"v_xor_b32 v20, {x}, v16"); A("v_lshlrev_b32 v20, 2, v20")
            for q in range(5): A(f"ds_bpermute_b32 v{SB+q}, v20, v{NEGM+q}")
            A("s_waitcnt lgkmcnt(0)")
            for q in range(5): A(f"v_max_f32 v{NEGM+q}, v{NEGM+q}, v{SB+q}")
        for q in range(5): A(f"v_xor_b32 v{NEGM+q}, 0x80000000, v{NEGM+q}")
        for q in range(5): A(f"v_accvgpr_write_b32 a{aSV+5*h+q}, v{NEGM+q}")
    A("s_nop 1")
    A("s_branch L_start")
    return L

def match(tag, want): return isinstance(tag, tuple) and any(tag[:len(w)] == w for w in want)
def resolve(tr):
    vm = []; lg = []; vdone = 0; ldone = 0; pend = {}; epoch = 0; ev = []
    for k, ins in enumerate(tr): ins.idx = k
    for ins in tr:
        for a in ins.after: assert a.idx < ins.idx, f"order: {a.text} must precede {ins.text}"
        for r in ins.rd | ins.wr:
            if r in pend:
                c, idx = pend[r]
                assert idx < (vdone if c == "vm" else ldone), f"unwaited load of {r} at {ins.text} ({ins.idx})"
                del pend[r]
        if ins.kind == "wait":
            ins.nvm = ins.nlg = None
            v0, l0 = vdone, ldone
            for want, lst, mx, c in ((ins.vm, vm, 63, "vm"), (ins.lg, lg, 14, "lg")):
                if not want: continue
                idx = next((i for i in range(len(lst) - 1, -1, -1) if match(lst[i].tag, want)), -1)
                if idx < 0: continue
                n = min(len(lst) - 1 - idx, mx)
                if c == "vm": ins.nvm = n; vdone = max(vdone, len(lst) - n)
                else: ins.nlg = n; ldone = max(ldone, len(lst) - n)
            for x in vm[v0:vdone] + lg[l0:ldone]: x.edone = epoch
        elif ins.kind == "bar": epoch += 1
        elif ins.kind in ("dma", "vld", "vst"):
            vm.append(ins)
            assert len(vm) - vdone <= 62
            for r in ins.wr: pend[r] = ("vm", len(vm) - 1)
        elif ins.kind in ("dsr", "dsw"):
            lg.append(ins)
            for r in ins.wr: pend[r] = ("lg", len(lg) - 1)
        if ins.lds: ins.eissue = epoch; ev.append(ins)
    return epoch, ev
def check_lds(evs):
    INF = 10 ** 9
    def before(a, b, msg): assert max(getattr(x, "edone", INF) for x in a) < min(x.eissue for x in b), msg
    reg = {}
    for ev in evs:
        for x in ev: reg.setdefault(x.lds[1], {}).setdefault(x.lds[2], {"r": [], "w": []})[x.lds[0]].append(x)
    for r, cont in reg.items():
        if r == "QO": continue
        order = sorted(cont, key=lambda c: min(x.eissue for x in cont[c]["w"]))
        for i, c in enumerate(order):
            before(cont[c]["w"], cont[c]["r"], f"LDS RAW {r} {c}")
            if i + 1 < len(order): before(cont[c]["r"] + cont[c]["w"], cont[order[i + 1]]["w"], f"LDS WAR {r} {c}")
    c = reg["QO"]
    before(c[("Q", 1)]["w"], c[("Q", 1)]["r"], "Q RAW")
    before([x for x in c[("Q", 0)]["w"] if x.lds[3] == X], [x for x in c[("Q", 0)]["r"] if x.lds[3] == X], "Q0x RAW")
    for ev in evs:
        for q in range(4):
            assert max(x.idx for x in ev if x.lds[:3] == ("w", "QO", ("Q", 0)) and x.lds[3] == q >> 1) < min(x.idx for x in ev if x.lds == ("r", "QO", ("Q", 0), q))
    before(c[("Q", 0)]["r"], c[("Q", 1)]["w"], "Q0->Q1")
    before([x for x in c[("Q", 1)]["r"] if x.lds[3] == X], [x for x in c[("O", 0)]["w"] if x.lds[3] == X], "Q1x->O0x")
    before(c[("O", 0)]["w"], c[("O", 0)]["r"], "O0 RAW")
    before(c[("O", 0)]["r"], c[("O", 1)]["w"], "O0->O1")
    for ev in evs:
        for q in range(5):
            sel = lambda m, cc: [x.idx for x in ev if x.lds[1] == "QO" and x.lds[0] == m and x.lds[2] == cc and len(x.lds) > 3 and x.lds[3] == q]
            assert max(sel("r", ("Q", 1))) < min(sel("w", ("O", 0))) and max(sel("w", ("O", 1))) < min(sel("r", ("O", 1)))
def check_hazards(tr):
    seq = [x for x in tr if x.kind != "label"]
    def ws(x): return x.tag + 1 if x.kind == "nop" else 1
    for i, c in enumerate(seq):
        d = 0
        for j in range(i - 1, max(-1, i - 12), -1):
            p = seq[j]; need = 0
            isv = c.kind in ("valu", "trans", "pk"); mem = c.kind in ("dsr", "dsw", "dma", "vld", "vst")
            if p.kind == "mfma":
                if (isv or mem) and p.wr & (c.rd | c.wr): need = 8
                if c.kind == "mfma":
                    if p.wr & (c.rd - c.srcc): need = 8
                    if p.wr & c.srcc and p.wr != c.srcc: need = 6
                if isv and p.srcc & c.wr: need = max(need, 3)
            if p.kind in ("valu", "trans", "pk") and c.kind == "mfma" and p.wr & c.rd: need = 2
            if p.kind == "trans" and c.kind in ("valu", "pk") and p.wr & c.rd: need = 1
            if p.kind == "salu" and c.kind == "dma" and ("s", "m0") in p.wr: need = 1
            if p.kind == "vst" and (p.rd & c.wr): need = 2
            if p.kind in ("valu", "trans") and "readfirstlane" in c.text and p.wr & c.rd: need = 1
            assert d >= need, f"hazard: {p.text} -> {c.text} needs {need}, has {d}"
            d += ws(p)
def check_values(tr):
    state = {}
    for x in tr:
        for r in x.rd:
            if r in state: state[r] = (state[r][0], True)
        for r in x.wr:
            if r in state and not state[r][1] and r[0] in "va" and r not in x.rd:
                p = state[r][0]
                dead_ok = (p.kind == "mfma" and r[0] == "a") or (match(p.tag, [("Ql", 1)]) and p.tag[2] >= 18)
                assert dead_ok, f"value of {r} from '{p.text}' overwritten unread by '{x.text}'"
            state[r] = (x, False)

def build(cfg):
    out = ["; GQA softmax attention, B16 H32 Sq288 Sk1024 D128 bf16 (schedule emitted by my own generator script)",
           f"; @launch grid=(256,1,1) block=(256,1,1) lds={LDS_BYTES}",
           '.amdgcn_target "amdgcn-amd-amdhsa--gfx950"', ".text", f".globl {NAME}", ".p2align 8", f".type {NAME},@function", f"{NAME}:"]
    out += setup(cfg)
    out.append("L_start:")
    evs = []; eps = []; texts = []; common = {}
    for e in range(2):
        segs = [("pro", prologue(cfg)), ("pro2", prologue2(cfg, e))]
        st, bounds = main_stream(cfg, e)
        cuts = [bounds[(h, b)] for h in range(2) for b in range(8)] + [len(st.m)]
        for k in range(16): segs.append((divmod(k, 8), st.emit(cuts[k], cuts[k + 1])))
        segs.append(("tail", stamp(cfg, 4) + tail(cfg) + stamp(cfg, 5)))
        tr = [x for _, s in segs for x in s]
        ep, ev = resolve(tr); eps.append(ep); evs.append(ev)
        check_hazards(tr); check_values(tr)
        d = dict(segs)
        for h in range(2):
            b0 = 1
            ref = d[(h, b0)]
            for b in range(b0 + 1, 7):
                cur = d[(h, b)]
                assert len(cur) == len(ref), (h, b, len(cur), len(ref))
                for x, y in zip(ref, cur):
                    assert x.kind == y.kind and x.text == y.text, (h, b, x.text, y.text)
                    if x.kind == "wait":
                        for a in ("nvm", "nlg"):
                            vals = [v for v in (getattr(x, a), getattr(y, a)) if v is not None]
                            setattr(x, a, min(vals) if vals else None)
        t = []
        for k, s in segs:
            p = [x.render() for x in s]
            if k in ("pro", "tail"):
                assert common.setdefault(k, p) == p; continue
            if isinstance(k, tuple):
                b0 = 1
                if b0 < k[1] <= 6: continue
                if k[1] == b0: t.append(f"L_m{k[0]}{e}:")
            t += p
        texts.append(t)
    assert eps[0] == eps[1]
    if not cfg.nodma: check_lds(evs)
    out += common["pro"]
    out += [f"s_bitcmp1_b32 s{sW}, {cfg.ebit}", "s_cbranch_scc1 L_odd"]
    out += texts[0] + ["s_branch L_tail", ".p2align 6", "L_odd:"] + texts[1] + ["L_tail:"] + common["tail"]
    if cfg.nodma: out += [f"s_mov_b32 s{sT}, 0"]
    out += ["s_nop 3", f"s_and_b32 s{sT}, s{sT}, s{sMODE}", "s_cbranch_scc1 L_fallback"]
    if cfg.trace:
        out += ["s_waitcnt lgkmcnt(0)", "s_mov_b32 m0, s98", f"v_writelane_b32 v{vTR0}, s94, m0", f"v_writelane_b32 v{vTR1}, s96, m0", f"v_mov_b32 v38, v{vTR0}", f"v_mov_b32 v39, v{vTR1}", f"s_cmp_lg_u32 s{sW}, 0", "s_cbranch_scc1 L_notr",
                f"s_lshl_b32 s{sT}, s2, 9", f"s_add_u32 s{sT}, s{sT}, 0x100000", f"v_lshl_add_u32 v20, v0, 3, s{sT}", "global_store_dwordx2 v20, v[38:39], s[58:59]", "L_notr:"]
    if cfg.stamps:
        n = cfg.stamps
        out += ["s_waitcnt vmcnt(0)", "s_barrier", f"s_memrealtime s[{sST+2}:{sST+3}]", f"s_memtime s[{sST+6}:{sST+7}]", "s_waitcnt lgkmcnt(0)",
                f"s_cmp_lg_u32 s{sW}, 0", "s_cbranch_scc1 L_end", f"s_mul_i32 s{sT}, s2, {n*8}", f"v_mov_b32 v20, s{sT}",
                "v_cmp_eq_u32 vcc, 0, v0", "s_and_saveexec_b64 s[50:51], vcc"]
        if cfg.dbg:
            out += ["s_cmp_ge_u32 s2, 8", "s_cbranch_scc1 L_end", f"s_lshl_b32 s{sT}, s2, 3", f"v_mov_b32 v20, s{sT}",
                    f"s_sub_u32 s{sT}, s{sST+2}, s{sST}", f"v_mov_b32 v22, s{sT}", f"s_sub_u32 s{sT}, s{sST+6}, s{sST+4}", f"v_mov_b32 v23, s{sT}",
                    "global_store_dwordx2 v20, v[22:23], s[58:59]"]
        else:
            if cfg.rt:
                for i in range(4, n):
                    r = sST + 2 * i
                    out += [f"s_sub_u32 s{r}, s{r}, s{sST}", f"s_subb_u32 s{r+1}, s{r+1}, s{sST+1}", f"s_add_u32 s{r}, s{r}, s{sST+4}", f"s_addc_u32 s{r+1}, s{r+1}, s{sST+5}"]
            for i in range(n):
                out += [f"v_mov_b32 v{22+2*i}, s{sST+2*i}", f"v_mov_b32 v{23+2*i}, s{sST+2*i+1}", f"global_store_dwordx2 v20, v[{22+2*i}:{23+2*i}], s[58:59] offset:{8*i}"]
    out += ["L_end:", "s_endpgm", "L_fallback:"] + fallback(cfg)
    out += ['.section .rodata,"a"', ".p2align 6", f".amdhsa_kernel {NAME}",
            "  .amdhsa_next_free_vgpr 512", "  .amdhsa_next_free_sgpr 102", "  .amdhsa_accum_offset 256",
            "  .amdhsa_group_segment_fixed_size 0", "  .amdhsa_kernarg_size 48", "  .amdhsa_user_sgpr_count 2",
            "  .amdhsa_user_sgpr_kernarg_segment_ptr 1", "  .amdhsa_system_sgpr_workgroup_id_x 1", ".end_amdhsa_kernel"]
    return "\n".join(out) + "\n"

def parse(args):
    kw = {}
    for a in args:
        k, v = a.split("=", 1)
        kw[k] = int(v) if re.fullmatch(r"-?\d+", v) else v.replace("+", " ")
    return Cfg(**kw)
if __name__ == "__main__":
    s = build(parse(sys.argv[2:]))
    open(sys.argv[1], "w").write(s)
    print(sys.argv[1], len(s), "bytes", s.count("\n"), "lines")
```

```python
import sys, re, math, struct

NAME = "standalone__gqa_softmax__near_ridge_kernel"

PS = 1056
TS = 8 * PS
KB = 0
VB = 4 * TS
QB = 8 * TS
XB = 17 * TS
XLB = (XB + 16384 + 1023) // 1024 * 1024
FB = XLB + 1024
LDS_BYTES = 163840
assert FB + 16 <= LDS_BYTES

vK, vV, vLin, vAux, vG, vQ, vOw, vOr2, vOg, vT0, vLx, vLp, vTR0 = range(1, 14)
vRC = 14; vTR1 = 15
T16 = 16
TSC = 32
NEGM = 36
SB = 56
PB = 80
OB = 96
aQ = 0; aK = 80; aV = 144; aL = 208; aONE = 228; aSV = 232
aQx, aK0, aSGN, aXw, aXr, aXl, aXlr, aOxw, aOxr, aOxg, aFl = range(242, 253)
X = 4

sW = 3
sKS, sVS, sQA, sQB_, sOS = 12, 16, 20, 24, 28
sKV, sM0, sCNT, sQOFF, sOOFF = 32, 33, 34, 35, 36
sC = 38
sTHR, sMODE = 40, 41
sO1 = 42
sO1X = 43
sHI = 45
sQG, sQX = 46, 47
sT = 48
sOA = 56
sKVA = 57
sST = 60

def f32bits(x): return struct.unpack("<I", struct.pack("<f", x))[0]
C_SCALE = f32bits(math.log2(math.e) / math.sqrt(128.0))
THR = f32bits(2.0 ** 40)

def R(c, n, k=1): return {(c, n + i) for i in range(k)}
def rs(c, n, k=1): return f"{c}{n}" if k == 1 else f"{c}[{n}:{n+k-1}]"

class I:
    def __init__(s, text, kind, rd=(), wr=(), srcc=(), tag=None, vm=None, lg=None, lds=None):
        s.text, s.kind, s.rd, s.wr, s.srcc = text, kind, set(rd), set(wr), set(srcc)
        s.tag, s.vm, s.lg, s.lds = tag, vm, lg, lds
        s.nvm = s.nlg = None; s.after = []
    def render(s):
        if s.kind == "wait":
            p = []
            if s.nvm is not None: p.append(f"vmcnt({s.nvm})")
            if s.nlg is not None: p.append(f"lgkmcnt({s.nlg})")
            return "s_waitcnt " + " ".join(p) if p else "s_nop 0"
        return s.text
def chain(lst):
    for a, b in zip(lst, lst[1:]): b.after.append(a)
    return lst

def mfma(dc, d, ac, a, bc, b, c):
    ct = "0" if c is None else rs(dc, c, 4)
    cr = set() if c is None else R(dc, c, 4)
    return I(f"v_mfma_f32_16x16x32_bf16 {rs(dc,d,4)}, {rs(ac,a,4)}, {rs(bc,b,4)}, {ct}", "mfma",
             rd=R(ac, a, 4) | R(bc, b, 4) | cr, wr=R(dc, d, 4), srcc=cr)
def valu(text, rd, wr, kind="valu"): return I(text, kind, rd=rd, wr=wr)
def salu(text, wr=()): return I(text, "salu", wr=wr)
def wait(vm=None, lg=None): return I("", "wait", vm=vm, lg=lg)
def bar(): return I("s_barrier", "bar")
def nop(n): return I(f"s_nop {n}", "nop", tag=n)
def label(n): return I(f"{n}:", "label")
def off(o): return f" offset:{o}" if o else ""
def dsr128(dc, d, addr, o, tag, lds): return I(f"ds_read_b128 {rs(dc,d,4)}, v{addr}{off(o)}", "dsr", rd=R("v", addr), wr=R(dc, d, 4), tag=tag, lds=lds)
def dsrtr(dc, d, addr, o, tag, lds): return I(f"ds_read_b64_tr_b16 {rs(dc,d,2)}, v{addr}{off(o)}", "dsr", rd=R("v", addr), wr=R(dc, d, 2), tag=tag, lds=lds)
def dsw(n, addr, src, o, tag, lds):
    return I(f"ds_write_b{32*n} v{addr}, {rs('v',src,n)}{off(o)}", "dsw", rd=R("v", addr) | R("v", src, n), tag=tag, lds=lds)

class Cfg:
    W = 6
    nt = "nt"
    snt = "sc0 sc1"
    adj = 0
    BK = 114
    BV = 5
    BF = 74
    kd0 = 50
    kd1 = 82
    vd0 = 80
    vd1 = 112
    sw = 14
    qpk = 0
    k20 = 100
    eshift = 4
    ebit = 0
    ones4 = 1
    cpf = 1
    pk = 1
    opat = 'o030'
    lev = 'L00000'
    split = 5
    stamps = 0
    rt = 0
    pst = 0
    trace = 0
    dbg = 0
    nodma = 0
    peel = 0
    slowall = 0
    slowB = -1
    prof = ''
    fsum = ''
    fneg = 0
    slowpos = ''
    slowe = 0
    slowm = 200
    slowdec = 1
    def __init__(s, **kw):
        for k, v in kw.items():
            assert hasattr(Cfg, k), k
            setattr(s, k, v)

QUADS = {"hold": 1, "holdm": 3, "pk": 9, "salu": 1, "wait": 1, "bar": 1, "nop": 1, "valu": 1, "trans": 2, "dsr": 2, "dsw": 3, "dma": 3, "vld": 3, "vst": 3}
ORDER = {"hold": 0, "holdm": 1, "pk": 2, "salu": 0, "wait": 0, "bar": 0, "nop": 0, "dsr": 1, "dsw": 1, "dma": 1, "vld": 1, "vst": 1, "valu": 2, "trans": 2}
class Stream:
    def __init__(s):
        s.m = []; s.g = []; s.pos = {}; s.flip = set()
    def add(s, ins, key=None):
        if key is not None: s.pos[key] = len(s.m)
        s.m.append(ins); s.g.append([])
    def fits(s, i, ins, two_ds=False):
        g = s.g[i] + [ins]
        nds = sum(x.kind == "dsr" for x in g)
        if nds > (2 if two_ds else 1): return False
        q = sum(QUADS[x.kind] for x in g) - (1 if nds == 2 else 0)
        v = sum(QUADS[x.kind] for x in g if x.kind in ("valu", "trans"))
        return q <= 3 and v <= 2
    def put(s, i, ins): s.g[i].append(ins); return i
    def place(s, ins, lo, hi, pref=None):
        if pref:
            for i in range(lo, hi + 1):
                if pref(s.g[i]) and s.fits(i, ins): return s.put(i, ins)
        for i in range(lo, hi + 1):
            if s.fits(i, ins): return s.put(i, ins)
        for i in range(lo, hi + 1):
            if s.fits(i, ins, True): return s.put(i, ins)
        raise RuntimeError(f"cannot place {ins.text} in [{lo},{hi}]")
    def late(s, ins, lo, hi):
        for i in range(hi, lo - 1, -1):
            if s.fits(i, ins): return s.put(i, ins)
        return s.put(hi, ins)
    def spread(s, lst, lo, hi, asap=False):
        lst = [x if isinstance(x, tuple) else (x, 0) for x in lst]
        chain([x for x, _ in lst])
        n = sum(x.kind != "pk" for x, _ in lst); cur = lo; npk = 0
        dm = [max(d, 1) if k and ORDER[x.kind] < ORDER[lst[k - 1][0].kind] else d for k, (x, d) in enumerate(lst)]
        for k, (ins, _) in enumerate(lst):
            a = cur + dm[k]
            lim = hi - sum(dm[k + 1:])
            assert a <= lim, f"spread overflow {ins.text} {a} > {lim}"
            tgt = min(lim, max(a, lo + ((k - npk) * (hi - lo + 1)) // n))
            if asap: tgt = lim
            if ins.kind == "pk": s.put(a, ins); cur = a; npk += 1; continue
            i = next((j for j in range(a, tgt + 1) if s.fits(j, ins)), None)
            if i is None:
                i = tgt
                if ORDER[ins.kind] == 1:
                    i = next((j for j in range(tgt, min(tgt + 3, lim) + 1) if not any(ORDER[y.kind] == 1 for y in s.g[j])), tgt)
            s.put(i, ins); cur = i
        return cur
    def srt(s, i):
        if any(getattr(x, "inorder", False) for x in s.g[i]): return list(s.g[i])
        if i in s.flip: return sorted(s.g[i], key=lambda x: {0: 0, 1: 2, 2: 1}[ORDER[x.kind]])
        return sorted(s.g[i], key=lambda x: ORDER[x.kind])
    def emit(s, lo, hi):
        out = []
        if lo > 0: out += [x for x in s.srt(lo - 1) if ORDER[x.kind] > 0]
        for i in range(lo, hi):
            if s.m[i] is not None: out.append(s.m[i])
            out += [x for x in s.srt(i) if i < hi - 1 or hi == len(s.m) or ORDER[x.kind] == 0]
        return out

def dma(cfg, kv, S, j):
    base = (KB if kv == "K" else VB) + (S & 1) * 2 * TS + j * (PS - 1024)
    srd = sKS if kv == "K" else sVS
    return [salu(f"s_add_u32 m0, s{sM0}, {base}", wr={("s", "m0")}),
            I(f"buffer_load_dwordx4 v{vLin}, s[{srd}:{srd+3}], s{sKV} offen{off(1024*j)} {cfg.nt} lds", "dma",
              rd=R("v", vLin) | {("s", "m0")}, tag=(kv, S, j), lds=("w", (kv, S & 1), (kv, S)))]
def kv_step(cfg, S):
    d = 16384
    if S == 16 and not cfg.adj: d = 16384 + 255 * 262144
    return salu(f"s_add_u32 s{sKV}, s{sKV}, {d}")
def kread(e, S, r, kb, s): return dsr128("a", aK + 32 * r + 16 * kb + 4 * s, vK, (2 * (S & 1) + (e ^ r)) * TS + 512 * kb + 64 * s, ("Kr", S, r), ("r", ("K", S & 1), ("K", S)))
def vread(e, S, r, dt, kb): return dsrtr("a", aV + 32 * r + 4 * dt + 2 * kb, vV, (2 * (S & 1) + (e ^ r)) * TS + 512 * kb + 32 * dt, ("Vr", S, r, dt >> 2), ("r", ("V", S & 1), ("V", S)))
def qoff(q): return (q >> 1) * TS + (q & 1) * 512
def unpark(v, a): return valu(f"v_accvgpr_read_b32 v{v}, a{a}", R("a", a), R("v", v))
def qreads(h, q):
    if q == X: return [unpark(TSC, aQx)] + [dsr128("a", aQ + 16 * q + 4 * s, TSC, 64 * s, ("Qr", h, q), ("r", "QO", ("Q", h), q)) for s in range(4)]
    return [dsr128("a", aQ + 16 * q + 4 * s, vQ, qoff(q) + 64 * s, ("Qr", h, q), ("r", "QO", ("Q", h), q)) for s in range(4)]
def k0reads(h): return [unpark(TSC + 2, aK0), unpark(TSC + 3, aSGN)] + [dsr128("v", T16 + 4 * s, TSC + 2, 64 * s, ("K0r", h), ("r", ("K", 0), ("K", 16 * h))) for s in range(4)]
def k0neg(i): return valu(f"v_bitop3_b32 v{T16+i}, v{T16+i}, v{TSC+3}, s{sMODE} bitop3:0x28", R("v", T16 + i) | R("v", TSC + 3), R("v", T16 + i))
def negm_init(h, q, r): return valu(f"v_accvgpr_read_b32 v{NEGM+4*q+r}, a{aSV+5*h+q}", R("a", aSV + 5 * h + q), R("v", NEGM + 4 * q + r))
def negm_mfma(q, s): return mfma("v", NEGM + 4 * q, "v", T16 + 4 * s, "a", aQ + 16 * q + 4 * s, NEGM + 4 * q)
def scale_reg(src, t, packed):
    o = [valu(f"v_lshlrev_b32 v{t}, 16, v{src}", R("v", src), R("v", t)),
         valu(f"v_and_b32 v{t+1}, s{sHI}, v{src}", R("v", src), R("v", t + 1))]
    if packed:
        o.append(valu(f"v_pk_mul_f32 v[{t}:{t+1}], v[{t}:{t+1}], s[{sC}:{sC+1}]", R("v", t, 2), R("v", t, 2)))
    else:
        o.append(valu(f"v_mul_f32 v{t}, s{sC}, v{t}", R("v", t), R("v", t)))
        o.append(valu(f"v_mul_f32 v{t+1}, s{sC}, v{t+1}", R("v", t + 1), R("v", t + 1)))
    o.append(valu(f"v_cvt_pk_bf16_f32 v{src}, v{t}, v{t+1}", R("v", t, 2), R("v", src)))
    return o
def scale_piece(src, t):
    c = [scale_reg(src + r, t + 2 * r, True) for r in range(4)]
    return [x for r in range(4) for x in c[r][:2]] + [c[r][2] for r in range(4)] + [c[r][3] for r in range(4)]
def stamp(cfg, k, pro=False):
    if bool(cfg.pst) != pro: return []
    op = "s_memrealtime" if cfg.rt else "s_memtime"
    return [I(f"{op} s[{sST+2*k}:{sST+2*k+1}]", "salu")] if cfg.stamps > k else []
def ostore(cfg, buf, voff, soff, o, tag):
    return I(f"buffer_store_dwordx4 {rs('v',buf,4)}, v{voff}, s[{sOS}:{sOS+3}], s{soff} offen{off(o)} {cfg.snt}", "vst", rd=R("v", voff) | R("v", buf, 4), tag=tag)

def muls(b, n, packed):
    if packed: return [valu(f"v_pk_mul_f32 v[{b+k}:{b+k+1}], v[{b+k}:{b+k+1}], v[{vRC}:{vRC+1}] op_sel_hi:[1,0]", R("v", b + k, 2) | R("v", vRC), R("v", b + k, 2), "pk") for k in range(0, n, 2)]
    return [valu(f"v_mul_f32 v{b+k}, v{vRC}, v{b+k}", R("v", b + k) | R("v", vRC), R("v", b + k)) for k in range(n)]
def cvts(b): return [valu(f"v_cvt_pk_bf16_f32 v{b}, v{b}, v{b+1}", R("v", b, 2), R("v", b)), valu(f"v_cvt_pk_bf16_f32 v{b+1}, v{b+2}, v{b+3}", R("v", b + 2, 2), R("v", b + 1))]
def q_head(q):
    return [valu(f"v_accvgpr_read_b32 v{vT0}, a{aL+4*q}", R("a", aL + 4 * q), R("v", vT0)),
            valu(f"v_rcp_f32 v{vRC}, v{vT0}", R("v", vT0), R("v", vRC), "trans"),
            valu(f"v_add_f32 v{vG}, v{vG}, v{vT0}", R("v", vG) | R("v", vT0), R("v", vG))]
def q_stage(h, q, packed):
    o = muls(OB + 32 * q, 32, True) if packed else []
    for dt in range(8):
        b = OB + 32 * q + 4 * dt
        o += ([] if packed else muls(b, 4, False)) + cvts(b) + [dsw(2, vOw, b, qoff(q) + 32 * dt, ("Ow", h), ("w", "QO", ("O", h), q))]
    return o
def q_out(cfg, q, lat=8):
    b = OB + 32 * q
    o = [dsr128("v", b + 4 * i, vOr2, qoff(q) + i * PS, ("Op", q, i), ("r", "QO", ("O", 1), q)) for i in range(4)]
    if q == 2: o.append(salu(f"s_add_u32 s{sO1}, s{sO1}, 8192"))
    for i in range(4):
        o += [(wait(lg=[("Op", q, i)]), lat if i == 0 else 0), ostore(cfg, b + 4 * i, vOg, sO1, 1024 * i + 512 * (q & 1), ("Os", 1))]
    return o
def x_send(e, h):
    o = [unpark(TSC, aXw), unpark(TSC + 1, aXl), valu(f"v_accvgpr_read_b32 v{vLx}, a{aL+4*X}", R("a", aL + 4 * X), R("v", vLx))]
    o += [dsw(4, TSC, OB + 32 * X + 16 * (1 - e) + 4 * i, 1024 * i, ("Xw", h), ("w", "X", ("X", h))) for i in range(4)]
    o += [dsw(1, TSC + 1, vLx, 0, ("Xw", h), ("w", "X", ("X", h))), unpark(TSC, aXr), unpark(TSC + 1, aXlr)]
    return o
def x_recv(e, h):
    snd = OB + 32 * X + 16 * (1 - e)
    o = [I(f"ds_read_b32 v{vLp}, v{TSC+1}", "dsr", rd=R("v", TSC + 1), wr=R("v", vLp), tag=("Xr", h), lds=("r", "X", ("X", h)))]
    o += [dsr128("v", snd + 4 * i, TSC, 1024 * i, ("Xr", h), ("r", "X", ("X", h))) for i in range(4)]
    return o + [unpark(TSC, aOxw)]
def x_stage(e, h, packed):
    kp = OB + 32 * X + 16 * e; snd = OB + 32 * X + 16 * (1 - e)
    o = [wait(lg=[("Xr", h)]), valu(f"v_add_f32 v{vLx}, v{vLx}, v{vLp}", R("v", vLx, 2), R("v", vLx)),
         valu(f"v_rcp_f32 v{vRC}, v{vLx}", R("v", vLx), R("v", vRC), "trans"),
         valu(f"v_add_f32 v{vG}, v{vG}, v{vLx}", R("v", vG) | R("v", vLx), R("v", vG))]
    if packed:
        o += [valu(f"v_pk_add_f32 v[{kp+k}:{kp+k+1}], v[{kp+k}:{kp+k+1}], v[{snd+k}:{snd+k+1}]", R("v", kp + k, 2) | R("v", snd + k, 2), R("v", kp + k, 2), "pk") for k in range(0, 16, 2)]
        o += muls(kp, 16, True)
    for i in range(4):
        if not packed:
            o += [valu(f"v_add_f32 v{kp+4*i+k}, v{kp+4*i+k}, v{snd+4*i+k}", R("v", kp + 4 * i + k) | R("v", snd + 4 * i + k), R("v", kp + 4 * i + k)) for k in range(4)]
            o += muls(kp + 4 * i, 4, False)
        o += cvts(kp + 4 * i) + [dsw(2, TSC, kp + 4 * i, 32 * i, ("Ow", h), ("w", "QO", ("O", h), X))]
    return o
def x_out(cfg, e):
    snd = OB + 32 * X + 16 * (1 - e)
    o = [unpark(TSC, aOxr), unpark(TSC + 1, aOxg)]
    o += [dsr128("v", snd + 4 * k, TSC, 4 * k * PS, ("Op", X, k), ("r", "QO", ("O", 1), X)) for k in range(2)]
    o += [(wait(lg=[("Op", X, 0)]), 6), ostore(cfg, snd, TSC + 1, sO1X, 0, ("Os", 1)), salu(f"s_add_u32 s{sO1X}, s{sO1X}, 4096"),
          wait(lg=[("Op", X, 1)]), ostore(cfg, snd + 4, TSC + 1, sO1X, 0, ("Os", 1))]
    return o

def start_ops():
    kv = lambda c, S: [(c, S, j) for j in range(4)]
    return kv("K", 0) + [("X", 0), ("X", 1)] + [("G", j) for j in range(8)] + kv("V", 0) + [("G", j) for j in range(8, 16)] + kv("K", 1) + kv("V", 1)
def land(op): return OB + 32 + 4 * op[1] if op[0] == "X" else OB + 64 + 4 * op[1]
def op_tag(op): return ("Ql", 0) + op if op[0] in "XG" else op
def issue_op(cfg, op, pad=True):
    if op[0] in "XG":
        j = op[1]; so = sQX if op[0] == "X" else sQG
        r = [salu(f"s_add_u32 s{sQG}, s{sQG}, 4096")] if (op[0] == "G" and j and j % 4 == 0) else []
        return r + [I(f"buffer_load_dwordx4 {rs('v',land(op),4)}, v{vLin}, s[{sQA}:{sQA+3}], s{so} offen{off(1024*(j&3))} {cfg.nt}", "vld",
                      rd=R("v", vLin), wr=R("v", land(op), 4), tag=op_tag(op))]
    kv, S, j = op
    m0, ld = dma(cfg, kv, S, j)
    return ([kv_step(cfg, S)] if (kv == "K" and j == 0 and S) else []) + [m0, nop(0), ld]
def start_step(cfg, i, tmp):
    ops = start_ops(); op = ops[i]
    o = [wait(vm=[op_tag(op)])]
    if i + cfg.W < len(ops): o += issue_op(cfg, ops[i + cfg.W])
    if op[0] == "X": o += scale_piece(land(op), tmp) + [dsw(4, vLx, land(op), PS * op[1], ("Qw", 0, X), ("w", "QO", ("Q", 0), X))]
    if op[0] == "G": o += scale_piece(land(op), tmp) + [dsw(4, vT0, land(op), PS * op[1], ("Qw", 0, op[1] >> 3), ("w", "QO", ("Q", 0), op[1] >> 3))]
    return o

QK0 = {X: 0, 0: 26, 1: 51, 2: 85, 3: 119}
PV0 = {X: 42, 0: 67, 1: 101, 2: 135, 3: 161}
CH0 = {X: 0, 0: 2, 1: 6, 2: 10, 3: 14}
EXP0 = {0: 34, 1: 66, 2: 97, 3: 128}
UO = (X, 0, 1, 2, 3)
def sbuf(q, c): return SB + 4 * ((CH0[q] + c) % 6)
def pbuf(S, q, r): return PB + 8 * ((5 * S + UO.index(q)) & 1) + 4 * r

def loops(cfg, h):
    b0 = 1 + (cfg.peel if h == 0 else 0)
    if h == 0 and cfg.lev[2] != cfg.lev[3] and b0 < cfg.split < 7: return [(b0, cfg.split), (cfg.split, 7)]
    return [(b0, 7)]

def main_stream(cfg, e):
    st = Stream()
    def qk(S, q):
        if S % 16 == 0 and not (S == 0 and q == X):
            if S == 0 and q == 2: st.add(None, key="g1a"); st.add(None, key="g1b")
            for s in range(4): st.add(negm_mfma(q, s), key=("n", S, q, s))
        for c in range(2 if q == X else 4):
            for s in range(4):
                st.add(mfma("v", sbuf(q, c), "a", aK + 16 * c + 4 * s, "a", aQ + 16 * q + 4 * s, NEGM + 4 * q if s == 0 else sbuf(q, c)), key=153 * S + QK0[q] + 4 * c + s)
    def pv(S, q):
        k = 153 * S + PV0[q]; z = S % 16 == 0
        for dt in range(9):
            for r in range(1 if q == X else 2):
                dc, d, a = ("v", OB + 32 * q + 4 * dt, aV + 32 * r + 4 * dt) if dt < 8 else ("a", aL + 4 * q, aONE)
                st.add(mfma(dc, d, "a", a, "v", pbuf(S, q, r), None if (z and r == 0) else d), key=k); k += 1
    for S in range(33):
        if S < 32: qk(S, X)
        else:
            for k in range(8): st.add(None, key=153 * S + k)
        if S: pv(S - 1, 3)
        if S == 32: break
        qk(S, 0)
        if S == 0: st.add(None, key="v0a"); st.add(None, key="v0b")
        pv(S, X)
        for q in (1, 2, 3): qk(S, q); pv(S, q - 1)
    P = st.pos
    G = lambda S, r: P[153 * S + r]
    last = len(st.m) - 1
    clusters = []
    def level(a, z):
        b = a // 306
        if a < 85 or (z + 1) // 306 != b or a >= 153 * 31: return 0
        return int(cfg.lev[1 if b == 0 else 2 if b < cfg.split else 3 if b < 7 else 4 if a < 153 * 15 else 5 if b > 8 else 0].replace("L", "0"))
    for S in range(32):
        for q in UO:
            if q == X: eg, cg = ([9 + 3 * i for i in range(8)], [13, 19, 25, 31]) if S else (list(range(26, 34)), [35, 35, 39, 39])
            else:
                eg = [EXP0[q] + 2 * i for i in range(16)]; cg = [EXP0[q] + 4 * i + 3 for i in range(8)]
                if q in (1, 2): cg[7] += 1
            ex = []; cv = []
            for i, g in enumerate(eg):
                r = sbuf(q, i >> 2) + (i & 3)
                ex.append(valu(f"v_exp_f32 v{r}, v{r}", R("v", r), R("v", r), "trans")); st.put(G(S, g), ex[-1])
            for i, g in enumerate(cg):
                r = sbuf(q, i >> 1) + 2 * (i & 1); d = pbuf(S, q, i >> 2) + (i & 3)
                cv.append(valu(f"v_cvt_pk_bf16_f32 v{d}, v{r}, v{r+1}", R("v", r, 2), R("v", d))); st.put(G(S, g), cv[-1])
            for c in range(len(eg) // 4):
                lv = level(153 * S + eg[4 * c], 153 * S + cg[2 * c + 1])
                if ((CH0[q] + c + 1) * lv) // 9 != ((CH0[q] + c) * lv) // 9:
                    clusters.append(([(x, G(S, g)) for x, g in zip(ex[4 * c: 4 * c + 4] + cv[2 * c: 2 * c + 2], eg[4 * c: 4 * c + 4] + cg[2 * c: 2 * c + 2])],
                                     G(S, eg[4 * c + 1]), G(S, eg[4 * c + 3])))
    for k in (2, 6): st.put(G(32, k), nop(0))
    st.put(G(32, 7), nop(1))
    bounds = {(h, b): (G(16 * h + 2 * b, 0) if (h, b) != (1, 0) else P[("n", 16, X, 0)]) for h in range(2) for b in range(8)}
    bounds[(0, 8)] = bounds[(1, 0)]; bounds[(1, 8)] = last + 1
    hasexp = lambda g: any(x.kind == "trans" for x in g)
    hascvt = lambda g: any(x.kind == "valu" for x in g)
    noscc = set()
    for h in range(2):
        b0 = 1 + (cfg.peel if h == 0 else 0)
        for b1, b2 in loops(cfg, h):
            for b in range(b1, b2):
                z = bounds[(h, b + 1)]
                st.put(z - 1, I(f"s_cbranch_scc1 L_m{h}{b1}{e}", "salu")); st.put(z - 3, salu(f"s_cmp_lg_u32 s{sCNT}, {7 - b2}")); st.put(z - 5, salu(f"s_sub_u32 s{sCNT}, s{sCNT}, 1"))
                noscc |= {z - 3, z - 2, z - 1}
        st.put(bounds[(h, b0)] - 5, salu(f"s_mov_b32 s{sCNT}, {7 - b0}"))
        for k in (3, 1): st.put(bounds[(h, b0)] - k, I("", "hold"))
    def safe_salu(ins, lo, hi):
        for pref in (hasexp, lambda g: True):
            for i in range(lo, hi + 1):
                if i not in noscc and pref(st.g[i]) and st.fits(i, ins): return st.put(i, ins)
        raise RuntimeError("salu " + ins.text)
    BV = {}; BK = {}; BX = {}; BF = {}; bars = []
    def barrier(g, vm, lg, fix=False):
        i = st.place(wait(vm=vm, lg=lg), g, g + 3, hasexp)
        i = st.place(bar(), i + 1, i + 4, hasexp) if not fix else st.put(i + 2, bar())
        bars.append(i); return i
    for k in range(14, 18):
        for x in start_step(cfg, k, None): st.put(P["v0a"], x); x.inorder = True
    for x in (wait(lg=[("Kr", 0), ("K0r", 0)]), bar()): st.put(P["v0a"], x); x.inorder = True
    BV[0] = P["v0a"]; bars.append(BV[0])
    for S in range(32):
        h = S >> 4
        any_ = {1: [("Qr", 0)], 14: [("Qw", 1)], 17: [("Ow", 0), ("Xr", 0)]}.get(S, [])
        if S: BV[S] = barrier(G(S, cfg.BV), [("V", S)], [("Kr", S), ("K0r", h)], cfg.BV == 5)
        if S % 16 == 15: BX[h] = BF[S] = barrier(G(S, cfg.BF or 72), None, [("Xw", h), ("Qr", h + 1, X), ("Or", h - 1)] + ([("Vr", S)] if cfg.BF else []))
        elif cfg.BF and cfg.sw <= S < 30: BF[S] = barrier(G(S, cfg.BF if S else 86), None, [("Vr", S)])
        if S < 31: BK[S + 1] = barrier(G(S, cfg.BK), [("K", S + 1)], [("Vr", S)] + any_)
    for S in range(1, 32):
        if not st.g[G(S, 7)]: st.put(G(S, 7), wait(lg=[("Kr", S)]))
    if cfg.trace:
        for i in sorted(set(bars) - set(BF.values())):
            for t in ("s_mov_b32 m0, s98", f"v_writelane_b32 v{vTR0}, s94, m0", f"v_writelane_b32 v{vTR1}, s96, m0", "s_add_u32 s98, s98, 1", "s_memrealtime s[94:95]", "s_memtime s[96:97]"):
                st.g[i].append(valu(t, set(), set()))
    for k in range(16): st.put(P["v0a"], vread(e, 0, 0, k >> 1, k & 1))
    st.put(P["v0b"], wait(lg=[("Vr", 0, 0, 0)]))
    st.put(G(0, 45), wait(lg=[("Vr", 0, 0, 1)]))
    st.late(wait(lg=[("Qr", 0, 0)]), G(0, 4), G(0, 7)); st.late(wait(lg=[("Kr", 0, 1)]), G(0, 30), G(0, 33))
    lo, hi = G(0, 43), G(0, 84)
    for k in range(8):
        g = lo + (hi - lo) * (k + 1) // 8 if k < 7 else P["g1a"]
        while st.g[g]: g += 1
        for x in start_step(cfg, 18 + k, OB + 64): st.put(g, x); x.inorder = True
    for x in qreads(0, 2) + qreads(0, 3): st.put(P["g1a"], x); x.inorder = True
    for op in start_ops()[26 + cfg.W:]:
        for x in issue_op(cfg, op): st.put(P["g1a"], x); x.inorder = True
    st.put(P["g1b"], wait(lg=[("Qr", 0, 2)]))
    st.late(wait(lg=[("Qr", 0, 3)]), G(0, 110), G(0, 118))
    for S in range(31):
        w0, w1 = (cfg.kd0, cfg.kd1), (cfg.vd0, cfg.vd1)
        if S == 0: plan = [("K", 2, cfg.k20, cfg.k20 + 16)] + ([("V", 2, 106, 122)] if cfg.sw == 0 else [])
        elif S < cfg.sw: plan = [("V", S + 1) + w0, ("K", S + 2) + w1]
        elif S == cfg.sw: plan = [("V", S + 1, 46, 66), ("K", S + 2, 66, 90), ("V", S + 2, 90, 114)]
        else: plan = [("K", S + 2) + w0, ("V", S + 2) + w1]
        cur = 0
        for kv, S2, a, b in plan:
            if S2 > 31: continue
            cur = max(cur, BV[S] + 1) if (kv == "K" or S2 == S + 1) else max(cur, (BF[S] if cfg.BF else BK[S + 1]) + 1)
            for j in range(4):
                g = max(cur, G(S, a + (b - a) * j // 4 + (cfg.eshift * e if S and len(plan) < 3 else 0)))
                if kv == "K" and j == 0: g = safe_salu(kv_step(cfg, S2), max(cur, g - 4), g + 8)
                if cfg.nodma: continue
                m0, ld = dma(cfg, kv, S2, j)
                i = safe_salu(m0, g, g + 12)
                cur = st.place(ld, i + 1, i + 10) + 1
    anchors = {}
    def qload(j, buf, o): return I(f"buffer_load_dwordx4 {rs('v',buf,4)}, v{vLin}, s[{sQB_}:{sQB_+3}], s{sQOFF} offen{off(o)} {cfg.nt}", "vld",
                                   rd=R("v", vLin), wr=R("v", buf, 4), tag=("Ql", 1, j))
    sh = cfg.eshift * e
    st.place(qload(0, T16, 0), G(1, 68 + sh), G(1, 100))
    for b in range(1, 7):
        j = 3 * (b - 1)
        st.place(qload(j + 1, T16 + 4, 1024), G(2 * b, sh), G(2 * b, 20))
        st.place(qload(j + 2, T16 + 8, 2048), G(2 * b, 68 + sh), G(2 * b, 100))
        lo = st.place(qload(j + 3, T16, 3072), G(2 * b + 1, sh), G(2 * b + 1, 20))
        safe_salu(salu(f"s_add_u32 s{sQOFF}, s{sQOFF}, 3072"), lo + 1, lo + 20)
        for i, g in enumerate((106, 153 + 68, 153 + 106)):
            anchors[(b, i)] = st.place(dsw(4, vAux, T16 + 4 * i, PS * i, ("Qw", 1), ("w", "QO", ("Q", 1))), G(2 * b, g + sh), G(2 * b, g + 30))
    onum = {0: int(cfg.opat[1]), 7: int(cfg.opat[3])}; onum.update({b: int(cfg.opat[2]) for b in range(1, 7)})
    assert sum(onum.values()) == 18 and onum[0] == 0
    osite = []; j = 0
    for b in range(1, 8):
        n = onum[b]
        pos = {1: (108,), 2: (108, 261), 3: (108, 153, 261)}[n] if b < 7 else [60 + 120 * i // max(n, 1) for i in range(n)]
        for i in range(n):
            lo = G(16 + 2 * b, pos[i] + cfg.eshift * e)
            lo = st.place(ostore(cfg, T16 + 4 * (i % 4), vLin, sOOFF, 1024 * (i % 4), ("Os", 0, j)), lo, lo + 24)
            osite.append((b, i, n, j, lo)); j += 1
            if i == n - 1 or i % 4 == 3: safe_salu(salu(f"s_add_u32 s{sOOFF}, s{sOOFF}, {1024 * (i % 4 + 1)}"), lo + 1, lo + 12)
    def reads(lst):
        lo = 0
        for k, (r, a, z) in enumerate(lst):
            a = max(a, lo)
            def room(pred, frm):
                cur = frm
                for (_, a2, z2) in lst[k:]:
                    cur = next((i for i in range(max(cur, a2), z2 + 1) if pred(i)), None)
                    if cur is None: return False
                    cur += 1
                return True
            if room(lambda i: hascvt(st.g[i]) and st.fits(i, r), a): lo = st.place(r, a, z, hascvt) + 1
            elif room(lambda i: st.fits(i, r), a): lo = st.place(r, a, z) + 1
            elif k and a - 1 >= lst[k][1] and st.fits(a - 1, r, True): lo = st.put(a - 1, r) + 1
            else:
                i = next((i for i in range(a, z + 1) if st.fits(i, r, True)), None)
                lo = st.put(min(a, z) if i is None else i, r) + 1
    reads([(vread(e, 0, 1, k >> 1, k & 1), G(0, 42), G(0, 58 + (k >> 3) * 8)) for k in range(16)])
    for S in range(32):
        if S:
            reads([(vread(e, S, 0, k >> 1, k & 1), max(BV[S] + 1, G(S, 8 + (k & 14))), G(S, 33 + (k >> 3) * 4)) for k in range(16)] +
                  [(vread(e, S, 1, k >> 1, k & 1), G(S, 9 + (k & 14)), G(S, 58 + (k >> 3) * 8)) for k in range(16)])
            st.late(wait(lg=[("Vr", S, 0, 0)]), G(S, 38), G(S, 41)); st.late(wait(lg=[("Vr", S, 0, 1)]), G(S, 42), G(S, 45))
        st.late(wait(lg=[("Vr", S, 1, 0)]), G(S, 63), G(S, 67)); st.late(wait(lg=[("Vr", S, 1, 1)]), G(S, 71), G(S, 75))
        if S < 31:
            reads([(kread(e, S + 1, j >> 3, (j >> 2) & 1, j & 3), max(BK[S + 1] + 1, G(S, 119 + j)), G(S, 143 if j < 8 else 149)) for j in range(16)])
            st.late(wait(lg=[("Kr", S + 1, 0)]), G(S, 146), G(S, 151))
    for b in range(1, 7):
        for i in range(3):
            buf = T16 + 4 * i
            lo = (G(2 * b, 26), G(2 * b + 1, 6), G(2 * b + 1, 62))[i]
            if cfg.qpk:
                c = scale_piece(buf, T16 + 12)
                for x in c[8:12]: x.kind = "pk"
            else: c = [x for r in range(4) for x in scale_reg(buf + r, TSC + 2 * (r & 1), False)]
            st.spread([wait(vm=[("Ql", 1, 3 * (b - 1) + i)])] + c, lo, anchors[(b, i)] - 1 if i != 1 else G(2 * b + 1, 61), True)
        st.spread([valu(f"v_add_u32 v{vAux}, {3*PS}, v{vAux}", R("v", vAux), R("v", vAux))], anchors[(b, 2)] + 1, bounds[(0, b + 1)] - 2, True)
    st.spread([valu(f"v_bfe_u32 v{TSC}, v{vLin}, 8, 1", R("v", vLin), R("v", TSC)), valu(f"v_lshlrev_b32 v{TSC}, 4, v{TSC}", R("v", TSC), R("v", TSC)),
               valu(f"v_subrev_u32 v{vAux}, {18*PS}, v{vAux}", R("v", vAux), R("v", vAux)),
               valu(f"v_xor_b32 v{vAux}, v{TSC}, v{vAux}", R("v", vAux) | R("v", TSC), R("v", vAux))], G(14, 60), G(14, 110), True)
    lo = 0
    for b, i, n, j, a in osite:
        lo = st.place(dsr128("v", T16 + 4 * (i % 4), vAux, PS * i, ("Or", 0, j), ("r", "QO", ("O", 0))), max(a - 40, lo + 1), a - 10)
        if i == n - 1 and b < 7: lo = st.spread([valu(f"v_add_u32 v{vAux}, {n*PS}, v{vAux}", R("v", vAux), R("v", vAux))], lo + 1, bounds[(1, b + 1)] - 2, True)
        st.late(wait(lg=[("Or", 0, j)]), a - 6, a - 1)
    one = lambda x: x[0] if isinstance(x, tuple) else x
    st.place(wait(vm=[("Ql", 1, 18)]), G(15, 80), G(15, 110), hasexp)
    qrd = {}
    for q in UO:
        use = P[("n", 16, q, 0)]
        lo = G(15, QK0[q] + (7 if q == X else 15))
        qrd[q] = qreads(1, q)
        st.spread(qrd[q], lo, lo + 30, True)
        st.spread([negm_init(1, q, r) for r in range(4)], lo + 2, min(lo + 60, use - 3), True)
        st.late(wait(lg=[("Qr", 1, q)]), use - 4, use - 1)
    k0 = k0reads(1)
    st.spread(k0[:2], G(15, 100), BK[16], True)
    k0[2].after.append(k0[1])
    st.spread(k0[2:] + [(wait(lg=[("K0r", 1)]), 8)] + [k0neg(i) for i in range(16)], BK[16] + 1, P[("n", 16, X, 0)] - 3)
    def seq(chains, cuts, asap=False):
        for k, c in enumerate(chains):
            if k: one(c[0]).after.append(one(chains[k - 1][-1]))
            st.spread(c, cuts[k] + (k > 0), cuts[k + 1], asap)
    done = lambda S, q: G(S, PV0[q] + (8 if q == X else 17)) + 5
    xs = {}
    for h in range(2):
        S = 16 * h + 15
        xs[h] = (x_send(e, h), x_recv(e, h), x_stage(e, h, cfg.pk))
        if h == 0: xs[h][0][0].after.append(qrd[X][-1])
        st.spread(xs[h][0], done(S, X), BX[h] - 5)
        xs[h][1][0].after.append(xs[h][0][-1]); xs[h][2][0].after.append(xs[h][1][-1])
        st.spread(xs[h][1], BX[h] + 1, BX[h] + 8)
    def stg(h, q):
        c = q_head(q) + q_stage(h, q, cfg.pk)
        if h == 0: next(x for x in c if x.kind == "dsw").after.append(qrd[q][-1])
        return c
    use = lambda q: G(16, PV0[q]) - 1
    cuts = [BX[0] + 16, G(15, 112), G(16, 8), G(16, 66), G(16, 116), use(3)]
    for k, q in enumerate(UO): assert cuts[k] >= done(15, q) and cuts[k + 1] <= use(q), (q, cuts)
    seq([xs[0][2], stg(0, 0), stg(0, 1), stg(0, 2), stg(0, 3)], cuts)
    cuts = [BX[1] + 14, G(31, 100), done(31, 1) + 2, done(31, 2) + 3, last - 1]
    c = [xs[1][2], stg(1, 0), stg(1, 1), stg(1, 2)]
    w = [(cuts[0], cuts[1]), (cuts[1] + 1, cuts[2]), (cuts[2] + 1, G(31, 148)), (cuts[3], last - 1)]
    for k in range(4):
        if k: one(c[k][0]).after.append(one(c[k - 1][-1]))
        st.spread(c[k], *w[k])
    xo = x_out(cfg, e); xo[0].after.append(xs[1][2][-1])
    seq([xo, q_out(cfg, 0, 6), q_out(cfg, 1, 6)], [cuts[1] + 1, cuts[2], G(31, 148), last - 6])
    for x in q_out(cfg, 2)[:5]: st.put(last, x)
    link = lambda i: st.m[i] is not None and st.m[i + 1] is not None and st.m[i].wr == st.m[i + 1].srcc
    for lst, a, z in clusters:
        g = next((i for i in range(z, a - 1, -1) if not link(i)), z)
        for x, i in lst: st.g[i].remove(x); st.g[g].append(x)
    for x in range(153 * 32):
        if x % 17 == 9 and x in P:
            n = (cfg.slowB if cfg.slowB >= 0 and x >= 153 * 16 else cfg.slowall) + (round(cfg.slowe * (1 - cfg.slowdec * (x - 85) / cfg.slowm)) if 85 <= x < 85 + cfg.slowm else 0)
            if cfg.prof and 85 <= x < 153 * (len(cfg.prof) - 1): n += int(cfg.prof[1 + x // 153], 16)
            n += 2 if n else 0
            g = P[x]
            link = lambda i: st.m[i] is not None and st.m[i + 1] is not None and st.m[i].wr == st.m[i + 1].srcc
            if cfg.slowpos: g = next((i for i in range(g - 5, g + 5) if link(i) == (cfg.slowpos == "i") and len(st.g[i]) >= 1 and st.g[i][-1].kind in ("trans", "valu")), g)
            while n > 0: st.g[g].append(valu(f"s_nop {min(n, 16) - 1}", set(), set())); n -= 16
    if cfg.fneg:
        for i, m in enumerate(st.m):
            if m is not None and m.srcc and m.srcc != m.wr: m.text = m.text.rsplit(",", 1)[0] + ", 0"
    if cfg.fsum:
        for i, m in enumerate(st.m):
            if m is not None and m.text.startswith("v_mfma_f32_16x16x32_bf16 a["):
                pb = min(r[1] for r in m.rd if r[0] == "v")
                st.m[i] = None
                if cfg.fsum == "dot": st.g[i] += [valu(f"v_dot2c_f32_bf16 v{vLp}, v{pb+k}, v{vLx}", set(), set()) for k in range(4)]
        if cfg.fsum in ("pka", "add"):
            for i in range(len(st.g)):
                for x in list(st.g[i]):
                    if x.text.startswith("v_cvt_pk") and PB <= min(r[1] for r in x.wr) < PB + 16:
                        r = min(r[1] for r in x.rd)
                        if cfg.fsum == "add":
                            for k in range(2):
                                y = valu(f"v_add_f32 v{vLp}, v{r+k}, v{vLp}", set(), set())
                                j = next((j for j in range(i, i + 3) if j < len(st.g) and st.fits(j, y) and all(j + 1 != z and not (i < z <= j) for z in bounds.values())), i)
                                st.g[j].append(y)
                        elif r % 4 == 2: st.g[i] += [valu(f"v_pk_add_f32 v[{TSC}:{TSC+1}], v[{r-2+k}:{r-1+k}], v[{TSC}:{TSC+1}]", set(), set()) for k in (0, 2)]
    for g in st.g: g[:] = [x for x in g if x.kind not in ("hold", "holdm")]
    return st, bounds

def tail(cfg):
    one = lambda x: x[0] if isinstance(x, tuple) else x
    o = [unpark(TSC + 2, aFl), nop(2)] + q_head(3)
    o.append(valu(f"v_cmp_nge_f32 vcc, s{sTHR}, v{vG}", R("v", vG), set()))
    o2 = [one(x) for x in q_out(cfg, 2)[5:]]
    for dt in range(8):
        b = OB + 96 + 4 * dt
        o += muls(b, 4, True) + cvts(b) + [dsw(2, vOw, b, qoff(3) + 32 * dt, ("Ow", 1), ("w", "QO", ("O", 1), 3))]
        if dt == 0:
            o += [salu(f"s_or_b32 s{sT}, vcc_lo, vcc_hi"), valu(f"v_mov_b32 v{vT0}, s{sT}", set(), R("v", vT0)), dsw(1, TSC + 2, vT0, 0, ("Fw",), ("w", "F", ("F",)))]
        if dt % 2: o += o2[dt - 1: dt + 1]
    o += [one(x) for x in q_out(cfg, 3)]
    o.append(valu(f"v_mov_b32 v{vT0}, {FB}", set(), R("v", vT0)))
    o += [wait(lg=[("Fw",)]), bar(), dsr128("v", PB, vT0, 0, ("Fr",), ("r", "F", ("F",))), wait(lg=[("Fr",)])]
    o.append(valu(f"v_or3_b32 v{PB}, v{PB}, v{PB+1}, v{PB+2}", R("v", PB, 3), R("v", PB)))
    o.append(valu(f"v_or_b32 v{PB}, v{PB}, v{PB+3}", R("v", PB, 4), R("v", PB)))
    o += [nop(0), valu(f"v_readfirstlane_b32 s{sT}, v{PB}", R("v", PB), set())]
    return chain(o)

def setup(cfg):
    L = []
    A = L.append
    A("s_cmp_ge_u32 s2, 256"); A("s_cbranch_scc1 L_end")
    A("s_load_dwordx4 s[4:7], s[0:1], 0"); A("s_load_dwordx4 s[8:11], s[0:1], 16")
    if cfg.stamps:
        A(f"s_load_dwordx2 s[58:59], s[0:1], {32 if cfg.dbg else 40}")
        A(f"s_memrealtime s[{sST}:{sST+1}]"); A(f"s_memtime s[{sST+4}:{sST+5}]")
    A("v_lshrrev_b32 v16, 6, v0"); A("v_and_b32 v17, 63, v0")
    A(f"v_readfirstlane_b32 s{sW}, v16")
    A(f"v_lshlrev_b32 v{vLin}, 4, v17")
    if cfg.adj: A(f"s_lshl_b32 s{sT}, s2, 1")
    else: A(f"s_mov_b32 s{sT}, s2")
    A(f"s_mul_i32 s{sOA}, s{sT}, 73728"); A(f"s_lshl_b32 s{sKVA}, s{sT}, 18")
    A(f"s_mul_i32 s{sM0}, s{sW}, {4*PS}"); A(f"s_mov_b32 s{sMODE}, -1")
    for d, n in ((sKS, 134217728), (sVS, 134217728), (sOS, 37748736), (sQA, 73728), (sQB_, 18432)):
        A(f"s_mov_b32 s{d+2}, {n}"); A(f"s_mov_b32 s{d+3}, 0x20000")
    for i in range(10): A(f"v_accvgpr_write_b32 a{aSV+i}, 0")
    if cfg.trace: A("s_mov_b32 s98, 0"); A("s_memrealtime s[94:95]"); A("s_memtime s[96:97]")
    A(f"s_mul_i32 s{sT}, s{sW}, 18432"); A(f"s_add_u32 s{sT}, s{sT}, {73728 * (1 if cfg.adj else 256)}")
    A("s_waitcnt lgkmcnt(0)")
    for d, p in ((sKS, 6), (sVS, 8), (sOS, 10)): A(f"s_mov_b64 s[{d}:{d+1}], s[{p}:{p+1}]")
    A(f"s_add_u32 s{sQA}, s4, s{sOA}"); A(f"s_addc_u32 s{sQA+1}, s5, 0")
    A(f"s_add_u32 s{sQB_}, s{sQA}, s{sT}"); A(f"s_addc_u32 s{sQB_+1}, s{sQA+1}, 0")
    return L

def lane_setup(cfg):
    L = []; A = L.append
    eb, xb = cfg.ebit, 1 - cfg.ebit
    park = lambda a, v=21: A(f"v_accvgpr_write_b32 a{a}, v{v}")
    A("v_lshrrev_b32 v16, 6, v0"); A("v_and_b32 v17, 63, v0")
    A("v_lshrrev_b32 v18, 4, v17")
    A("v_and_b32 v19, 7, v17")
    A("v_bfe_u32 v20, v17, 3, 1")
    A(f"v_bfe_u32 v24, v16, {eb}, 1"); A(f"v_bfe_u32 v25, v16, {xb}, 1")
    A(f"v_mul_u32_u24 v21, {PS}, v19"); A("v_lshl_add_u32 v26, v20, 8, v21")
    A(f"v_lshlrev_b32 v21, 4, v18"); park(aK0); A(f"v_add_u32 v{vK}, v26, v21")
    A("v_bfe_u32 v21, v17, 2, 3"); A(f"v_mul_u32_u24 v21, {PS}, v21"); A("v_lshrrev_b32 v22, 5, v17"); A("v_lshl_add_u32 v21, v22, 8, v21")
    A("v_and_b32 v23, 3, v17"); A("v_lshl_add_u32 v21, v23, 3, v21"); A(f"v_add_u32 v{vV}, {VB}, v21")
    A(f"v_mul_u32_u24 v27, {2*TS}, v16"); A(f"v_add_u32 v27, {QB}, v27"); A(f"v_add_u32 v{vQ}, v27, v{vK}")
    A(f"v_add_u32 v{vT0}, v27, v{vLin}")
    A(f"v_mul_u32_u24 v21, {2*PS}, v16"); A(f"v_add_u32 v21, {QB + 8*TS}, v21"); A(f"v_add_u32 v{vLx}, v21, v{vLin}")
    A(f"v_mul_u32_u24 v21, {18*PS}, v16"); A(f"v_add_u32 v21, {QB}, v21"); A(f"v_add_u32 v{vAux}, v21, v{vLin}")
    A(f"v_lshl_add_u32 v21, v25, 9, v{vK}"); A(f"v_add_u32 v21, {QB + 8*TS}, v21"); park(aQx)
    A("v_xor_b32 v21, v22, v20"); A("v_lshl_add_u32 v21, v21, 4, v26"); A("v_and_b32 v23, 1, v18"); A("v_lshl_add_u32 v21, v23, 3, v21")
    A(f"v_add_u32 v{vOw}, v27, v21")
    A("v_lshl_add_u32 v21, v25, 9, v21"); A("v_lshl_add_u32 v21, v24, 7, v21"); A(f"v_add_u32 v21, {QB + 8*TS}, v21"); park(aOxw)
    A(f"v_and_b32 v21, 31, v17"); A("v_lshlrev_b32 v21, 4, v21"); A(f"v_lshl_add_u32 v{vOg}, v22, 12, v21")
    A("v_lshlrev_b32 v23, 4, v23"); A("v_xor_b32 v21, v23, v21"); A(f"v_mul_u32_u24 v23, {4*PS}, v22"); A(f"v_add3_u32 v{vOr2}, v21, v23, v27")
    A(f"v_xor_b32 v21, v19, v20"); A("v_lshlrev_b32 v21, 4, v21"); A("v_lshl_add_u32 v21, v20, 8, v21"); A(f"v_mul_u32_u24 v23, {PS}, v18"); A("v_add_u32 v21, v21, v23")
    A("v_lshl_add_u32 v21, v25, 9, v21"); A("v_lshl_add_u32 v21, v24, 7, v21"); A(f"v_add_u32 v21, {QB + 8*TS}, v21"); park(aOxr)
    A("v_lshlrev_b32 v21, 4, v19"); A("v_lshl_add_u32 v21, v20, 8, v21"); A("v_lshl_add_u32 v21, v18, 10, v21")
    A("v_lshl_add_u32 v21, v25, 9, v21"); A(f"v_lshl_add_u32 v21, v24, 7, v21"); park(aOxg)
    A(f"v_lshl_add_u32 v22, v16, 12, v{vLin}"); A(f"v_add_u32 v21, {XB}, v22"); park(aXw)
    A(f"v_xor_b32 v22, {0x1000 << eb}, v22"); A(f"v_add_u32 v21, {XB}, v22"); park(aXr)
    A(f"v_lshlrev_b32 v21, 2, v0"); A(f"v_add_u32 v21, {XLB}, v21"); park(aXl); A(f"v_xor_b32 v21, {256 << eb}, v21"); park(aXlr)
    A(f"v_lshlrev_b32 v21, 2, v16"); A(f"v_add_u32 v21, {FB}, v21"); park(aFl)
    A(f"v_mov_b32 v21, 0x80008000"); park(aSGN)
    A(f"v_mov_b32 v21, 0x3f803f80")
    if cfg.ones4: A("v_and_b32 v22, 3, v17"); A("v_cmp_eq_u32 vcc, 0, v22"); A("s_nop 1"); A("v_cndmask_b32 v21, 0, v21, vcc")
    for i in range(4): park(aONE + i)
    A(f"v_mov_b32 v{vG}, 0")
    A(f"s_mov_b32 s{sC}, {C_SCALE:#x}"); A(f"s_mov_b32 s{sC+1}, {C_SCALE:#x}"); A(f"s_mov_b32 s{sTHR}, {THR:#x}"); A(f"s_mov_b32 s{sHI}, 0xffff0000")
    hb = 73728 * (1 if cfg.adj else 256)
    A(f"s_mul_i32 s{sT}, s{sW}, 18432"); A(f"s_add_u32 s{sOOFF}, s{sT}, s{sOA}")
    A(f"s_lshl_b32 s{sT}, s{sW}, 14"); A(f"s_add_u32 s{sO1}, s{sT}, s{sOA}"); A(f"s_add_u32 s{sO1}, s{sO1}, {hb}")
    A(f"s_add_u32 s{sO1X}, s{sOA}, {hb + 65536}"); A(f"s_mov_b32 s{sQOFF}, 0")
    return [salu(x) for x in L]

def prologue(cfg):
    o = stamp(cfg, 4, True)
    o += [salu(f"s_lshl_b32 s{sKV}, s{sW}, 12"), salu(f"s_add_u32 s{sKV}, s{sKV}, s{sKVA}"), salu(f"s_lshl_b32 s{sQG}, s{sW}, 14"),
          salu(f"s_lshl_b32 s{sQX}, s{sW}, 11"), salu(f"s_add_u32 s{sQX}, s{sQX}, 65536")]
    for op in start_ops()[:cfg.W]: o += issue_op(cfg, op)
    if cfg.cpf:
        for t in ("s_getpc_b64 s[48:49]", "L_pc:", "s_lshr_b32 s50, s2, 3", "s_and_b32 s50, s50, 3", "s_lshl_b32 s50, s50, 15",
                  "v_lshl_add_u32 v28, v0, 7, s50", "v_min_u32 v28, L_end-L_pc, v28", "v_mov_b32 v29, s49", "v_add_co_u32 v28, vcc, s48, v28", "s_nop 1",
                  "v_addc_co_u32 v29, vcc, 0, v29, vcc"): o.append(salu(t))
        o.append(I(f"global_load_dword v{vLp}, v[28:29], off", "vld", tag=("code",)))
    o += lane_setup(cfg)
    for q in range(5):
        for r in range(4): o.append(negm_init(0, q, r))
    for i in range(7):
        o += start_step(cfg, i, SB)
        if i in (0, 6): o += stamp(cfg, {0: 5, 6: 6}[i], True)
    o.append(wait(lg=[("Qw", 0, X)])); o.append(bar())
    o += k0reads(0) + qreads(0, X)
    return o

def prologue2(cfg, e):
    o = [kread(e, 0, 0, j >> 2, j & 3) for j in range(8)]
    o += start_step(cfg, 7, SB)
    o += [wait(lg=[("K0r", 0)])] + [k0neg(i) for i in range(16)]
    o += [kread(e, 0, 1, j >> 2, j & 3) for j in range(8)]
    for i in range(8, 14): o += start_step(cfg, i, SB)
    o += stamp(cfg, 7, True)
    o += qreads(0, 0) + qreads(0, 1)
    o.append(wait(lg=[("Qr", 0, X), ("Kr", 0, 0)]))
    o += [negm_mfma(X, s) for s in range(4)]
    o += stamp(cfg, 8, True)
    return o

def fallback(cfg):
    L = []; A = L.append
    xb = 1 - cfg.ebit
    A("s_waitcnt vmcnt(0) lgkmcnt(0)"); A("s_barrier")
    A(f"s_mov_b32 s{sMODE}, 0")
    A("v_and_b32 v16, 63, v0"); A("v_lshrrev_b32 v17, 4, v16")
    A("v_and_b32 v18, 7, v16"); A("v_bfe_u32 v19, v16, 3, 1"); A("v_lshl_add_u32 v18, v18, 2, v19")
    A("v_lshlrev_b32 v18, 8, v18"); A("v_lshl_add_u32 v18, v17, 4, v18")
    A("v_and_b32 v19, 15, v16"); A("v_lshlrev_b32 v19, 8, v19"); A("v_lshl_add_u32 v19, v17, 4, v19")
    A(f"s_mov_b32 s{sT+4}, s4"); A(f"s_mov_b32 s{sT+5}, s5"); A(f"s_mov_b32 s{sT+6}, 37748736"); A(f"s_mov_b32 s{sT+7}, 0x20000")
    for h in range(2):
        hq = 73728 * (1 if cfg.adj else 256) * h; hk = 262144 * (1 if cfg.adj else 256) * h
        for q in range(5):
            if q < 4:
                A(f"s_lshl_b32 s{sT}, s{sW}, 14"); A(f"s_add_u32 s{sT}, s{sT}, {hq + (q >> 1) * 8192 + (q & 1) * 512}")
            else:
                A(f"s_bfe_u32 s{sT}, s{sW}, {0x10000 + xb:#x}"); A(f"s_lshl_b32 s{sT}, s{sT}, 9"); A(f"s_add_u32 s{sT}, s{sT}, {hq + 65536}")
            A(f"s_add_u32 s{sT}, s{sT}, s{sOA}")
            for s in range(4): A(f"buffer_load_dwordx4 {rs('v', OB+16*q+4*s, 4)}, v18, s[{sT+4}:{sT+7}], s{sT} offen{off(64*s)}")
        A("s_waitcnt vmcnt(0)")
        for r in range(80):
            for ins in scale_reg(OB + r, TSC + 2 * (r & 1), True): A(ins.text)
        for i in range(5): A(f"v_mov_b32 v{NEGM+i}, 0xff800000")
        A(f"s_add_u32 s{sT}, s{sKVA}, {hk}"); A(f"s_mov_b32 s{sT+1}, 64")
        A(f"L_fb{h}:")
        for s in range(4): A(f"buffer_load_dwordx4 {rs('v', SB+4*s, 4)}, v19, s[{sKS}:{sKS+3}], s{sT} offen{off(64*s)}")
        A("s_waitcnt vmcnt(0)")
        for q in range(5):
            for s in range(4): A(mfma("v", 192 + 4 * q, "v", SB + 4 * s, "v", OB + 16 * q + 4 * s, None if s == 0 else 192 + 4 * q).text)
        A("s_nop 7"); A("s_nop 1")
        for q in range(5):
            A(f"v_max3_f32 v{NEGM+q}, v{NEGM+q}, v{192+4*q}, v{193+4*q}"); A(f"v_max3_f32 v{NEGM+q}, v{NEGM+q}, v{194+4*q}, v{195+4*q}")
        A(f"s_add_u32 s{sT}, s{sT}, 4096"); A(f"s_sub_u32 s{sT+1}, s{sT+1}, 1"); A(f"s_cmp_lg_u32 s{sT+1}, 0"); A(f"s_cbranch_scc1 L_fb{h}")
        for x in (16, 32):
            A(f"v_xor_b32 v20, {x}, v16"); A("v_lshlrev_b32 v20, 2, v20")
            for q in range(5): A(f"ds_bpermute_b32 v{SB+q}, v20, v{NEGM+q}")
            A("s_waitcnt lgkmcnt(0)")
            for q in range(5): A(f"v_max_f32 v{NEGM+q}, v{NEGM+q}, v{SB+q}")
        for q in range(5): A(f"v_xor_b32 v{NEGM+q}, 0x80000000, v{NEGM+q}")
        for q in range(5): A(f"v_accvgpr_write_b32 a{aSV+5*h+q}, v{NEGM+q}")
    A("s_nop 1")
    A("s_branch L_start")
    return L

def match(tag, want): return isinstance(tag, tuple) and any(tag[:len(w)] == w for w in want)
def resolve(tr):
    vm = []; lg = []; vdone = 0; ldone = 0; pend = {}; epoch = 0; ev = []
    for k, ins in enumerate(tr): ins.idx = k
    for ins in tr:
        for a in ins.after: assert a.idx < ins.idx, f"order: {a.text} must precede {ins.text}"
        for r in ins.rd | ins.wr:
            if r in pend:
                c, idx = pend[r]
                assert idx < (vdone if c == "vm" else ldone), f"unwaited load of {r} at {ins.text} ({ins.idx})"
                del pend[r]
        if ins.kind == "wait":
            ins.nvm = ins.nlg = None
            v0, l0 = vdone, ldone
            for want, lst, mx, c in ((ins.vm, vm, 63, "vm"), (ins.lg, lg, 14, "lg")):
                if not want: continue
                idx = next((i for i in range(len(lst) - 1, -1, -1) if match(lst[i].tag, want)), -1)
                if idx < 0: continue
                n = min(len(lst) - 1 - idx, mx)
                if c == "vm": ins.nvm = n; vdone = max(vdone, len(lst) - n)
                else: ins.nlg = n; ldone = max(ldone, len(lst) - n)
            for x in vm[v0:vdone] + lg[l0:ldone]: x.edone = epoch
        elif ins.kind == "bar": epoch += 1
        elif ins.kind in ("dma", "vld", "vst"):
            vm.append(ins)
            assert len(vm) - vdone <= 62
            for r in ins.wr: pend[r] = ("vm", len(vm) - 1)
        elif ins.kind in ("dsr", "dsw"):
            lg.append(ins)
            for r in ins.wr: pend[r] = ("lg", len(lg) - 1)
        if ins.lds: ins.eissue = epoch; ev.append(ins)
    return epoch, ev
def check_lds(evs):
    INF = 10 ** 9
    def before(a, b, msg): assert max(getattr(x, "edone", INF) for x in a) < min(x.eissue for x in b), msg
    reg = {}
    for ev in evs:
        for x in ev: reg.setdefault(x.lds[1], {}).setdefault(x.lds[2], {"r": [], "w": []})[x.lds[0]].append(x)
    for r, cont in reg.items():
        if r == "QO": continue
        order = sorted(cont, key=lambda c: min(x.eissue for x in cont[c]["w"]))
        for i, c in enumerate(order):
            before(cont[c]["w"], cont[c]["r"], f"LDS RAW {r} {c}")
            if i + 1 < len(order): before(cont[c]["r"] + cont[c]["w"], cont[order[i + 1]]["w"], f"LDS WAR {r} {c}")
    c = reg["QO"]
    before(c[("Q", 1)]["w"], c[("Q", 1)]["r"], "Q RAW")
    before([x for x in c[("Q", 0)]["w"] if x.lds[3] == X], [x for x in c[("Q", 0)]["r"] if x.lds[3] == X], "Q0x RAW")
    for ev in evs:
        for q in range(4):
            assert max(x.idx for x in ev if x.lds[:3] == ("w", "QO", ("Q", 0)) and x.lds[3] == q >> 1) < min(x.idx for x in ev if x.lds == ("r", "QO", ("Q", 0), q))
    before(c[("Q", 0)]["r"], c[("Q", 1)]["w"], "Q0->Q1")
    before([x for x in c[("Q", 1)]["r"] if x.lds[3] == X], [x for x in c[("O", 0)]["w"] if x.lds[3] == X], "Q1x->O0x")
    before(c[("O", 0)]["w"], c[("O", 0)]["r"], "O0 RAW")
    before(c[("O", 0)]["r"], c[("O", 1)]["w"], "O0->O1")
    for ev in evs:
        for q in range(5):
            sel = lambda m, cc: [x.idx for x in ev if x.lds[1] == "QO" and x.lds[0] == m and x.lds[2] == cc and len(x.lds) > 3 and x.lds[3] == q]
            assert max(sel("r", ("Q", 1))) < min(sel("w", ("O", 0))) and max(sel("w", ("O", 1))) < min(sel("r", ("O", 1)))
def check_hazards(tr):
    seq = [x for x in tr if x.kind != "label"]
    def ws(x): return x.tag + 1 if x.kind == "nop" else 1
    for i, c in enumerate(seq):
        d = 0
        for j in range(i - 1, max(-1, i - 12), -1):
            p = seq[j]; need = 0
            isv = c.kind in ("valu", "trans", "pk"); mem = c.kind in ("dsr", "dsw", "dma", "vld", "vst")
            if p.kind == "mfma":
                if (isv or mem) and p.wr & (c.rd | c.wr): need = 8
                if c.kind == "mfma":
                    if p.wr & (c.rd - c.srcc): need = 8
                    if p.wr & c.srcc and p.wr != c.srcc: need = 6
                if isv and p.srcc & c.wr: need = max(need, 3)
            if p.kind in ("valu", "trans", "pk") and c.kind == "mfma" and p.wr & c.rd: need = 2
            if p.kind == "trans" and c.kind in ("valu", "pk") and p.wr & c.rd: need = 1
            if p.kind == "salu" and c.kind == "dma" and ("s", "m0") in p.wr: need = 1
            if p.kind == "vst" and (p.rd & c.wr): need = 2
            if p.kind in ("valu", "trans") and "readfirstlane" in c.text and p.wr & c.rd: need = 1
            assert d >= need, f"hazard: {p.text} -> {c.text} needs {need}, has {d}"
            d += ws(p)
def check_values(tr):
    state = {}
    for x in tr:
        for r in x.rd:
            if r in state: state[r] = (state[r][0], True)
        for r in x.wr:
            if r in state and not state[r][1] and r[0] in "va" and r not in x.rd:
                p = state[r][0]
                dead_ok = (p.kind == "mfma" and r[0] == "a") or (match(p.tag, [("Ql", 1)]) and p.tag[2] >= 18)
                assert dead_ok, f"value of {r} from '{p.text}' overwritten unread by '{x.text}'"
            state[r] = (x, False)

def build(cfg):
    out = ["; GQA softmax attention, B16 H32 Sq288 Sk1024 D128 bf16 (schedule emitted by my own generator script)",
           f"; @launch grid=(256,1,1) block=(256,1,1) lds={LDS_BYTES}",
           '.amdgcn_target "amdgcn-amd-amdhsa--gfx950"', ".text", f".globl {NAME}", ".p2align 8", f".type {NAME},@function", f"{NAME}:"]
    out += setup(cfg)
    out.append("L_start:")
    evs = []; eps = []; texts = []; common = {}
    for e in range(2):
        segs = [("pro", prologue(cfg)), ("pro2", prologue2(cfg, e))]
        st, bounds = main_stream(cfg, e)
        cuts = [bounds[(h, b)] for h in range(2) for b in range(8)] + [len(st.m)]
        for k in range(16): segs.append((divmod(k, 8), st.emit(cuts[k], cuts[k + 1])))
        segs.append(("tail", stamp(cfg, 4) + tail(cfg) + stamp(cfg, 5)))
        tr = [x for _, s in segs for x in s]
        ep, ev = resolve(tr); eps.append(ep); evs.append(ev)
        if not cfg.fsum: check_hazards(tr); check_values(tr)
        d = dict(segs)
        for h, b0, b2 in [(h,) + l for h in range(2) for l in loops(cfg, h)]:
            ref = d[(h, b0)]
            for b in range(b0 + 1, b2):
                cur = d[(h, b)]
                assert len(cur) == len(ref), (h, b, len(cur), len(ref))
                for x, y in zip(ref, cur):
                    assert x.kind == y.kind and x.text == y.text, (h, b, x.text, y.text)
                    if x.kind == "wait":
                        for a in ("nvm", "nlg"):
                            vals = [v for v in (getattr(x, a), getattr(y, a)) if v is not None]
                            setattr(x, a, min(vals) if vals else None)
        t = []
        for k, s in segs:
            p = [x.render() for x in s]
            if k in ("pro", "tail"):
                assert common.setdefault(k, p) == p; continue
            if isinstance(k, tuple):
                if any(b1 < k[1] < b2 for b1, b2 in loops(cfg, k[0])): continue
                if any(b1 == k[1] for b1, b2 in loops(cfg, k[0])): t.append(f"L_m{k[0]}{k[1]}{e}:")
            t += p
        texts.append(t)
    assert eps[0] == eps[1]
    if not cfg.nodma: check_lds(evs)
    out += common["pro"]
    out += [f"s_bitcmp1_b32 s{sW}, {cfg.ebit}", "s_cbranch_scc1 L_odd"]
    out += texts[0] + ["s_branch L_tail", ".p2align 6", "L_odd:"] + texts[1] + ["L_tail:"] + common["tail"]
    if cfg.nodma: out += [f"s_mov_b32 s{sT}, 0"]
    out += ["s_nop 3", f"s_and_b32 s{sT}, s{sT}, s{sMODE}", "s_cbranch_scc1 L_fallback"]
    if cfg.trace:
        out += ["s_waitcnt lgkmcnt(0)", "s_mov_b32 m0, s98", f"v_writelane_b32 v{vTR0}, s94, m0", f"v_writelane_b32 v{vTR1}, s96, m0", f"v_mov_b32 v38, v{vTR0}", f"v_mov_b32 v39, v{vTR1}", f"s_cmp_lg_u32 s{sW}, 0", "s_cbranch_scc1 L_notr",
                f"s_lshl_b32 s{sT}, s2, 9", f"s_add_u32 s{sT}, s{sT}, 0x100000", f"v_lshl_add_u32 v20, v0, 3, s{sT}", "global_store_dwordx2 v20, v[38:39], s[58:59]", "L_notr:"]
    if cfg.stamps:
        n = cfg.stamps
        out += ["s_waitcnt vmcnt(0)", "s_barrier", f"s_memrealtime s[{sST+2}:{sST+3}]", f"s_memtime s[{sST+6}:{sST+7}]", "s_waitcnt lgkmcnt(0)",
                f"s_cmp_lg_u32 s{sW}, 0", "s_cbranch_scc1 L_end", f"s_mul_i32 s{sT}, s2, {n*8}", f"v_mov_b32 v20, s{sT}",
                "v_cmp_eq_u32 vcc, 0, v0", "s_and_saveexec_b64 s[50:51], vcc"]
        if cfg.dbg:
            out += ["s_cmp_ge_u32 s2, 8", "s_cbranch_scc1 L_end", f"s_lshl_b32 s{sT}, s2, 3", f"v_mov_b32 v20, s{sT}",
                    f"s_sub_u32 s{sT}, s{sST+2}, s{sST}", f"v_mov_b32 v22, s{sT}", f"s_sub_u32 s{sT}, s{sST+6}, s{sST+4}", f"v_mov_b32 v23, s{sT}",
                    "global_store_dwordx2 v20, v[22:23], s[58:59]"]
        else:
            if cfg.rt:
                for i in range(4, n):
                    r = sST + 2 * i
                    out += [f"s_sub_u32 s{r}, s{r}, s{sST}", f"s_subb_u32 s{r+1}, s{r+1}, s{sST+1}", f"s_add_u32 s{r}, s{r}, s{sST+4}", f"s_addc_u32 s{r+1}, s{r+1}, s{sST+5}"]
            for i in range(n):
                out += [f"v_mov_b32 v{22+2*i}, s{sST+2*i}", f"v_mov_b32 v{23+2*i}, s{sST+2*i+1}", f"global_store_dwordx2 v20, v[{22+2*i}:{23+2*i}], s[58:59] offset:{8*i}"]
    out += ["L_end:", "s_endpgm", "L_fallback:"] + fallback(cfg)
    out += ['.section .rodata,"a"', ".p2align 6", f".amdhsa_kernel {NAME}",
            "  .amdhsa_next_free_vgpr 512", "  .amdhsa_next_free_sgpr 102", "  .amdhsa_accum_offset 256",
            "  .amdhsa_group_segment_fixed_size 0", "  .amdhsa_kernarg_size 48", "  .amdhsa_user_sgpr_count 2",
            "  .amdhsa_user_sgpr_kernarg_segment_ptr 1", "  .amdhsa_system_sgpr_workgroup_id_x 1", ".end_amdhsa_kernel"]
    return "\n".join(out) + "\n"

def parse(args):
    kw = {}
    for a in args:
        k, v = a.split("=", 1)
        kw[k] = int(v) if re.fullmatch(r"-?\d+", v) else v.replace("+", " ")
    return Cfg(**kw)
if __name__ == "__main__":
    s = build(parse(sys.argv[2:]))
    open(sys.argv[1], "w").write(s)
    print(sys.argv[1], len(s), "bytes", s.count("\n"), "lines")
```

```python
import sys, re, math, struct

NAME = "standalone__gqa_softmax__near_ridge_kernel"

PS = 1056
TS = 8 * PS
KB = 0
VB = 4 * TS
QB = 8 * TS
XB = 17 * TS
XLB = (XB + 16384 + 1023) // 1024 * 1024
FB = XLB + 1024
LDS_BYTES = 163840
assert FB + 16 <= LDS_BYTES

vK, vV, vLin, vAux, vG, vQ, vOw, vOr2, vOg, vT0, vLx, vLp, vTR0 = range(1, 14)
vRC = 14; vTR1 = 15
T16 = 16
TSC = 32
NEGM = 36
SB = 56
PB = 80
OB = 96
aQ = 0; aK = 80; aV = 144; aL = 208; aONE = 228; aSV = 232
aQx, aK0, aSGN, aXw, aXr, aXl, aXlr, aOxw, aOxr, aOxg, aFl = range(242, 253)
X = 4

sW = 3
sKS, sVS, sQA, sQB_, sOS = 12, 16, 20, 24, 28
sKV, sM0, sCNT, sQOFF, sOOFF = 32, 33, 34, 35, 36
sC = 38
sTHR, sMODE = 40, 41
sO1 = 42
sO1X = 43
sHI = 45
sQG, sQX = 46, 47
sT = 48
sOA = 56
sKVA = 57
sST = 60

def f32bits(x): return struct.unpack("<I", struct.pack("<f", x))[0]
C_SCALE = f32bits(math.log2(math.e) / math.sqrt(128.0))
THR = f32bits(2.0 ** 40)

def R(c, n, k=1): return {(c, n + i) for i in range(k)}
def rs(c, n, k=1): return f"{c}{n}" if k == 1 else f"{c}[{n}:{n+k-1}]"

class I:
    def __init__(s, text, kind, rd=(), wr=(), srcc=(), tag=None, vm=None, lg=None, lds=None):
        s.text, s.kind, s.rd, s.wr, s.srcc = text, kind, set(rd), set(wr), set(srcc)
        s.tag, s.vm, s.lg, s.lds = tag, vm, lg, lds
        s.nvm = s.nlg = None; s.after = []
    def render(s):
        if s.kind == "wait":
            p = []
            if s.nvm is not None: p.append(f"vmcnt({s.nvm})")
            if s.nlg is not None: p.append(f"lgkmcnt({s.nlg})")
            return "s_waitcnt " + " ".join(p) if p else "s_nop 0"
        return s.text
def chain(lst):
    for a, b in zip(lst, lst[1:]): b.after.append(a)
    return lst

def mfma(dc, d, ac, a, bc, b, c):
    ct = "0" if c is None else rs(dc, c, 4)
    cr = set() if c is None else R(dc, c, 4)
    return I(f"v_mfma_f32_16x16x32_bf16 {rs(dc,d,4)}, {rs(ac,a,4)}, {rs(bc,b,4)}, {ct}", "mfma",
             rd=R(ac, a, 4) | R(bc, b, 4) | cr, wr=R(dc, d, 4), srcc=cr)
def valu(text, rd, wr, kind="valu"): return I(text, kind, rd=rd, wr=wr)
def salu(text, wr=()): return I(text, "salu", wr=wr)
def wait(vm=None, lg=None): return I("", "wait", vm=vm, lg=lg)
def bar(): return I("s_barrier", "bar")
def nop(n): return I(f"s_nop {n}", "nop", tag=n)
def label(n): return I(f"{n}:", "label")
def off(o): return f" offset:{o}" if o else ""
def dsr128(dc, d, addr, o, tag, lds): return I(f"ds_read_b128 {rs(dc,d,4)}, v{addr}{off(o)}", "dsr", rd=R("v", addr), wr=R(dc, d, 4), tag=tag, lds=lds)
def dsrtr(dc, d, addr, o, tag, lds): return I(f"ds_read_b64_tr_b16 {rs(dc,d,2)}, v{addr}{off(o)}", "dsr", rd=R("v", addr), wr=R(dc, d, 2), tag=tag, lds=lds)
def dsw(n, addr, src, o, tag, lds):
    return I(f"ds_write_b{32*n} v{addr}, {rs('v',src,n)}{off(o)}", "dsw", rd=R("v", addr) | R("v", src, n), tag=tag, lds=lds)

class Cfg:
    W = 6
    nt = "nt"
    snt = "sc0 sc1"
    adj = 0
    BK = 114
    BV = 5
    BF = 74
    kd0 = 50
    kd1 = 82
    vd0 = 80
    vd1 = 112
    sw = 14
    qpk = 0
    k20 = 100
    eshift = 4
    ebit = 0
    ones4 = 1
    cpf = 1
    pk = 1
    opat = 'o030'
    lev = 'L00000'
    split = 5
    stamps = 0
    rt = 0
    pst = 0
    trace = 0
    dbg = 0
    nodma = 0
    peel = 0
    slowall = 0
    slowB = -1
    prof = ''
    fsum = ''
    fneg = 0
    slowpos = ''
    probe = -1
    slowe = 0
    slowm = 200
    slowdec = 1
    def __init__(s, **kw):
        for k, v in kw.items():
            assert hasattr(Cfg, k), k
            setattr(s, k, v)

QUADS = {"hold": 1, "holdm": 3, "pk": 9, "salu": 1, "wait": 1, "bar": 1, "nop": 1, "valu": 1, "trans": 2, "dsr": 2, "dsw": 3, "dma": 3, "vld": 3, "vst": 3}
ORDER = {"hold": 0, "holdm": 1, "pk": 2, "salu": 0, "wait": 0, "bar": 0, "nop": 0, "dsr": 1, "dsw": 1, "dma": 1, "vld": 1, "vst": 1, "valu": 2, "trans": 2}
class Stream:
    def __init__(s):
        s.m = []; s.g = []; s.pos = {}; s.flip = set()
    def add(s, ins, key=None):
        if key is not None: s.pos[key] = len(s.m)
        s.m.append(ins); s.g.append([])
    def fits(s, i, ins, two_ds=False):
        g = s.g[i] + [ins]
        nds = sum(x.kind == "dsr" for x in g)
        if nds > (2 if two_ds else 1): return False
        q = sum(QUADS[x.kind] for x in g) - (1 if nds == 2 else 0)
        v = sum(QUADS[x.kind] for x in g if x.kind in ("valu", "trans"))
        return q <= 3 and v <= 2
    def put(s, i, ins): s.g[i].append(ins); return i
    def place(s, ins, lo, hi, pref=None):
        if pref:
            for i in range(lo, hi + 1):
                if pref(s.g[i]) and s.fits(i, ins): return s.put(i, ins)
        for i in range(lo, hi + 1):
            if s.fits(i, ins): return s.put(i, ins)
        for i in range(lo, hi + 1):
            if s.fits(i, ins, True): return s.put(i, ins)
        raise RuntimeError(f"cannot place {ins.text} in [{lo},{hi}]")
    def late(s, ins, lo, hi):
        for i in range(hi, lo - 1, -1):
            if s.fits(i, ins): return s.put(i, ins)
        return s.put(hi, ins)
    def spread(s, lst, lo, hi, asap=False):
        lst = [x if isinstance(x, tuple) else (x, 0) for x in lst]
        chain([x for x, _ in lst])
        n = sum(x.kind != "pk" for x, _ in lst); cur = lo; npk = 0
        dm = [max(d, 1) if k and ORDER[x.kind] < ORDER[lst[k - 1][0].kind] else d for k, (x, d) in enumerate(lst)]
        for k, (ins, _) in enumerate(lst):
            a = cur + dm[k]
            lim = hi - sum(dm[k + 1:])
            assert a <= lim, f"spread overflow {ins.text} {a} > {lim}"
            tgt = min(lim, max(a, lo + ((k - npk) * (hi - lo + 1)) // n))
            if asap: tgt = lim
            if ins.kind == "pk": s.put(a, ins); cur = a; npk += 1; continue
            i = next((j for j in range(a, tgt + 1) if s.fits(j, ins)), None)
            if i is None:
                i = tgt
                if ORDER[ins.kind] == 1:
                    i = next((j for j in range(tgt, min(tgt + 3, lim) + 1) if not any(ORDER[y.kind] == 1 for y in s.g[j])), tgt)
            s.put(i, ins); cur = i
        return cur
    def srt(s, i):
        if any(getattr(x, "inorder", False) for x in s.g[i]): return list(s.g[i])
        if i in s.flip: return sorted(s.g[i], key=lambda x: {0: 0, 1: 2, 2: 1}[ORDER[x.kind]])
        return sorted(s.g[i], key=lambda x: ORDER[x.kind])
    def emit(s, lo, hi):
        out = []
        if lo > 0: out += [x for x in s.srt(lo - 1) if ORDER[x.kind] > 0]
        for i in range(lo, hi):
            if s.m[i] is not None: out.append(s.m[i])
            out += [x for x in s.srt(i) if i < hi - 1 or hi == len(s.m) or ORDER[x.kind] == 0]
        return out

def dma(cfg, kv, S, j):
    base = (KB if kv == "K" else VB) + (S & 1) * 2 * TS + j * (PS - 1024)
    srd = sKS if kv == "K" else sVS
    return [salu(f"s_add_u32 m0, s{sM0}, {base}", wr={("s", "m0")}),
            I(f"buffer_load_dwordx4 v{vLin}, s[{srd}:{srd+3}], s{sKV} offen{off(1024*j)} {cfg.nt} lds", "dma",
              rd=R("v", vLin) | {("s", "m0")}, tag=(kv, S, j), lds=("w", (kv, S & 1), (kv, S)))]
def kv_step(cfg, S):
    d = 16384
    if S == 16 and not cfg.adj: d = 16384 + 255 * 262144
    return salu(f"s_add_u32 s{sKV}, s{sKV}, {d}")
def kread(e, S, r, kb, s): return dsr128("a", aK + 32 * r + 16 * kb + 4 * s, vK, (2 * (S & 1) + (e ^ r)) * TS + 512 * kb + 64 * s, ("Kr", S, r), ("r", ("K", S & 1), ("K", S)))
def vread(e, S, r, dt, kb): return dsrtr("a", aV + 32 * r + 4 * dt + 2 * kb, vV, (2 * (S & 1) + (e ^ r)) * TS + 512 * kb + 32 * dt, ("Vr", S, r, dt >> 2), ("r", ("V", S & 1), ("V", S)))
def qoff(q): return (q >> 1) * TS + (q & 1) * 512
def unpark(v, a): return valu(f"v_accvgpr_read_b32 v{v}, a{a}", R("a", a), R("v", v))
def qreads(h, q):
    if q == X: return [unpark(TSC, aQx)] + [dsr128("a", aQ + 16 * q + 4 * s, TSC, 64 * s, ("Qr", h, q), ("r", "QO", ("Q", h), q)) for s in range(4)]
    return [dsr128("a", aQ + 16 * q + 4 * s, vQ, qoff(q) + 64 * s, ("Qr", h, q), ("r", "QO", ("Q", h), q)) for s in range(4)]
def k0reads(h): return [unpark(TSC + 2, aK0), unpark(TSC + 3, aSGN)] + [dsr128("v", T16 + 4 * s, TSC + 2, 64 * s, ("K0r", h), ("r", ("K", 0), ("K", 16 * h))) for s in range(4)]
def k0neg(i): return valu(f"v_bitop3_b32 v{T16+i}, v{T16+i}, v{TSC+3}, s{sMODE} bitop3:0x28", R("v", T16 + i) | R("v", TSC + 3), R("v", T16 + i))
def negm_init(h, q, r): return valu(f"v_accvgpr_read_b32 v{NEGM+4*q+r}, a{aSV+5*h+q}", R("a", aSV + 5 * h + q), R("v", NEGM + 4 * q + r))
def negm_mfma(q, s): return mfma("v", NEGM + 4 * q, "v", T16 + 4 * s, "a", aQ + 16 * q + 4 * s, NEGM + 4 * q)
def scale_reg(src, t, packed):
    o = [valu(f"v_lshlrev_b32 v{t}, 16, v{src}", R("v", src), R("v", t)),
         valu(f"v_and_b32 v{t+1}, s{sHI}, v{src}", R("v", src), R("v", t + 1))]
    if packed:
        o.append(valu(f"v_pk_mul_f32 v[{t}:{t+1}], v[{t}:{t+1}], s[{sC}:{sC+1}]", R("v", t, 2), R("v", t, 2)))
    else:
        o.append(valu(f"v_mul_f32 v{t}, s{sC}, v{t}", R("v", t), R("v", t)))
        o.append(valu(f"v_mul_f32 v{t+1}, s{sC}, v{t+1}", R("v", t + 1), R("v", t + 1)))
    o.append(valu(f"v_cvt_pk_bf16_f32 v{src}, v{t}, v{t+1}", R("v", t, 2), R("v", src)))
    return o
def scale_piece(src, t):
    c = [scale_reg(src + r, t + 2 * r, True) for r in range(4)]
    return [x for r in range(4) for x in c[r][:2]] + [c[r][2] for r in range(4)] + [c[r][3] for r in range(4)]
def stamp(cfg, k, pro=False):
    if bool(cfg.pst) != pro: return []
    op = "s_memrealtime" if cfg.rt else "s_memtime"
    return [I(f"{op} s[{sST+2*k}:{sST+2*k+1}]", "salu")] if cfg.stamps > k else []
def ostore(cfg, buf, voff, soff, o, tag):
    return I(f"buffer_store_dwordx4 {rs('v',buf,4)}, v{voff}, s[{sOS}:{sOS+3}], s{soff} offen{off(o)} {cfg.snt}", "vst", rd=R("v", voff) | R("v", buf, 4), tag=tag)

def muls(b, n, packed):
    if packed: return [valu(f"v_pk_mul_f32 v[{b+k}:{b+k+1}], v[{b+k}:{b+k+1}], v[{vRC}:{vRC+1}] op_sel_hi:[1,0]", R("v", b + k, 2) | R("v", vRC), R("v", b + k, 2), "pk") for k in range(0, n, 2)]
    return [valu(f"v_mul_f32 v{b+k}, v{vRC}, v{b+k}", R("v", b + k) | R("v", vRC), R("v", b + k)) for k in range(n)]
def cvts(b): return [valu(f"v_cvt_pk_bf16_f32 v{b}, v{b}, v{b+1}", R("v", b, 2), R("v", b)), valu(f"v_cvt_pk_bf16_f32 v{b+1}, v{b+2}, v{b+3}", R("v", b + 2, 2), R("v", b + 1))]
def q_head(q):
    return [valu(f"v_accvgpr_read_b32 v{vT0}, a{aL+4*q}", R("a", aL + 4 * q), R("v", vT0)),
            valu(f"v_rcp_f32 v{vRC}, v{vT0}", R("v", vT0), R("v", vRC), "trans"),
            valu(f"v_add_f32 v{vG}, v{vG}, v{vT0}", R("v", vG) | R("v", vT0), R("v", vG))]
def q_stage(h, q, packed):
    o = muls(OB + 32 * q, 32, True) if packed else []
    for dt in range(8):
        b = OB + 32 * q + 4 * dt
        o += ([] if packed else muls(b, 4, False)) + cvts(b) + [dsw(2, vOw, b, qoff(q) + 32 * dt, ("Ow", h), ("w", "QO", ("O", h), q))]
    return o
def q_out(cfg, q, lat=8):
    b = OB + 32 * q
    o = [dsr128("v", b + 4 * i, vOr2, qoff(q) + i * PS, ("Op", q, i), ("r", "QO", ("O", 1), q)) for i in range(4)]
    if q == 2: o.append(salu(f"s_add_u32 s{sO1}, s{sO1}, 8192"))
    for i in range(4):
        o += [(wait(lg=[("Op", q, i)]), lat if i == 0 else 0), ostore(cfg, b + 4 * i, vOg, sO1, 1024 * i + 512 * (q & 1), ("Os", 1))]
    return o
def x_send(e, h):
    o = [unpark(TSC, aXw), unpark(TSC + 1, aXl), valu(f"v_accvgpr_read_b32 v{vLx}, a{aL+4*X}", R("a", aL + 4 * X), R("v", vLx))]
    o += [dsw(4, TSC, OB + 32 * X + 16 * (1 - e) + 4 * i, 1024 * i, ("Xw", h), ("w", "X", ("X", h))) for i in range(4)]
    o += [dsw(1, TSC + 1, vLx, 0, ("Xw", h), ("w", "X", ("X", h))), unpark(TSC, aXr), unpark(TSC + 1, aXlr)]
    return o
def x_recv(e, h):
    snd = OB + 32 * X + 16 * (1 - e)
    o = [I(f"ds_read_b32 v{vLp}, v{TSC+1}", "dsr", rd=R("v", TSC + 1), wr=R("v", vLp), tag=("Xr", h), lds=("r", "X", ("X", h)))]
    o += [dsr128("v", snd + 4 * i, TSC, 1024 * i, ("Xr", h), ("r", "X", ("X", h))) for i in range(4)]
    return o + [unpark(TSC, aOxw)]
def x_stage(e, h, packed):
    kp = OB + 32 * X + 16 * e; snd = OB + 32 * X + 16 * (1 - e)
    o = [wait(lg=[("Xr", h)]), valu(f"v_add_f32 v{vLx}, v{vLx}, v{vLp}", R("v", vLx, 2), R("v", vLx)),
         valu(f"v_rcp_f32 v{vRC}, v{vLx}", R("v", vLx), R("v", vRC), "trans"),
         valu(f"v_add_f32 v{vG}, v{vG}, v{vLx}", R("v", vG) | R("v", vLx), R("v", vG))]
    if packed:
        o += [valu(f"v_pk_add_f32 v[{kp+k}:{kp+k+1}], v[{kp+k}:{kp+k+1}], v[{snd+k}:{snd+k+1}]", R("v", kp + k, 2) | R("v", snd + k, 2), R("v", kp + k, 2), "pk") for k in range(0, 16, 2)]
        o += muls(kp, 16, True)
    for i in range(4):
        if not packed:
            o += [valu(f"v_add_f32 v{kp+4*i+k}, v{kp+4*i+k}, v{snd+4*i+k}", R("v", kp + 4 * i + k) | R("v", snd + 4 * i + k), R("v", kp + 4 * i + k)) for k in range(4)]
            o += muls(kp + 4 * i, 4, False)
        o += cvts(kp + 4 * i) + [dsw(2, TSC, kp + 4 * i, 32 * i, ("Ow", h), ("w", "QO", ("O", h), X))]
    return o
def x_out(cfg, e):
    snd = OB + 32 * X + 16 * (1 - e)
    o = [unpark(TSC, aOxr), unpark(TSC + 1, aOxg)]
    o += [dsr128("v", snd + 4 * k, TSC, 4 * k * PS, ("Op", X, k), ("r", "QO", ("O", 1), X)) for k in range(2)]
    o += [(wait(lg=[("Op", X, 0)]), 6), ostore(cfg, snd, TSC + 1, sO1X, 0, ("Os", 1)), salu(f"s_add_u32 s{sO1X}, s{sO1X}, 4096"),
          wait(lg=[("Op", X, 1)]), ostore(cfg, snd + 4, TSC + 1, sO1X, 0, ("Os", 1))]
    return o

def start_ops():
    kv = lambda c, S: [(c, S, j) for j in range(4)]
    return kv("K", 0) + [("X", 0), ("X", 1)] + [("G", j) for j in range(8)] + kv("V", 0) + [("G", j) for j in range(8, 16)] + kv("K", 1) + kv("V", 1)
def land(op): return OB + 32 + 4 * op[1] if op[0] == "X" else OB + 64 + 4 * op[1]
def op_tag(op): return ("Ql", 0) + op if op[0] in "XG" else op
def issue_op(cfg, op, pad=True):
    if op[0] in "XG":
        j = op[1]; so = sQX if op[0] == "X" else sQG
        r = [salu(f"s_add_u32 s{sQG}, s{sQG}, 4096")] if (op[0] == "G" and j and j % 4 == 0) else []
        return r + [I(f"buffer_load_dwordx4 {rs('v',land(op),4)}, v{vLin}, s[{sQA}:{sQA+3}], s{so} offen{off(1024*(j&3))} {cfg.nt}", "vld",
                      rd=R("v", vLin), wr=R("v", land(op), 4), tag=op_tag(op))]
    kv, S, j = op
    m0, ld = dma(cfg, kv, S, j)
    return ([kv_step(cfg, S)] if (kv == "K" and j == 0 and S) else []) + [m0, nop(0), ld]
def start_step(cfg, i, tmp):
    ops = start_ops(); op = ops[i]
    o = [wait(vm=[op_tag(op)])]
    if i + cfg.W < len(ops): o += issue_op(cfg, ops[i + cfg.W])
    if op[0] == "X": o += scale_piece(land(op), tmp) + [dsw(4, vLx, land(op), PS * op[1], ("Qw", 0, X), ("w", "QO", ("Q", 0), X))]
    if op[0] == "G": o += scale_piece(land(op), tmp) + [dsw(4, vT0, land(op), PS * op[1], ("Qw", 0, op[1] >> 3), ("w", "QO", ("Q", 0), op[1] >> 3))]
    return o

QK0 = {X: 0, 0: 26, 1: 51, 2: 85, 3: 119}
PV0 = {X: 42, 0: 67, 1: 101, 2: 135, 3: 161}
CH0 = {X: 0, 0: 2, 1: 6, 2: 10, 3: 14}
EXP0 = {0: 34, 1: 66, 2: 97, 3: 128}
UO = (X, 0, 1, 2, 3)
def sbuf(q, c): return SB + 4 * ((CH0[q] + c) % 6)
def pbuf(S, q, r): return PB + 8 * ((5 * S + UO.index(q)) & 1) + 4 * r

def loops(cfg, h):
    b0 = 1 + (cfg.peel if h == 0 else 0)
    if h == 0 and cfg.lev[2] != cfg.lev[3] and b0 < cfg.split < 7: return [(b0, cfg.split), (cfg.split, 7)]
    return [(b0, 7)]

def main_stream(cfg, e):
    st = Stream()
    def qk(S, q):
        if S % 16 == 0 and not (S == 0 and q == X):
            if S == 0 and q == 2: st.add(None, key="g1a"); st.add(None, key="g1b")
            for s in range(4): st.add(negm_mfma(q, s), key=("n", S, q, s))
        for c in range(2 if q == X else 4):
            for s in range(4):
                st.add(mfma("v", sbuf(q, c), "a", aK + 16 * c + 4 * s, "a", aQ + 16 * q + 4 * s, NEGM + 4 * q if s == 0 else sbuf(q, c)), key=153 * S + QK0[q] + 4 * c + s)
    def pv(S, q):
        k = 153 * S + PV0[q]; z = S % 16 == 0
        for dt in range(9):
            for r in range(1 if q == X else 2):
                dc, d, a = ("v", OB + 32 * q + 4 * dt, aV + 32 * r + 4 * dt) if dt < 8 else ("a", aL + 4 * q, aONE)
                st.add(mfma(dc, d, "a", a, "v", pbuf(S, q, r), None if (z and r == 0) else d), key=k); k += 1
    for S in range(33):
        if S < 32: qk(S, X)
        else:
            for k in range(8): st.add(None, key=153 * S + k)
        if S: pv(S - 1, 3)
        if S == 32: break
        qk(S, 0)
        if S == 0: st.add(None, key="v0a"); st.add(None, key="v0b")
        pv(S, X)
        for q in (1, 2, 3): qk(S, q); pv(S, q - 1)
    P = st.pos
    G = lambda S, r: P[153 * S + r]
    last = len(st.m) - 1
    clusters = []
    def level(a, z):
        b = a // 306
        if a < 85 or (z + 1) // 306 != b or a >= 153 * 31: return 0
        return int(cfg.lev[1 if b == 0 else 2 if b < cfg.split else 3 if b < 7 else 4 if a < 153 * 15 else 5 if b > 8 else 0].replace("L", "0"))
    for S in range(32):
        for q in UO:
            if q == X: eg, cg = ([9 + 3 * i for i in range(8)], [13, 19, 25, 31]) if S else (list(range(26, 34)), [35, 35, 39, 39])
            else:
                eg = [EXP0[q] + 2 * i for i in range(16)]; cg = [EXP0[q] + 4 * i + 3 for i in range(8)]
                if q in (1, 2): cg[7] += 1
            ex = []; cv = []
            for i, g in enumerate(eg):
                r = sbuf(q, i >> 2) + (i & 3)
                ex.append(valu(f"v_exp_f32 v{r}, v{r}", R("v", r), R("v", r), "trans")); st.put(G(S, g), ex[-1])
            for i, g in enumerate(cg):
                r = sbuf(q, i >> 1) + 2 * (i & 1); d = pbuf(S, q, i >> 2) + (i & 3)
                cv.append(valu(f"v_cvt_pk_bf16_f32 v{d}, v{r}, v{r+1}", R("v", r, 2), R("v", d))); st.put(G(S, g), cv[-1])
            for c in range(len(eg) // 4):
                lv = level(153 * S + eg[4 * c], 153 * S + cg[2 * c + 1])
                if ((CH0[q] + c + 1) * lv) // 9 != ((CH0[q] + c) * lv) // 9:
                    clusters.append(([(x, G(S, g)) for x, g in zip(ex[4 * c: 4 * c + 4] + cv[2 * c: 2 * c + 2], eg[4 * c: 4 * c + 4] + cg[2 * c: 2 * c + 2])],
                                     G(S, eg[4 * c + 1]), G(S, eg[4 * c + 3])))
    for k in (2, 6): st.put(G(32, k), nop(0))
    st.put(G(32, 7), nop(1))
    bounds = {(h, b): (G(16 * h + 2 * b, 0) if (h, b) != (1, 0) else P[("n", 16, X, 0)]) for h in range(2) for b in range(8)}
    bounds[(0, 8)] = bounds[(1, 0)]; bounds[(1, 8)] = last + 1
    hasexp = lambda g: any(x.kind == "trans" for x in g)
    hascvt = lambda g: any(x.kind == "valu" for x in g)
    noscc = set()
    for h in range(2):
        b0 = 1 + (cfg.peel if h == 0 else 0)
        for b1, b2 in loops(cfg, h):
            for b in range(b1, b2):
                z = bounds[(h, b + 1)]
                st.put(z - 1, I(f"s_cbranch_scc1 L_m{h}{b1}{e}", "salu")); st.put(z - 3, salu(f"s_cmp_lg_u32 s{sCNT}, {7 - b2}")); st.put(z - 5, salu(f"s_sub_u32 s{sCNT}, s{sCNT}, 1"))
                noscc |= {z - 3, z - 2, z - 1}
        st.put(bounds[(h, b0)] - 5, salu(f"s_mov_b32 s{sCNT}, {7 - b0}"))
        for k in (3, 1): st.put(bounds[(h, b0)] - k, I("", "hold"))
    def safe_salu(ins, lo, hi):
        for pref in (hasexp, lambda g: True):
            for i in range(lo, hi + 1):
                if i not in noscc and pref(st.g[i]) and st.fits(i, ins): return st.put(i, ins)
        raise RuntimeError("salu " + ins.text)
    BV = {}; BK = {}; BX = {}; BF = {}; bars = []
    def barrier(g, vm, lg, fix=False):
        i = st.place(wait(vm=vm, lg=lg), g, g + 3, hasexp)
        i = st.place(bar(), i + 1, i + 4, hasexp) if not fix else st.put(i + 2, bar())
        bars.append(i); return i
    for k in range(14, 18):
        for x in start_step(cfg, k, None): st.put(P["v0a"], x); x.inorder = True
    for x in (wait(lg=[("Kr", 0), ("K0r", 0)]), bar()): st.put(P["v0a"], x); x.inorder = True
    BV[0] = P["v0a"]; bars.append(BV[0])
    for S in range(32):
        h = S >> 4
        any_ = {1: [("Qr", 0)], 14: [("Qw", 1)], 17: [("Ow", 0), ("Xr", 0)]}.get(S, [])
        if S: BV[S] = barrier(G(S, cfg.BV), [("V", S)], [("Kr", S), ("K0r", h)], cfg.BV == 5)
        if S % 16 == 15: BX[h] = BF[S] = barrier(G(S, cfg.BF or 72), None, [("Xw", h), ("Qr", h + 1, X), ("Or", h - 1)] + ([("Vr", S)] if cfg.BF else []))
        elif cfg.BF and cfg.sw <= S < 30: BF[S] = barrier(G(S, cfg.BF if S else 86), None, [("Vr", S)])
        if S < 31: BK[S + 1] = barrier(G(S, cfg.BK), [("K", S + 1)], [("Vr", S)] + any_)
    for S in range(1, 32):
        if not st.g[G(S, 7)]: st.put(G(S, 7), wait(lg=[("Kr", S)]))
    if cfg.trace:
        for i in sorted(set(bars) - set(BF.values())):
            for t in ("s_mov_b32 m0, s98", f"v_writelane_b32 v{vTR0}, s94, m0", f"v_writelane_b32 v{vTR1}, s96, m0", "s_add_u32 s98, s98, 1", "s_memrealtime s[94:95]", "s_memtime s[96:97]"):
                st.g[i].append(valu(t, set(), set()))
    for k in range(16): st.put(P["v0a"], vread(e, 0, 0, k >> 1, k & 1))
    st.put(P["v0b"], wait(lg=[("Vr", 0, 0, 0)]))
    st.put(G(0, 45), wait(lg=[("Vr", 0, 0, 1)]))
    st.late(wait(lg=[("Qr", 0, 0)]), G(0, 4), G(0, 7)); st.late(wait(lg=[("Kr", 0, 1)]), G(0, 30), G(0, 33))
    lo, hi = G(0, 43), G(0, 84)
    for k in range(8):
        g = lo + (hi - lo) * (k + 1) // 8 if k < 7 else P["g1a"]
        while st.g[g]: g += 1
        for x in start_step(cfg, 18 + k, OB + 64): st.put(g, x); x.inorder = True
    for x in qreads(0, 2) + qreads(0, 3): st.put(P["g1a"], x); x.inorder = True
    for op in start_ops()[26 + cfg.W:]:
        for x in issue_op(cfg, op): st.put(P["g1a"], x); x.inorder = True
    st.put(P["g1b"], wait(lg=[("Qr", 0, 2)]))
    st.late(wait(lg=[("Qr", 0, 3)]), G(0, 110), G(0, 118))
    for S in range(31):
        w0, w1 = (cfg.kd0, cfg.kd1), (cfg.vd0, cfg.vd1)
        if S == 0: plan = [("K", 2, cfg.k20, cfg.k20 + 16)] + ([("V", 2, 106, 122)] if cfg.sw == 0 else [])
        elif S < cfg.sw: plan = [("V", S + 1) + w0, ("K", S + 2) + w1]
        elif S == cfg.sw: plan = [("V", S + 1, 46, 66), ("K", S + 2, 66, 90), ("V", S + 2, 90, 114)]
        else: plan = [("K", S + 2) + w0, ("V", S + 2) + w1]
        cur = 0
        for kv, S2, a, b in plan:
            if S2 > 31: continue
            cur = max(cur, BV[S] + 1) if (kv == "K" or S2 == S + 1) else max(cur, (BF[S] if cfg.BF else BK[S + 1]) + 1)
            for j in range(4):
                g = max(cur, G(S, a + (b - a) * j // 4 + (cfg.eshift * e if S and len(plan) < 3 else 0)))
                if kv == "K" and j == 0: g = safe_salu(kv_step(cfg, S2), max(cur, g - 4), g + 8)
                if cfg.nodma: continue
                m0, ld = dma(cfg, kv, S2, j)
                i = safe_salu(m0, g, g + 12)
                cur = st.place(ld, i + 1, i + 10) + 1
    anchors = {}
    def qload(j, buf, o): return I(f"buffer_load_dwordx4 {rs('v',buf,4)}, v{vLin}, s[{sQB_}:{sQB_+3}], s{sQOFF} offen{off(o)} {cfg.nt}", "vld",
                                   rd=R("v", vLin), wr=R("v", buf, 4), tag=("Ql", 1, j))
    sh = cfg.eshift * e
    st.place(qload(0, T16, 0), G(1, 68 + sh), G(1, 100))
    for b in range(1, 7):
        j = 3 * (b - 1)
        st.place(qload(j + 1, T16 + 4, 1024), G(2 * b, sh), G(2 * b, 20))
        st.place(qload(j + 2, T16 + 8, 2048), G(2 * b, 68 + sh), G(2 * b, 100))
        lo = st.place(qload(j + 3, T16, 3072), G(2 * b + 1, sh), G(2 * b + 1, 20))
        safe_salu(salu(f"s_add_u32 s{sQOFF}, s{sQOFF}, 3072"), lo + 1, lo + 20)
        for i, g in enumerate((106, 153 + 68, 153 + 106)):
            anchors[(b, i)] = st.place(dsw(4, vAux, T16 + 4 * i, PS * i, ("Qw", 1), ("w", "QO", ("Q", 1))), G(2 * b, g + sh), G(2 * b, g + 30))
    onum = {0: int(cfg.opat[1]), 7: int(cfg.opat[3])}; onum.update({b: int(cfg.opat[2]) for b in range(1, 7)})
    assert sum(onum.values()) == 18 and onum[0] == 0
    osite = []; j = 0
    for b in range(1, 8):
        n = onum[b]
        pos = {1: (108,), 2: (108, 261), 3: (108, 153, 261)}[n] if b < 7 else [60 + 120 * i // max(n, 1) for i in range(n)]
        for i in range(n):
            lo = G(16 + 2 * b, pos[i] + cfg.eshift * e)
            lo = st.place(ostore(cfg, T16 + 4 * (i % 4), vLin, sOOFF, 1024 * (i % 4), ("Os", 0, j)), lo, lo + 24)
            osite.append((b, i, n, j, lo)); j += 1
            if i == n - 1 or i % 4 == 3: safe_salu(salu(f"s_add_u32 s{sOOFF}, s{sOOFF}, {1024 * (i % 4 + 1)}"), lo + 1, lo + 12)
    def reads(lst):
        lo = 0
        for k, (r, a, z) in enumerate(lst):
            a = max(a, lo)
            def room(pred, frm):
                cur = frm
                for (_, a2, z2) in lst[k:]:
                    cur = next((i for i in range(max(cur, a2), z2 + 1) if pred(i)), None)
                    if cur is None: return False
                    cur += 1
                return True
            if room(lambda i: hascvt(st.g[i]) and st.fits(i, r), a): lo = st.place(r, a, z, hascvt) + 1
            elif room(lambda i: st.fits(i, r), a): lo = st.place(r, a, z) + 1
            elif k and a - 1 >= lst[k][1] and st.fits(a - 1, r, True): lo = st.put(a - 1, r) + 1
            else:
                i = next((i for i in range(a, z + 1) if st.fits(i, r, True)), None)
                lo = st.put(min(a, z) if i is None else i, r) + 1
    reads([(vread(e, 0, 1, k >> 1, k & 1), G(0, 42), G(0, 58 + (k >> 3) * 8)) for k in range(16)])
    for S in range(32):
        if S:
            reads([(vread(e, S, 0, k >> 1, k & 1), max(BV[S] + 1, G(S, 8 + (k & 14))), G(S, 33 + (k >> 3) * 4)) for k in range(16)] +
                  [(vread(e, S, 1, k >> 1, k & 1), G(S, 9 + (k & 14)), G(S, 58 + (k >> 3) * 8)) for k in range(16)])
            st.late(wait(lg=[("Vr", S, 0, 0)]), G(S, 38), G(S, 41)); st.late(wait(lg=[("Vr", S, 0, 1)]), G(S, 42), G(S, 45))
        st.late(wait(lg=[("Vr", S, 1, 0)]), G(S, 63), G(S, 67)); st.late(wait(lg=[("Vr", S, 1, 1)]), G(S, 71), G(S, 75))
        if S < 31:
            reads([(kread(e, S + 1, j >> 3, (j >> 2) & 1, j & 3), max(BK[S + 1] + 1, G(S, 119 + j)), G(S, 143 if j < 8 else 149)) for j in range(16)])
            st.late(wait(lg=[("Kr", S + 1, 0)]), G(S, 146), G(S, 151))
    for b in range(1, 7):
        for i in range(3):
            buf = T16 + 4 * i
            lo = (G(2 * b, 26), G(2 * b + 1, 6), G(2 * b + 1, 62))[i]
            if cfg.qpk:
                c = scale_piece(buf, T16 + 12)
                for x in c[8:12]: x.kind = "pk"
            else: c = [x for r in range(4) for x in scale_reg(buf + r, TSC + 2 * (r & 1), False)]
            st.spread([wait(vm=[("Ql", 1, 3 * (b - 1) + i)])] + c, lo, anchors[(b, i)] - 1 if i != 1 else G(2 * b + 1, 61), True)
        st.spread([valu(f"v_add_u32 v{vAux}, {3*PS}, v{vAux}", R("v", vAux), R("v", vAux))], anchors[(b, 2)] + 1, bounds[(0, b + 1)] - 2, True)
    st.spread([valu(f"v_bfe_u32 v{TSC}, v{vLin}, 8, 1", R("v", vLin), R("v", TSC)), valu(f"v_lshlrev_b32 v{TSC}, 4, v{TSC}", R("v", TSC), R("v", TSC)),
               valu(f"v_subrev_u32 v{vAux}, {18*PS}, v{vAux}", R("v", vAux), R("v", vAux)),
               valu(f"v_xor_b32 v{vAux}, v{TSC}, v{vAux}", R("v", vAux) | R("v", TSC), R("v", vAux))], G(14, 60), G(14, 110), True)
    lo = 0
    for b, i, n, j, a in osite:
        lo = st.place(dsr128("v", T16 + 4 * (i % 4), vAux, PS * i, ("Or", 0, j), ("r", "QO", ("O", 0))), max(a - 40, lo + 1), a - 10)
        if i == n - 1 and b < 7: lo = st.spread([valu(f"v_add_u32 v{vAux}, {n*PS}, v{vAux}", R("v", vAux), R("v", vAux))], lo + 1, bounds[(1, b + 1)] - 2, True)
        st.late(wait(lg=[("Or", 0, j)]), a - 6, a - 1)
    one = lambda x: x[0] if isinstance(x, tuple) else x
    st.place(wait(vm=[("Ql", 1, 18)]), G(15, 80), G(15, 110), hasexp)
    qrd = {}
    for q in UO:
        use = P[("n", 16, q, 0)]
        lo = G(15, QK0[q] + (7 if q == X else 15))
        qrd[q] = qreads(1, q)
        st.spread(qrd[q], lo, lo + 30, True)
        st.spread([negm_init(1, q, r) for r in range(4)], lo + 2, min(lo + 60, use - 3), True)
        st.late(wait(lg=[("Qr", 1, q)]), use - 4, use - 1)
    k0 = k0reads(1)
    st.spread(k0[:2], G(15, 100), BK[16], True)
    k0[2].after.append(k0[1])
    st.spread(k0[2:] + [(wait(lg=[("K0r", 1)]), 8)] + [k0neg(i) for i in range(16)], BK[16] + 1, P[("n", 16, X, 0)] - 3)
    def seq(chains, cuts, asap=False):
        for k, c in enumerate(chains):
            if k: one(c[0]).after.append(one(chains[k - 1][-1]))
            st.spread(c, cuts[k] + (k > 0), cuts[k + 1], asap)
    done = lambda S, q: G(S, PV0[q] + (8 if q == X else 17)) + 5
    xs = {}
    for h in range(2):
        S = 16 * h + 15
        xs[h] = (x_send(e, h), x_recv(e, h), x_stage(e, h, cfg.pk))
        if h == 0: xs[h][0][0].after.append(qrd[X][-1])
        st.spread(xs[h][0], done(S, X), BX[h] - 5)
        xs[h][1][0].after.append(xs[h][0][-1]); xs[h][2][0].after.append(xs[h][1][-1])
        st.spread(xs[h][1], BX[h] + 1, BX[h] + 8)
    def stg(h, q):
        c = q_head(q) + q_stage(h, q, cfg.pk)
        if h == 0: next(x for x in c if x.kind == "dsw").after.append(qrd[q][-1])
        return c
    use = lambda q: G(16, PV0[q]) - 1
    cuts = [BX[0] + 16, G(15, 112), G(16, 8), G(16, 66), G(16, 116), use(3)]
    for k, q in enumerate(UO): assert cuts[k] >= done(15, q) and cuts[k + 1] <= use(q), (q, cuts)
    seq([xs[0][2], stg(0, 0), stg(0, 1), stg(0, 2), stg(0, 3)], cuts)
    cuts = [BX[1] + 14, G(31, 100), done(31, 1) + 2, done(31, 2) + 3, last - 1]
    c = [xs[1][2], stg(1, 0), stg(1, 1), stg(1, 2)]
    w = [(cuts[0], cuts[1]), (cuts[1] + 1, cuts[2]), (cuts[2] + 1, G(31, 148)), (cuts[3], last - 1)]
    for k in range(4):
        if k: one(c[k][0]).after.append(one(c[k - 1][-1]))
        st.spread(c[k], *w[k])
    xo = x_out(cfg, e); xo[0].after.append(xs[1][2][-1])
    seq([xo, q_out(cfg, 0, 6), q_out(cfg, 1, 6)], [cuts[1] + 1, cuts[2], G(31, 148), last - 6])
    for x in q_out(cfg, 2)[:5]: st.put(last, x)
    link = lambda i: st.m[i] is not None and st.m[i + 1] is not None and st.m[i].wr == st.m[i + 1].srcc
    for lst, a, z in clusters:
        g = next((i for i in range(z, a - 1, -1) if not link(i)), z)
        for x, i in lst: st.g[i].remove(x); st.g[g].append(x)
    for x in range(153 * 32):
        if x % 17 == 9 and x in P:
            n = (cfg.slowB if cfg.slowB >= 0 and x >= 153 * 16 else cfg.slowall) + (round(cfg.slowe * (1 - cfg.slowdec * (x - 85) / cfg.slowm)) if 85 <= x < 85 + cfg.slowm else 0)
            if cfg.prof and 85 <= x < 153 * (len(cfg.prof) - 1): n += int(cfg.prof[1 + x // 153], 16)
            n += 2 if n else 0
            g = P[x]
            link = lambda i: st.m[i] is not None and st.m[i + 1] is not None and st.m[i].wr == st.m[i + 1].srcc
            if cfg.slowpos: g = next((i for i in range(g - 5, g + 5) if link(i) == (cfg.slowpos == "i") and len(st.g[i]) >= 1 and st.g[i][-1].kind in ("trans", "valu")), g)
            while n > 0: st.g[g].append(valu(f"s_nop {min(n, 16) - 1}", set(), set())); n -= 16
    if cfg.probe >= 0 and cfg.probe < 16:
        h, b = divmod(cfg.probe, 8)
        lp = [l for l in loops(cfg, h) if l[0] <= b < l[1]]
        if not lp: st.g[bounds[(h, b)] + 4].append(valu("s_memrealtime s[90:91]", set(), set()))
        else:
            for b2 in range(*lp[0]):
                for t in (f"s_cmp_lg_u32 s{sCNT}, {7 - b}", f"s_cbranch_scc1 L_pr{e}", "s_memrealtime s[90:91]", f"L_pr{e}:"): st.g[bounds[(h, b2)] + 4].append(valu(t, set(), set()))
    if cfg.fneg:
        for i, m in enumerate(st.m):
            if m is not None and m.srcc and m.srcc != m.wr: m.text = m.text.rsplit(",", 1)[0] + ", 0"
    if cfg.fsum:
        for i, m in enumerate(st.m):
            if m is not None and m.text.startswith("v_mfma_f32_16x16x32_bf16 a["):
                pb = min(r[1] for r in m.rd if r[0] == "v")
                st.m[i] = None
                if cfg.fsum == "dot": st.g[i] += [valu(f"v_dot2c_f32_bf16 v{vLp}, v{pb+k}, v{vLx}", set(), set()) for k in range(4)]
        if cfg.fsum in ("pka", "add"):
            for i in range(len(st.g)):
                for x in list(st.g[i]):
                    if x.text.startswith("v_cvt_pk") and PB <= min(r[1] for r in x.wr) < PB + 16:
                        r = min(r[1] for r in x.rd)
                        if cfg.fsum == "add":
                            for k in range(2):
                                y = valu(f"v_add_f32 v{vLp}, v{r+k}, v{vLp}", set(), set())
                                j = next((j for j in range(i, i + 3) if j < len(st.g) and st.fits(j, y) and all(j + 1 != z and not (i < z <= j) for z in bounds.values())), i)
                                st.g[j].append(y)
                        elif r % 4 == 2: st.g[i] += [valu(f"v_pk_add_f32 v[{TSC}:{TSC+1}], v[{r-2+k}:{r-1+k}], v[{TSC}:{TSC+1}]", set(), set()) for k in (0, 2)]
    for g in st.g: g[:] = [x for x in g if x.kind not in ("hold", "holdm")]
    return st, bounds

def tail(cfg):
    one = lambda x: x[0] if isinstance(x, tuple) else x
    o = [unpark(TSC + 2, aFl), nop(2)] + q_head(3)
    o.append(valu(f"v_cmp_nge_f32 vcc, s{sTHR}, v{vG}", R("v", vG), set()))
    o2 = [one(x) for x in q_out(cfg, 2)[5:]]
    for dt in range(8):
        b = OB + 96 + 4 * dt
        o += muls(b, 4, True) + cvts(b) + [dsw(2, vOw, b, qoff(3) + 32 * dt, ("Ow", 1), ("w", "QO", ("O", 1), 3))]
        if dt == 0:
            o += [salu(f"s_or_b32 s{sT}, vcc_lo, vcc_hi"), valu(f"v_mov_b32 v{vT0}, s{sT}", set(), R("v", vT0)), dsw(1, TSC + 2, vT0, 0, ("Fw",), ("w", "F", ("F",)))]
        if dt % 2: o += o2[dt - 1: dt + 1]
    o += [one(x) for x in q_out(cfg, 3)]
    o.append(valu(f"v_mov_b32 v{vT0}, {FB}", set(), R("v", vT0)))
    o += [wait(lg=[("Fw",)]), bar(), dsr128("v", PB, vT0, 0, ("Fr",), ("r", "F", ("F",))), wait(lg=[("Fr",)])]
    o.append(valu(f"v_or3_b32 v{PB}, v{PB}, v{PB+1}, v{PB+2}", R("v", PB, 3), R("v", PB)))
    o.append(valu(f"v_or_b32 v{PB}, v{PB}, v{PB+3}", R("v", PB, 4), R("v", PB)))
    o += [nop(0), valu(f"v_readfirstlane_b32 s{sT}, v{PB}", R("v", PB), set())]
    return chain(o)

def setup(cfg):
    L = []
    A = L.append
    A("s_cmp_ge_u32 s2, 256"); A("s_cbranch_scc1 L_end")
    A("s_load_dwordx4 s[4:7], s[0:1], 0"); A("s_load_dwordx4 s[8:11], s[0:1], 16")
    if cfg.stamps:
        A(f"s_load_dwordx2 s[58:59], s[0:1], {32 if cfg.dbg else 40}")
        A(f"s_memrealtime s[{sST}:{sST+1}]"); A(f"s_memtime s[{sST+4}:{sST+5}]")
    A("v_lshrrev_b32 v16, 6, v0"); A("v_and_b32 v17, 63, v0")
    A(f"v_readfirstlane_b32 s{sW}, v16")
    A(f"v_lshlrev_b32 v{vLin}, 4, v17")
    if cfg.adj: A(f"s_lshl_b32 s{sT}, s2, 1")
    else: A(f"s_mov_b32 s{sT}, s2")
    A(f"s_mul_i32 s{sOA}, s{sT}, 73728"); A(f"s_lshl_b32 s{sKVA}, s{sT}, 18")
    A(f"s_mul_i32 s{sM0}, s{sW}, {4*PS}"); A(f"s_mov_b32 s{sMODE}, -1")
    for d, n in ((sKS, 134217728), (sVS, 134217728), (sOS, 37748736), (sQA, 73728), (sQB_, 18432)):
        A(f"s_mov_b32 s{d+2}, {n}"); A(f"s_mov_b32 s{d+3}, 0x20000")
    for i in range(10): A(f"v_accvgpr_write_b32 a{aSV+i}, 0")
    if cfg.trace: A("s_mov_b32 s98, 0"); A("s_memrealtime s[94:95]"); A("s_memtime s[96:97]")
    A(f"s_mul_i32 s{sT}, s{sW}, 18432"); A(f"s_add_u32 s{sT}, s{sT}, {73728 * (1 if cfg.adj else 256)}")
    A("s_waitcnt lgkmcnt(0)")
    for d, p in ((sKS, 6), (sVS, 8), (sOS, 10)): A(f"s_mov_b64 s[{d}:{d+1}], s[{p}:{p+1}]")
    A(f"s_add_u32 s{sQA}, s4, s{sOA}"); A(f"s_addc_u32 s{sQA+1}, s5, 0")
    A(f"s_add_u32 s{sQB_}, s{sQA}, s{sT}"); A(f"s_addc_u32 s{sQB_+1}, s{sQA+1}, 0")
    return L

def lane_setup(cfg):
    L = []; A = L.append
    eb, xb = cfg.ebit, 1 - cfg.ebit
    park = lambda a, v=21: A(f"v_accvgpr_write_b32 a{a}, v{v}")
    A("v_lshrrev_b32 v16, 6, v0"); A("v_and_b32 v17, 63, v0")
    A("v_lshrrev_b32 v18, 4, v17")
    A("v_and_b32 v19, 7, v17")
    A("v_bfe_u32 v20, v17, 3, 1")
    A(f"v_bfe_u32 v24, v16, {eb}, 1"); A(f"v_bfe_u32 v25, v16, {xb}, 1")
    A(f"v_mul_u32_u24 v21, {PS}, v19"); A("v_lshl_add_u32 v26, v20, 8, v21")
    A(f"v_lshlrev_b32 v21, 4, v18"); park(aK0); A(f"v_add_u32 v{vK}, v26, v21")
    A("v_bfe_u32 v21, v17, 2, 3"); A(f"v_mul_u32_u24 v21, {PS}, v21"); A("v_lshrrev_b32 v22, 5, v17"); A("v_lshl_add_u32 v21, v22, 8, v21")
    A("v_and_b32 v23, 3, v17"); A("v_lshl_add_u32 v21, v23, 3, v21"); A(f"v_add_u32 v{vV}, {VB}, v21")
    A(f"v_mul_u32_u24 v27, {2*TS}, v16"); A(f"v_add_u32 v27, {QB}, v27"); A(f"v_add_u32 v{vQ}, v27, v{vK}")
    A(f"v_add_u32 v{vT0}, v27, v{vLin}")
    A(f"v_mul_u32_u24 v21, {2*PS}, v16"); A(f"v_add_u32 v21, {QB + 8*TS}, v21"); A(f"v_add_u32 v{vLx}, v21, v{vLin}")
    A(f"v_mul_u32_u24 v21, {18*PS}, v16"); A(f"v_add_u32 v21, {QB}, v21"); A(f"v_add_u32 v{vAux}, v21, v{vLin}")
    A(f"v_lshl_add_u32 v21, v25, 9, v{vK}"); A(f"v_add_u32 v21, {QB + 8*TS}, v21"); park(aQx)
    A("v_xor_b32 v21, v22, v20"); A("v_lshl_add_u32 v21, v21, 4, v26"); A("v_and_b32 v23, 1, v18"); A("v_lshl_add_u32 v21, v23, 3, v21")
    A(f"v_add_u32 v{vOw}, v27, v21")
    A("v_lshl_add_u32 v21, v25, 9, v21"); A("v_lshl_add_u32 v21, v24, 7, v21"); A(f"v_add_u32 v21, {QB + 8*TS}, v21"); park(aOxw)
    A(f"v_and_b32 v21, 31, v17"); A("v_lshlrev_b32 v21, 4, v21"); A(f"v_lshl_add_u32 v{vOg}, v22, 12, v21")
    A("v_lshlrev_b32 v23, 4, v23"); A("v_xor_b32 v21, v23, v21"); A(f"v_mul_u32_u24 v23, {4*PS}, v22"); A(f"v_add3_u32 v{vOr2}, v21, v23, v27")
    A(f"v_xor_b32 v21, v19, v20"); A("v_lshlrev_b32 v21, 4, v21"); A("v_lshl_add_u32 v21, v20, 8, v21"); A(f"v_mul_u32_u24 v23, {PS}, v18"); A("v_add_u32 v21, v21, v23")
    A("v_lshl_add_u32 v21, v25, 9, v21"); A("v_lshl_add_u32 v21, v24, 7, v21"); A(f"v_add_u32 v21, {QB + 8*TS}, v21"); park(aOxr)
    A("v_lshlrev_b32 v21, 4, v19"); A("v_lshl_add_u32 v21, v20, 8, v21"); A("v_lshl_add_u32 v21, v18, 10, v21")
    A("v_lshl_add_u32 v21, v25, 9, v21"); A(f"v_lshl_add_u32 v21, v24, 7, v21"); park(aOxg)
    A(f"v_lshl_add_u32 v22, v16, 12, v{vLin}"); A(f"v_add_u32 v21, {XB}, v22"); park(aXw)
    A(f"v_xor_b32 v22, {0x1000 << eb}, v22"); A(f"v_add_u32 v21, {XB}, v22"); park(aXr)
    A(f"v_lshlrev_b32 v21, 2, v0"); A(f"v_add_u32 v21, {XLB}, v21"); park(aXl); A(f"v_xor_b32 v21, {256 << eb}, v21"); park(aXlr)
    A(f"v_lshlrev_b32 v21, 2, v16"); A(f"v_add_u32 v21, {FB}, v21"); park(aFl)
    A(f"v_mov_b32 v21, 0x80008000"); park(aSGN)
    A(f"v_mov_b32 v21, 0x3f803f80")
    if cfg.ones4: A("v_and_b32 v22, 3, v17"); A("v_cmp_eq_u32 vcc, 0, v22"); A("s_nop 1"); A("v_cndmask_b32 v21, 0, v21, vcc")
    for i in range(4): park(aONE + i)
    A(f"v_mov_b32 v{vG}, 0")
    A(f"s_mov_b32 s{sC}, {C_SCALE:#x}"); A(f"s_mov_b32 s{sC+1}, {C_SCALE:#x}"); A(f"s_mov_b32 s{sTHR}, {THR:#x}"); A(f"s_mov_b32 s{sHI}, 0xffff0000")
    hb = 73728 * (1 if cfg.adj else 256)
    A(f"s_mul_i32 s{sT}, s{sW}, 18432"); A(f"s_add_u32 s{sOOFF}, s{sT}, s{sOA}")
    A(f"s_lshl_b32 s{sT}, s{sW}, 14"); A(f"s_add_u32 s{sO1}, s{sT}, s{sOA}"); A(f"s_add_u32 s{sO1}, s{sO1}, {hb}")
    A(f"s_add_u32 s{sO1X}, s{sOA}, {hb + 65536}"); A(f"s_mov_b32 s{sQOFF}, 0")
    return [salu(x) for x in L]

def prologue(cfg):
    o = stamp(cfg, 4, True)
    o += [salu(f"s_lshl_b32 s{sKV}, s{sW}, 12"), salu(f"s_add_u32 s{sKV}, s{sKV}, s{sKVA}"), salu(f"s_lshl_b32 s{sQG}, s{sW}, 14"),
          salu(f"s_lshl_b32 s{sQX}, s{sW}, 11"), salu(f"s_add_u32 s{sQX}, s{sQX}, 65536")]
    for op in start_ops()[:cfg.W]: o += issue_op(cfg, op)
    if cfg.cpf:
        for t in ("s_getpc_b64 s[48:49]", "L_pc:", "s_lshr_b32 s50, s2, 3", "s_and_b32 s50, s50, 3", "s_lshl_b32 s50, s50, 15",
                  "v_lshl_add_u32 v28, v0, 7, s50", "v_min_u32 v28, L_end-L_pc, v28", "v_mov_b32 v29, s49", "v_add_co_u32 v28, vcc, s48, v28", "s_nop 1",
                  "v_addc_co_u32 v29, vcc, 0, v29, vcc"): o.append(salu(t))
        o.append(I(f"global_load_dword v{vLp}, v[28:29], off", "vld", tag=("code",)))
    o += lane_setup(cfg)
    for q in range(5):
        for r in range(4): o.append(negm_init(0, q, r))
    for i in range(7):
        o += start_step(cfg, i, SB)
        if i in (0, 6): o += stamp(cfg, {0: 5, 6: 6}[i], True)
    o.append(wait(lg=[("Qw", 0, X)])); o.append(bar())
    o += k0reads(0) + qreads(0, X)
    return o

def prologue2(cfg, e):
    o = [kread(e, 0, 0, j >> 2, j & 3) for j in range(8)]
    o += start_step(cfg, 7, SB)
    o += [wait(lg=[("K0r", 0)])] + [k0neg(i) for i in range(16)]
    o += [kread(e, 0, 1, j >> 2, j & 3) for j in range(8)]
    for i in range(8, 14): o += start_step(cfg, i, SB)
    o += stamp(cfg, 7, True)
    o += qreads(0, 0) + qreads(0, 1)
    o.append(wait(lg=[("Qr", 0, X), ("Kr", 0, 0)]))
    o += [negm_mfma(X, s) for s in range(4)]
    o += stamp(cfg, 8, True)
    return o

def fallback(cfg):
    L = []; A = L.append
    xb = 1 - cfg.ebit
    A("s_waitcnt vmcnt(0) lgkmcnt(0)"); A("s_barrier")
    A(f"s_mov_b32 s{sMODE}, 0")
    A("v_and_b32 v16, 63, v0"); A("v_lshrrev_b32 v17, 4, v16")
    A("v_and_b32 v18, 7, v16"); A("v_bfe_u32 v19, v16, 3, 1"); A("v_lshl_add_u32 v18, v18, 2, v19")
    A("v_lshlrev_b32 v18, 8, v18"); A("v_lshl_add_u32 v18, v17, 4, v18")
    A("v_and_b32 v19, 15, v16"); A("v_lshlrev_b32 v19, 8, v19"); A("v_lshl_add_u32 v19, v17, 4, v19")
    A(f"s_mov_b32 s{sT+4}, s4"); A(f"s_mov_b32 s{sT+5}, s5"); A(f"s_mov_b32 s{sT+6}, 37748736"); A(f"s_mov_b32 s{sT+7}, 0x20000")
    for h in range(2):
        hq = 73728 * (1 if cfg.adj else 256) * h; hk = 262144 * (1 if cfg.adj else 256) * h
        for q in range(5):
            if q < 4:
                A(f"s_lshl_b32 s{sT}, s{sW}, 14"); A(f"s_add_u32 s{sT}, s{sT}, {hq + (q >> 1) * 8192 + (q & 1) * 512}")
            else:
                A(f"s_bfe_u32 s{sT}, s{sW}, {0x10000 + xb:#x}"); A(f"s_lshl_b32 s{sT}, s{sT}, 9"); A(f"s_add_u32 s{sT}, s{sT}, {hq + 65536}")
            A(f"s_add_u32 s{sT}, s{sT}, s{sOA}")
            for s in range(4): A(f"buffer_load_dwordx4 {rs('v', OB+16*q+4*s, 4)}, v18, s[{sT+4}:{sT+7}], s{sT} offen{off(64*s)}")
        A("s_waitcnt vmcnt(0)")
        for r in range(80):
            for ins in scale_reg(OB + r, TSC + 2 * (r & 1), True): A(ins.text)
        for i in range(5): A(f"v_mov_b32 v{NEGM+i}, 0xff800000")
        A(f"s_add_u32 s{sT}, s{sKVA}, {hk}"); A(f"s_mov_b32 s{sT+1}, 64")
        A(f"L_fb{h}:")
        for s in range(4): A(f"buffer_load_dwordx4 {rs('v', SB+4*s, 4)}, v19, s[{sKS}:{sKS+3}], s{sT} offen{off(64*s)}")
        A("s_waitcnt vmcnt(0)")
        for q in range(5):
            for s in range(4): A(mfma("v", 192 + 4 * q, "v", SB + 4 * s, "v", OB + 16 * q + 4 * s, None if s == 0 else 192 + 4 * q).text)
        A("s_nop 7"); A("s_nop 1")
        for q in range(5):
            A(f"v_max3_f32 v{NEGM+q}, v{NEGM+q}, v{192+4*q}, v{193+4*q}"); A(f"v_max3_f32 v{NEGM+q}, v{NEGM+q}, v{194+4*q}, v{195+4*q}")
        A(f"s_add_u32 s{sT}, s{sT}, 4096"); A(f"s_sub_u32 s{sT+1}, s{sT+1}, 1"); A(f"s_cmp_lg_u32 s{sT+1}, 0"); A(f"s_cbranch_scc1 L_fb{h}")
        for x in (16, 32):
            A(f"v_xor_b32 v20, {x}, v16"); A("v_lshlrev_b32 v20, 2, v20")
            for q in range(5): A(f"ds_bpermute_b32 v{SB+q}, v20, v{NEGM+q}")
            A("s_waitcnt lgkmcnt(0)")
            for q in range(5): A(f"v_max_f32 v{NEGM+q}, v{NEGM+q}, v{SB+q}")
        for q in range(5): A(f"v_xor_b32 v{NEGM+q}, 0x80000000, v{NEGM+q}")
        for q in range(5): A(f"v_accvgpr_write_b32 a{aSV+5*h+q}, v{NEGM+q}")
    A("s_nop 1")
    A("s_branch L_start")
    return L

def match(tag, want): return isinstance(tag, tuple) and any(tag[:len(w)] == w for w in want)
def resolve(tr):
    vm = []; lg = []; vdone = 0; ldone = 0; pend = {}; epoch = 0; ev = []
    for k, ins in enumerate(tr): ins.idx = k
    for ins in tr:
        for a in ins.after: assert a.idx < ins.idx, f"order: {a.text} must precede {ins.text}"
        for r in ins.rd | ins.wr:
            if r in pend:
                c, idx = pend[r]
                assert idx < (vdone if c == "vm" else ldone), f"unwaited load of {r} at {ins.text} ({ins.idx})"
                del pend[r]
        if ins.kind == "wait":
            ins.nvm = ins.nlg = None
            v0, l0 = vdone, ldone
            for want, lst, mx, c in ((ins.vm, vm, 63, "vm"), (ins.lg, lg, 14, "lg")):
                if not want: continue
                idx = next((i for i in range(len(lst) - 1, -1, -1) if match(lst[i].tag, want)), -1)
                if idx < 0: continue
                n = min(len(lst) - 1 - idx, mx)
                if c == "vm": ins.nvm = n; vdone = max(vdone, len(lst) - n)
                else: ins.nlg = n; ldone = max(ldone, len(lst) - n)
            for x in vm[v0:vdone] + lg[l0:ldone]: x.edone = epoch
        elif ins.kind == "bar": epoch += 1
        elif ins.kind in ("dma", "vld", "vst"):
            vm.append(ins)
            assert len(vm) - vdone <= 62
            for r in ins.wr: pend[r] = ("vm", len(vm) - 1)
        elif ins.kind in ("dsr", "dsw"):
            lg.append(ins)
            for r in ins.wr: pend[r] = ("lg", len(lg) - 1)
        if ins.lds: ins.eissue = epoch; ev.append(ins)
    return epoch, ev
def check_lds(evs):
    INF = 10 ** 9
    def before(a, b, msg): assert max(getattr(x, "edone", INF) for x in a) < min(x.eissue for x in b), msg
    reg = {}
    for ev in evs:
        for x in ev: reg.setdefault(x.lds[1], {}).setdefault(x.lds[2], {"r": [], "w": []})[x.lds[0]].append(x)
    for r, cont in reg.items():
        if r == "QO": continue
        order = sorted(cont, key=lambda c: min(x.eissue for x in cont[c]["w"]))
        for i, c in enumerate(order):
            before(cont[c]["w"], cont[c]["r"], f"LDS RAW {r} {c}")
            if i + 1 < len(order): before(cont[c]["r"] + cont[c]["w"], cont[order[i + 1]]["w"], f"LDS WAR {r} {c}")
    c = reg["QO"]
    before(c[("Q", 1)]["w"], c[("Q", 1)]["r"], "Q RAW")
    before([x for x in c[("Q", 0)]["w"] if x.lds[3] == X], [x for x in c[("Q", 0)]["r"] if x.lds[3] == X], "Q0x RAW")
    for ev in evs:
        for q in range(4):
            assert max(x.idx for x in ev if x.lds[:3] == ("w", "QO", ("Q", 0)) and x.lds[3] == q >> 1) < min(x.idx for x in ev if x.lds == ("r", "QO", ("Q", 0), q))
    before(c[("Q", 0)]["r"], c[("Q", 1)]["w"], "Q0->Q1")
    before([x for x in c[("Q", 1)]["r"] if x.lds[3] == X], [x for x in c[("O", 0)]["w"] if x.lds[3] == X], "Q1x->O0x")
    before(c[("O", 0)]["w"], c[("O", 0)]["r"], "O0 RAW")
    before(c[("O", 0)]["r"], c[("O", 1)]["w"], "O0->O1")
    for ev in evs:
        for q in range(5):
            sel = lambda m, cc: [x.idx for x in ev if x.lds[1] == "QO" and x.lds[0] == m and x.lds[2] == cc and len(x.lds) > 3 and x.lds[3] == q]
            assert max(sel("r", ("Q", 1))) < min(sel("w", ("O", 0))) and max(sel("w", ("O", 1))) < min(sel("r", ("O", 1)))
def check_hazards(tr):
    seq = [x for x in tr if x.kind != "label"]
    def ws(x): return x.tag + 1 if x.kind == "nop" else 1
    for i, c in enumerate(seq):
        d = 0
        for j in range(i - 1, max(-1, i - 12), -1):
            p = seq[j]; need = 0
            isv = c.kind in ("valu", "trans", "pk"); mem = c.kind in ("dsr", "dsw", "dma", "vld", "vst")
            if p.kind == "mfma":
                if (isv or mem) and p.wr & (c.rd | c.wr): need = 8
                if c.kind == "mfma":
                    if p.wr & (c.rd - c.srcc): need = 8
                    if p.wr & c.srcc and p.wr != c.srcc: need = 6
                if isv and p.srcc & c.wr: need = max(need, 3)
            if p.kind in ("valu", "trans", "pk") and c.kind == "mfma" and p.wr & c.rd: need = 2
            if p.kind == "trans" and c.kind in ("valu", "pk") and p.wr & c.rd: need = 1
            if p.kind == "salu" and c.kind == "dma" and ("s", "m0") in p.wr: need = 1
            if p.kind == "vst" and (p.rd & c.wr): need = 2
            if p.kind in ("valu", "trans") and "readfirstlane" in c.text and p.wr & c.rd: need = 1
            assert d >= need, f"hazard: {p.text} -> {c.text} needs {need}, has {d}"
            d += ws(p)
def check_values(tr):
    state = {}
    for x in tr:
        for r in x.rd:
            if r in state: state[r] = (state[r][0], True)
        for r in x.wr:
            if r in state and not state[r][1] and r[0] in "va" and r not in x.rd:
                p = state[r][0]
                dead_ok = (p.kind == "mfma" and r[0] == "a") or (match(p.tag, [("Ql", 1)]) and p.tag[2] >= 18)
                assert dead_ok, f"value of {r} from '{p.text}' overwritten unread by '{x.text}'"
            state[r] = (x, False)

def build(cfg):
    out = ["; GQA softmax attention, B16 H32 Sq288 Sk1024 D128 bf16 (schedule emitted by my own generator script)",
           f"; @launch grid=(256,1,1) block=(256,1,1) lds={LDS_BYTES}",
           '.amdgcn_target "amdgcn-amd-amdhsa--gfx950"', ".text", f".globl {NAME}", ".p2align 8", f".type {NAME},@function", f"{NAME}:"]
    out += setup(cfg)
    out.append("L_start:")
    evs = []; eps = []; texts = []; common = {}
    for e in range(2):
        segs = [("pro", prologue(cfg)), ("pro2", prologue2(cfg, e))]
        st, bounds = main_stream(cfg, e)
        cuts = [bounds[(h, b)] for h in range(2) for b in range(8)] + [len(st.m)]
        for k in range(16): segs.append((divmod(k, 8), st.emit(cuts[k], cuts[k + 1])))
        segs.append(("tail", stamp(cfg, 4) + tail(cfg) + stamp(cfg, 5)))
        tr = [x for _, s in segs for x in s]
        ep, ev = resolve(tr); eps.append(ep); evs.append(ev)
        if not cfg.fsum: check_hazards(tr); check_values(tr)
        d = dict(segs)
        for h, b0, b2 in [(h,) + l for h in range(2) for l in loops(cfg, h)]:
            ref = d[(h, b0)]
            for b in range(b0 + 1, b2):
                cur = d[(h, b)]
                assert len(cur) == len(ref), (h, b, len(cur), len(ref))
                for x, y in zip(ref, cur):
                    assert x.kind == y.kind and x.text == y.text, (h, b, x.text, y.text)
                    if x.kind == "wait":
                        for a in ("nvm", "nlg"):
                            vals = [v for v in (getattr(x, a), getattr(y, a)) if v is not None]
                            setattr(x, a, min(vals) if vals else None)
        t = []
        for k, s in segs:
            p = [x.render() for x in s]
            if k in ("pro", "tail"):
                assert common.setdefault(k, p) == p; continue
            if isinstance(k, tuple):
                if any(b1 < k[1] < b2 for b1, b2 in loops(cfg, k[0])): continue
                if any(b1 == k[1] for b1, b2 in loops(cfg, k[0])): t.append(f"L_m{k[0]}{k[1]}{e}:")
            t += p
        texts.append(t)
    assert eps[0] == eps[1]
    if not cfg.nodma: check_lds(evs)
    out += common["pro"]
    out += [f"s_bitcmp1_b32 s{sW}, {cfg.ebit}", "s_cbranch_scc1 L_odd"]
    out += texts[0] + ["s_branch L_tail", ".p2align 6", "L_odd:"] + texts[1] + ["L_tail:"] + common["tail"]
    if cfg.nodma: out += [f"s_mov_b32 s{sT}, 0"]
    out += ["s_nop 3", f"s_and_b32 s{sT}, s{sT}, s{sMODE}", "s_cbranch_scc1 L_fallback"]
    if cfg.probe >= 0:
        out += ["s_waitcnt vmcnt(0)"] + (["s_memrealtime s[90:91]"] if cfg.probe == 16 else []) + ["s_waitcnt lgkmcnt(0)", "s_add_u32 s90, s90, 10000",
                "L_spin:", "s_memrealtime s[92:93]", "s_waitcnt lgkmcnt(0)", "s_sub_u32 s92, s92, s90", "s_cmp_lt_i32 s92, 0", "s_cbranch_scc1 L_spin"]
    if cfg.trace:
        out += ["s_waitcnt lgkmcnt(0)", "s_mov_b32 m0, s98", f"v_writelane_b32 v{vTR0}, s94, m0", f"v_writelane_b32 v{vTR1}, s96, m0", f"v_mov_b32 v38, v{vTR0}", f"v_mov_b32 v39, v{vTR1}", f"s_cmp_lg_u32 s{sW}, 0", "s_cbranch_scc1 L_notr",
                f"s_lshl_b32 s{sT}, s2, 9", f"s_add_u32 s{sT}, s{sT}, 0x100000", f"v_lshl_add_u32 v20, v0, 3, s{sT}", "global_store_dwordx2 v20, v[38:39], s[58:59]", "L_notr:"]
    if cfg.stamps:
        n = cfg.stamps
        out += ["s_waitcnt vmcnt(0)", "s_barrier", f"s_memrealtime s[{sST+2}:{sST+3}]", f"s_memtime s[{sST+6}:{sST+7}]", "s_waitcnt lgkmcnt(0)",
                f"s_cmp_lg_u32 s{sW}, 0", "s_cbranch_scc1 L_end", f"s_mul_i32 s{sT}, s2, {n*8}", f"v_mov_b32 v20, s{sT}",
                "v_cmp_eq_u32 vcc, 0, v0", "s_and_saveexec_b64 s[50:51], vcc"]
        if cfg.dbg:
            out += ["s_cmp_ge_u32 s2, 8", "s_cbranch_scc1 L_end", f"s_lshl_b32 s{sT}, s2, 3", f"v_mov_b32 v20, s{sT}",
                    f"s_sub_u32 s{sT}, s{sST+2}, s{sST}", f"v_mov_b32 v22, s{sT}", f"s_sub_u32 s{sT}, s{sST+6}, s{sST+4}", f"v_mov_b32 v23, s{sT}",
                    "global_store_dwordx2 v20, v[22:23], s[58:59]"]
        else:
            if cfg.rt:
                for i in range(4, n):
                    r = sST + 2 * i
                    out += [f"s_sub_u32 s{r}, s{r}, s{sST}", f"s_subb_u32 s{r+1}, s{r+1}, s{sST+1}", f"s_add_u32 s{r}, s{r}, s{sST+4}", f"s_addc_u32 s{r+1}, s{r+1}, s{sST+5}"]
            for i in range(n):
                out += [f"v_mov_b32 v{22+2*i}, s{sST+2*i}", f"v_mov_b32 v{23+2*i}, s{sST+2*i+1}", f"global_store_dwordx2 v20, v[{22+2*i}:{23+2*i}], s[58:59] offset:{8*i}"]
    out += ["L_end:", "s_endpgm", "L_fallback:"] + fallback(cfg)
    out += ['.section .rodata,"a"', ".p2align 6", f".amdhsa_kernel {NAME}",
            "  .amdhsa_next_free_vgpr 512", "  .amdhsa_next_free_sgpr 102", "  .amdhsa_accum_offset 256",
            "  .amdhsa_group_segment_fixed_size 0", "  .amdhsa_kernarg_size 48", "  .amdhsa_user_sgpr_count 2",
            "  .amdhsa_user_sgpr_kernarg_segment_ptr 1", "  .amdhsa_system_sgpr_workgroup_id_x 1", ".end_amdhsa_kernel"]
    return "\n".join(out) + "\n"

def parse(args):
    kw = {}
    for a in args:
        k, v = a.split("=", 1)
        kw[k] = int(v) if re.fullmatch(r"-?\d+", v) else v.replace("+", " ")
    return Cfg(**kw)
if __name__ == "__main__":
    s = build(parse(sys.argv[2:]))
    open(sys.argv[1], "w").write(s)
    print(sys.argv[1], len(s), "bytes", s.count("\n"), "lines")
```

```python
import sys, re, math, struct, copy

NAME = "standalone__gqa_softmax__near_ridge_kernel"

PS = 1056
TS = 8 * PS
KB = 0
VB = 4 * TS
QB = 8 * TS
XB = 17 * TS
XLB = (XB + 16384 + 1023) // 1024 * 1024
FB = XLB + 1024
LDS_BYTES = 163840
assert FB + 16 <= LDS_BYTES

vK, vV, vLin, vAux, vG, vQ, vOw, vOr2, vOg, vT0, vLx, vLp, vTR0 = range(1, 14)
vRC = 14; vTR1 = 15
T16 = 16
TSC = 32
NEGM = 36
SB = 56
PB = 80
OB = 96
aQ = 0; aK = 80; aV = 144; aL = 208; aONE = 228; aSV = 232
aQx, aK0, aSGN, aXw, aXr, aXl, aXlr, aOxw, aOxr, aOxg, aFl, aOr = range(242, 254)
X = 4

sW = 3
sKS, sVS, sQA, sQB_, sOS = 12, 16, 20, 24, 28
sKV, sM0, sCNT, sQOFF, sOOFF = 32, 33, 34, 35, 36
sC = 38
sTHR, sMODE = 40, 41
sO1 = 42
sO1X = 43
sHI = 45
sQG, sQX = 46, 47
sXCC = 44
sT = 48
sOA = 56
sKVA = 57
sST = 60

def f32bits(x): return struct.unpack("<I", struct.pack("<f", x))[0]
C_SCALE = f32bits(math.log2(math.e) / math.sqrt(128.0))
THR = f32bits(2.0 ** 40)

def R(c, n, k=1): return {(c, n + i) for i in range(k)}
def rs(c, n, k=1): return f"{c}{n}" if k == 1 else f"{c}[{n}:{n+k-1}]"

class I:
    def __init__(s, text, kind, rd=(), wr=(), srcc=(), tag=None, vm=None, lg=None, lds=None):
        s.text, s.kind, s.rd, s.wr, s.srcc = text, kind, set(rd), set(wr), set(srcc)
        s.tag, s.vm, s.lg, s.lds = tag, vm, lg, lds
        s.nvm = s.nlg = None; s.after = []
    def render(s):
        if s.kind == "wait":
            p = []
            if s.nvm is not None: p.append(f"vmcnt({s.nvm})")
            if s.nlg is not None: p.append(f"lgkmcnt({s.nlg})")
            return "s_waitcnt " + " ".join(p) if p else "s_nop 0"
        return s.text
def chain(lst):
    for a, b in zip(lst, lst[1:]): b.after.append(a)
    return lst

def mfma(dc, d, ac, a, bc, b, c):
    ct = "0" if c is None else rs(dc, c, 4)
    cr = set() if c is None else R(dc, c, 4)
    return I(f"v_mfma_f32_16x16x32_bf16 {rs(dc,d,4)}, {rs(ac,a,4)}, {rs(bc,b,4)}, {ct}", "mfma",
             rd=R(ac, a, 4) | R(bc, b, 4) | cr, wr=R(dc, d, 4), srcc=cr)
def valu(text, rd, wr, kind="valu"): return I(text, kind, rd=rd, wr=wr)
def salu(text, wr=()): return I(text, "salu", wr=wr)
def wait(vm=None, lg=None): return I("", "wait", vm=vm, lg=lg)
def bar(): return I("s_barrier", "bar")
def nop(n): return I(f"s_nop {n}", "nop", tag=n)
def label(n): return I(f"{n}:", "label")
def off(o): return f" offset:{o}" if o else ""
def dsr128(dc, d, addr, o, tag, lds): return I(f"ds_read_b128 {rs(dc,d,4)}, v{addr}{off(o)}", "dsr", rd=R("v", addr), wr=R(dc, d, 4), tag=tag, lds=lds)
def dsrtr(dc, d, addr, o, tag, lds): return I(f"ds_read_b64_tr_b16 {rs(dc,d,2)}, v{addr}{off(o)}", "dsr", rd=R("v", addr), wr=R(dc, d, 2), tag=tag, lds=lds)
def dsw(n, addr, src, o, tag, lds):
    return I(f"ds_write_b{32*n} v{addr}, {rs('v',src,n)}{off(o)}", "dsw", rd=R("v", addr) | R("v", src, n), tag=tag, lds=lds)

class Cfg:
    W = 6
    nt = "nt"
    snt = "sc0 sc1"
    adj = 0
    BK = 114
    BV = 5
    BF = 74
    kd0 = 50
    kd1 = 82
    vd0 = 80
    vd1 = 112
    dk0 = 10
    dk1 = 50
    dv0 = 76
    dv1 = 96
    opos = 108
    sw = 14
    qpk = 0
    k20 = 100
    eshift = 4
    ebit = 0
    ones4 = 1
    cpf = 1
    pk = 1
    opat = 'o222'
    lev = 'L93331'
    lev2 = ''
    xpar = 1
    levM1 = ''
    split = 5
    stamps = 0
    rt = 0
    pst = 0
    trace = 0
    dbg = 0
    nodma = 0
    peel = 0
    slowall = 0
    slowB = -1
    prof = ''
    fsum = ''
    fneg = 0
    slowpos = ''
    probe = -1
    slowe = 0
    slowm = 200
    slowdec = 1
    def __init__(s, **kw):
        for k, v in kw.items():
            assert hasattr(Cfg, k), k
            setattr(s, k, v)

QUADS = {"hold": 1, "holdm": 3, "pk": 9, "salu": 1, "wait": 1, "bar": 1, "nop": 1, "valu": 1, "trans": 2, "dsr": 2, "dsw": 3, "dma": 3, "vld": 3, "vst": 3}
ORDER = {"hold": 0, "holdm": 1, "pk": 2, "salu": 0, "wait": 0, "bar": 0, "nop": 0, "dsr": 1, "dsw": 1, "dma": 1, "vld": 1, "vst": 1, "valu": 2, "trans": 2}
class Stream:
    def __init__(s):
        s.m = []; s.g = []; s.pos = {}; s.flip = set()
    def add(s, ins, key=None):
        if key is not None: s.pos[key] = len(s.m)
        s.m.append(ins); s.g.append([])
    def fits(s, i, ins, two_ds=False):
        g = s.g[i] + [ins]
        nds = sum(x.kind == "dsr" for x in g)
        if nds > (2 if two_ds else 1): return False
        q = sum(QUADS[x.kind] for x in g) - (1 if nds == 2 else 0)
        v = sum(QUADS[x.kind] for x in g if x.kind in ("valu", "trans"))
        return q <= 3 and v <= 2
    def put(s, i, ins): s.g[i].append(ins); return i
    def place(s, ins, lo, hi, pref=None):
        if pref:
            for i in range(lo, hi + 1):
                if pref(s.g[i]) and s.fits(i, ins): return s.put(i, ins)
        for i in range(lo, hi + 1):
            if s.fits(i, ins): return s.put(i, ins)
        for i in range(lo, hi + 1):
            if s.fits(i, ins, True): return s.put(i, ins)
        raise RuntimeError(f"cannot place {ins.text} in [{lo},{hi}]")
    def late(s, ins, lo, hi):
        for i in range(hi, lo - 1, -1):
            if s.fits(i, ins): return s.put(i, ins)
        return s.put(hi, ins)
    def spread(s, lst, lo, hi, asap=False):
        lst = [x if isinstance(x, tuple) else (x, 0) for x in lst]
        chain([x for x, _ in lst])
        n = sum(x.kind != "pk" for x, _ in lst); cur = lo; npk = 0
        dm = [max(d, 1) if k and ORDER[x.kind] < ORDER[lst[k - 1][0].kind] else d for k, (x, d) in enumerate(lst)]
        for k, (ins, _) in enumerate(lst):
            a = cur + dm[k]
            lim = hi - sum(dm[k + 1:])
            assert a <= lim, f"spread overflow {ins.text} {a} > {lim}"
            tgt = min(lim, max(a, lo + ((k - npk) * (hi - lo + 1)) // n))
            if asap: tgt = lim
            if ins.kind == "pk": s.put(a, ins); cur = a; npk += 1; continue
            i = next((j for j in range(a, tgt + 1) if s.fits(j, ins)), None)
            if i is None:
                i = tgt
                if ORDER[ins.kind] == 1:
                    i = next((j for j in range(tgt, min(tgt + 3, lim) + 1) if not any(ORDER[y.kind] == 1 for y in s.g[j])), tgt)
            s.put(i, ins); cur = i
        return cur
    def srt(s, i):
        if any(getattr(x, "inorder", False) for x in s.g[i]): return list(s.g[i])
        if i in s.flip: return sorted(s.g[i], key=lambda x: {0: 0, 1: 2, 2: 1}[ORDER[x.kind]])
        return sorted(s.g[i], key=lambda x: ORDER[x.kind])
    def emit(s, lo, hi):
        out = []
        if lo > 0: out += [x for x in s.srt(lo - 1) if ORDER[x.kind] > 0]
        for i in range(lo, hi):
            if s.m[i] is not None: out.append(s.m[i])
            out += [x for x in s.srt(i) if i < hi - 1 or hi == len(s.m) or ORDER[x.kind] == 0]
        return out

def dma(cfg, kv, S, j):
    base = (KB if kv == "K" else VB) + (S & 1) * 2 * TS + j * (PS - 1024)
    srd = sKS if kv == "K" else sVS
    return [salu(f"s_add_u32 m0, s{sM0}, {base}", wr={("s", "m0")}),
            I(f"buffer_load_dwordx4 v{vLin}, s[{srd}:{srd+3}], s{sKV} offen{off(1024*j)} {cfg.nt} lds", "dma",
              rd=R("v", vLin) | {("s", "m0")}, tag=(kv, S, j), lds=("w", (kv, S & 1), (kv, S)))]
def kv_step(cfg, S):
    d = 16384
    if S == 16 and not cfg.adj: d = 16384 + 255 * 262144
    return salu(f"s_add_u32 s{sKV}, s{sKV}, {d}")
def kread(e, S, r, kb, s): return dsr128("a", aK + 32 * r + 16 * kb + 4 * s, vK, (2 * (S & 1) + (e ^ r)) * TS + 512 * kb + 64 * s, ("Kr", S, r), ("r", ("K", S & 1), ("K", S)))
def vread(e, S, r, dt, kb): return dsrtr("a", aV + 32 * r + 4 * dt + 2 * kb, vV, (2 * (S & 1) + (e ^ r)) * TS + 512 * kb + 32 * dt, ("Vr", S, r, dt >> 2), ("r", ("V", S & 1), ("V", S)))
def qoff(q): return (q >> 1) * TS + (q & 1) * 512
def unpark(v, a): return valu(f"v_accvgpr_read_b32 v{v}, a{a}", R("a", a), R("v", v))
def qreads(h, q):
    if q == X: return [unpark(TSC, aQx)] + [dsr128("a", aQ + 16 * q + 4 * s, TSC, 64 * s, ("Qr", h, q), ("r", "QO", ("Q", h), q)) for s in range(4)]
    return [dsr128("a", aQ + 16 * q + 4 * s, vQ, qoff(q) + 64 * s, ("Qr", h, q), ("r", "QO", ("Q", h), q)) for s in range(4)]
def k0reads(h): return [unpark(TSC + 2, aK0), unpark(TSC + 3, aSGN)] + [dsr128("v", T16 + 4 * s, TSC + 2, 64 * s, ("K0r", h), ("r", ("K", 0), ("K", 16 * h))) for s in range(4)]
def k0neg(i): return valu(f"v_bitop3_b32 v{T16+i}, v{T16+i}, v{TSC+3}, s{sMODE} bitop3:0x28", R("v", T16 + i) | R("v", TSC + 3), R("v", T16 + i))
def negm_init(h, q, r): return valu(f"v_accvgpr_read_b32 v{NEGM+4*q+r}, a{aSV+5*h+q}", R("a", aSV + 5 * h + q), R("v", NEGM + 4 * q + r))
def negm_mfma(q, s): return mfma("v", NEGM + 4 * q, "v", T16 + 4 * s, "a", aQ + 16 * q + 4 * s, NEGM + 4 * q)
def scale_reg(src, t, packed):
    o = [valu(f"v_lshlrev_b32 v{t}, 16, v{src}", R("v", src), R("v", t)),
         valu(f"v_and_b32 v{t+1}, s{sHI}, v{src}", R("v", src), R("v", t + 1))]
    if packed:
        o.append(valu(f"v_pk_mul_f32 v[{t}:{t+1}], v[{t}:{t+1}], s[{sC}:{sC+1}]", R("v", t, 2), R("v", t, 2)))
    else:
        o.append(valu(f"v_mul_f32 v{t}, s{sC}, v{t}", R("v", t), R("v", t)))
        o.append(valu(f"v_mul_f32 v{t+1}, s{sC}, v{t+1}", R("v", t + 1), R("v", t + 1)))
    o.append(valu(f"v_cvt_pk_bf16_f32 v{src}, v{t}, v{t+1}", R("v", t, 2), R("v", src)))
    return o
def scale_piece(src, t):
    c = [scale_reg(src + r, t + 2 * r, True) for r in range(4)]
    return [x for r in range(4) for x in c[r][:2]] + [c[r][2] for r in range(4)] + [c[r][3] for r in range(4)]
def stamp(cfg, k, pro=False):
    if bool(cfg.pst) != pro: return []
    op = "s_memrealtime" if cfg.rt else "s_memtime"
    return [I(f"{op} s[{sST+2*k}:{sST+2*k+1}]", "salu")] if cfg.stamps > k else []
def ostore(cfg, buf, voff, soff, o, tag):
    return I(f"buffer_store_dwordx4 {rs('v',buf,4)}, v{voff}, s[{sOS}:{sOS+3}], s{soff} offen{off(o)} {cfg.snt}", "vst", rd=R("v", voff) | R("v", buf, 4), tag=tag)

def muls(b, n, packed):
    if packed: return [valu(f"v_pk_mul_f32 v[{b+k}:{b+k+1}], v[{b+k}:{b+k+1}], v[{vRC}:{vRC+1}] op_sel_hi:[1,0]", R("v", b + k, 2) | R("v", vRC), R("v", b + k, 2), "pk") for k in range(0, n, 2)]
    return [valu(f"v_mul_f32 v{b+k}, v{vRC}, v{b+k}", R("v", b + k) | R("v", vRC), R("v", b + k)) for k in range(n)]
def cvts(b): return [valu(f"v_cvt_pk_bf16_f32 v{b}, v{b}, v{b+1}", R("v", b, 2), R("v", b)), valu(f"v_cvt_pk_bf16_f32 v{b+1}, v{b+2}, v{b+3}", R("v", b + 2, 2), R("v", b + 1))]
def q_head(q):
    return [valu(f"v_accvgpr_read_b32 v{vT0}, a{aL+4*q}", R("a", aL + 4 * q), R("v", vT0)),
            valu(f"v_rcp_f32 v{vRC}, v{vT0}", R("v", vT0), R("v", vRC), "trans"),
            valu(f"v_add_f32 v{vG}, v{vG}, v{vT0}", R("v", vG) | R("v", vT0), R("v", vG))]
def q_stage(h, q, packed):
    o = muls(OB + 32 * q, 32, True) if packed else []
    for dt in range(8):
        b = OB + 32 * q + 4 * dt
        o += ([] if packed else muls(b, 4, False)) + cvts(b) + [dsw(2, vOw, b, qoff(q) + 32 * dt, ("Ow", h), ("w", "QO", ("O", h), q))]
    return o
def q_out(cfg, q, lat=8):
    b = OB + 32 * q
    o = [dsr128("v", b + 4 * i, vOr2, qoff(q) + i * PS, ("Op", q, i), ("r", "QO", ("O", 1), q)) for i in range(4)]
    if q == 2: o.append(salu(f"s_add_u32 s{sO1}, s{sO1}, 8192"))
    for i in range(4):
        o += [(wait(lg=[("Op", q, i)]), lat if i == 0 else 0), ostore(cfg, b + 4 * i, vOg, sO1, 1024 * i + 512 * (q & 1), ("Os", 1))]
    return o
def x_send(e, h):
    o = [unpark(TSC, aXw), unpark(TSC + 1, aXl), valu(f"v_accvgpr_read_b32 v{vLx}, a{aL+4*X}", R("a", aL + 4 * X), R("v", vLx))]
    o += [dsw(4, TSC, OB + 32 * X + 16 * (1 - e) + 4 * i, 1024 * i, ("Xw", h), ("w", "X", ("X", h))) for i in range(4)]
    o += [dsw(1, TSC + 1, vLx, 0, ("Xw", h), ("w", "X", ("X", h))), unpark(TSC, aXr), unpark(TSC + 1, aXlr)]
    return o
def x_recv(e, h):
    snd = OB + 32 * X + 16 * (1 - e)
    o = [I(f"ds_read_b32 v{vLp}, v{TSC+1}", "dsr", rd=R("v", TSC + 1), wr=R("v", vLp), tag=("Xr", h), lds=("r", "X", ("X", h)))]
    o += [dsr128("v", snd + 4 * i, TSC, 1024 * i, ("Xr", h), ("r", "X", ("X", h))) for i in range(4)]
    return o + [unpark(TSC, aOxw)]
def x_stage(e, h, packed):
    kp = OB + 32 * X + 16 * e; snd = OB + 32 * X + 16 * (1 - e)
    o = [wait(lg=[("Xr", h)]), valu(f"v_add_f32 v{vLx}, v{vLx}, v{vLp}", R("v", vLx, 2), R("v", vLx)),
         valu(f"v_rcp_f32 v{vRC}, v{vLx}", R("v", vLx), R("v", vRC), "trans"),
         valu(f"v_add_f32 v{vG}, v{vG}, v{vLx}", R("v", vG) | R("v", vLx), R("v", vG))]
    if packed:
        o += [valu(f"v_pk_add_f32 v[{kp+k}:{kp+k+1}], v[{kp+k}:{kp+k+1}], v[{snd+k}:{snd+k+1}]", R("v", kp + k, 2) | R("v", snd + k, 2), R("v", kp + k, 2), "pk") for k in range(0, 16, 2)]
        o += muls(kp, 16, True)
    for i in range(4):
        if not packed:
            o += [valu(f"v_add_f32 v{kp+4*i+k}, v{kp+4*i+k}, v{snd+4*i+k}", R("v", kp + 4 * i + k) | R("v", snd + 4 * i + k), R("v", kp + 4 * i + k)) for k in range(4)]
            o += muls(kp + 4 * i, 4, False)
        o += cvts(kp + 4 * i) + [dsw(2, TSC, kp + 4 * i, 32 * i, ("Ow", h), ("w", "QO", ("O", h), X))]
    return o
def x_out(cfg, e, h):
    snd = OB + 32 * X + 16 * (1 - e)
    o = [unpark(TSC, aOxr), unpark(TSC + 1, aOxg)]
    o += [dsr128("v", snd + 4 * k, TSC, 4 * k * PS, ("Op", X, h, k), ("r", "QO", ("O", h), X)) for k in range(2)]
    o += [(wait(lg=[("Op", X, h, 0)]), 6), ostore(cfg, snd, TSC + 1, sO1X, 0, ("Os", h)), salu(f"s_add_u32 s{sO1X}, s{sO1X}, 4096"),
          wait(lg=[("Op", X, h, 1)]), ostore(cfg, snd + 4, TSC + 1, sO1X, 0, ("Os", h))]
    if h == 0: o.append(salu(f"s_add_u32 s{sO1X}, s{sO1X}, {73728 * (1 if cfg.adj else 256) - 4096}"))
    return o

def start_ops():
    kv = lambda c, S: [(c, S, j) for j in range(4)]
    return kv("K", 0) + [("X", 0), ("X", 1)] + [("G", j) for j in range(8)] + kv("V", 0) + [("G", j) for j in range(8, 16)] + kv("K", 1) + kv("V", 1)
def land(op): return OB + 32 + 4 * op[1] if op[0] == "X" else OB + 64 + 4 * op[1]
def op_tag(op): return ("Ql", 0) + op if op[0] in "XG" else op
def issue_op(cfg, op, pad=True):
    if op[0] in "XG":
        j = op[1]; so = sQX if op[0] == "X" else sQG
        r = [salu(f"s_add_u32 s{sQG}, s{sQG}, 4096")] if (op[0] == "G" and j and j % 4 == 0) else []
        return r + [I(f"buffer_load_dwordx4 {rs('v',land(op),4)}, v{vLin}, s[{sQA}:{sQA+3}], s{so} offen{off(1024*(j&3))} {cfg.nt}", "vld",
                      rd=R("v", vLin), wr=R("v", land(op), 4), tag=op_tag(op))]
    kv, S, j = op
    m0, ld = dma(cfg, kv, S, j)
    return ([kv_step(cfg, S)] if (kv == "K" and j == 0 and S) else []) + [m0, nop(0), ld]
def start_step(cfg, i, tmp):
    ops = start_ops(); op = ops[i]
    o = [wait(vm=[op_tag(op)])]
    if i + cfg.W < len(ops): o += issue_op(cfg, ops[i + cfg.W])
    if op[0] == "X": o += scale_piece(land(op), tmp) + [dsw(4, vLx, land(op), PS * op[1], ("Qw", 0, X), ("w", "QO", ("Q", 0), X))]
    if op[0] == "G": o += scale_piece(land(op), tmp) + [dsw(4, vT0, land(op), PS * op[1], ("Qw", 0, op[1] >> 3), ("w", "QO", ("Q", 0), op[1] >> 3))]
    return o

QK0 = {X: 0, 0: 26, 1: 51, 2: 85, 3: 119}
PV0 = {X: 42, 0: 67, 1: 101, 2: 135, 3: 161}
CH0 = {X: 0, 0: 2, 1: 6, 2: 10, 3: 14}
EXP0 = {0: 34, 1: 66, 2: 97, 3: 128}
UO = (X, 0, 1, 2, 3)
def sbuf(q, c): return SB + 4 * ((CH0[q] + c) % 6)
def pbuf(S, q, r): return PB + 8 * ((5 * S + UO.index(q)) & 1) + 4 * r

def loops(cfg, h):
    b0 = 1 + (cfg.peel if h == 0 else 0)
    if h == 0 and cfg.lev[2] != cfg.lev[3] and b0 < cfg.split < 7: return [(b0, cfg.split), (cfg.split, 7)]
    return [(b0, 7)]

def main_stream(cfg, e):
    st = Stream()
    def qk(S, q):
        if S % 16 == 0 and not (S == 0 and q == X):
            if S == 0 and q == 2: st.add(None, key="g1a"); st.add(None, key="g1b")
            for s in range(4): st.add(negm_mfma(q, s), key=("n", S, q, s))
        for c in range(2 if q == X else 4):
            for s in range(4):
                st.add(mfma("v", sbuf(q, c), "a", aK + 16 * c + 4 * s, "a", aQ + 16 * q + 4 * s, NEGM + 4 * q if s == 0 else sbuf(q, c)), key=153 * S + QK0[q] + 4 * c + s)
    def pv(S, q):
        k = 153 * S + PV0[q]; z = S % 16 == 0
        for dt in range(9):
            for r in range(1 if q == X else 2):
                dc, d, a = ("v", OB + 32 * q + 4 * dt, aV + 32 * r + 4 * dt) if dt < 8 else ("a", aL + 4 * q, aONE)
                st.add(mfma(dc, d, "a", a, "v", pbuf(S, q, r), None if (z and r == 0) else d), key=k); k += 1
    for S in range(33):
        if S < 32: qk(S, X)
        else:
            for k in range(8): st.add(None, key=153 * S + k)
        if S: pv(S - 1, 3)
        if S == 32: break
        qk(S, 0)
        if S == 0: st.add(None, key="v0a"); st.add(None, key="v0b")
        pv(S, X)
        for q in (1, 2, 3): qk(S, q); pv(S, q - 1)
    P = st.pos
    G = lambda S, r: P[153 * S + r]
    last = len(st.m) - 1
    clusters = []
    def level(a, z):
        b = a // 306
        if a < 85 or (z + 1) // 306 != b or a >= 153 * 31: return 0
        if cfg.levM1 and 9 <= b <= 14: return int(cfg.levM1)
        return int(cfg.lev[1 if b == 0 else 2 if b < cfg.split else 3 if b < 7 else 4 if a < 153 * 15 else 5 if b > 8 else 0].replace("L", "0"))
    for S in range(32):
        for q in UO:
            if q == X: eg, cg = ([9 + 3 * i for i in range(8)], [13, 19, 25, 31]) if S else (list(range(26, 34)), [35, 35, 39, 39])
            else:
                eg = [EXP0[q] + 2 * i for i in range(16)]; cg = [EXP0[q] + 4 * i + 3 for i in range(8)]
                if q in (1, 2): cg[7] += 1
            ex = []; cv = []
            for i, g in enumerate(eg):
                r = sbuf(q, i >> 2) + (i & 3)
                ex.append(valu(f"v_exp_f32 v{r}, v{r}", R("v", r), R("v", r), "trans")); st.put(G(S, g), ex[-1])
            for i, g in enumerate(cg):
                r = sbuf(q, i >> 1) + 2 * (i & 1); d = pbuf(S, q, i >> 2) + (i & 3)
                cv.append(valu(f"v_cvt_pk_bf16_f32 v{d}, v{r}, v{r+1}", R("v", r, 2), R("v", d))); st.put(G(S, g), cv[-1])
            for c in range(len(eg) // 4):
                lv = level(153 * S + eg[4 * c], 153 * S + cg[2 * c + 1])
                if ((CH0[q] + c + 1) * lv) // 9 != ((CH0[q] + c) * lv) // 9:
                    clusters.append(([(x, G(S, g)) for x, g in zip(ex[4 * c: 4 * c + 4] + cv[2 * c: 2 * c + 2], eg[4 * c: 4 * c + 4] + cg[2 * c: 2 * c + 2])],
                                     G(S, eg[4 * c + 1]), G(S, eg[4 * c + 3])))
    for k in (2, 6): st.put(G(32, k), nop(0))
    st.put(G(32, 7), nop(1))
    bounds = {(h, b): (G(16 * h + 2 * b, 0) if (h, b) != (1, 0) else P[("n", 16, X, 0)]) for h in range(2) for b in range(8)}
    bounds[(0, 8)] = bounds[(1, 0)]; bounds[(1, 8)] = last + 1
    hasexp = lambda g: any(x.kind == "trans" for x in g)
    hascvt = lambda g: any(x.kind == "valu" for x in g)
    noscc = set()
    for h in range(2):
        b0 = 1 + (cfg.peel if h == 0 else 0)
        for b1, b2 in loops(cfg, h):
            for b in range(b1, b2):
                z = bounds[(h, b + 1)]
                st.put(z - 1, I(f"s_cbranch_scc1 L_m{h}{b1}{e}", "salu")); st.put(z - 3, salu(f"s_cmp_lg_u32 s{sCNT}, {7 - b2}")); st.put(z - 5, salu(f"s_sub_u32 s{sCNT}, s{sCNT}, 1"))
                noscc |= {z - 3, z - 2, z - 1}
        st.put(bounds[(h, b0)] - 5, salu(f"s_mov_b32 s{sCNT}, {7 - b0}"))
        if cfg.lev2:
            st.put(bounds[(h, b0)] - 3, salu(f"s_bitcmp{cfg.xpar}_b32 s{sXCC}, 0")); st.put(bounds[(h, b0)] - 1, salu(f"s_cbranch_scc1 L_n{h}{b0}{e}"))
            noscc |= {bounds[(h, b0)] - k for k in (1, 2, 3)}
        else:
            for k in (3, 1): st.put(bounds[(h, b0)] - k, I("", "hold"))
    def safe_salu(ins, lo, hi):
        for pref in (hasexp, lambda g: True):
            for i in range(lo, hi + 1):
                if i not in noscc and pref(st.g[i]) and st.fits(i, ins): return st.put(i, ins)
        raise RuntimeError("salu " + ins.text)
    BV = {}; BK = {}; BX = {}; BF = {}; bars = []
    def barrier(g, vm, lg, fix=False):
        i = st.place(wait(vm=vm, lg=lg), g, g + 3, hasexp)
        i = st.place(bar(), i + 1, i + 4, hasexp) if not fix else st.put(i + 2, bar())
        bars.append(i); return i
    for k in range(14, 18):
        for x in start_step(cfg, k, None): st.put(P["v0a"], x); x.inorder = True
    for x in (wait(lg=[("Kr", 0), ("K0r", 0)]), bar()): st.put(P["v0a"], x); x.inorder = True
    BV[0] = P["v0a"]; bars.append(BV[0])
    for S in range(32):
        h = S >> 4
        any_ = {1: [("Qr", 0)], 14: [("Qw", 1)], 17: [("Xr", 0)]}.get(S, [])
        if S: BV[S] = barrier(G(S, cfg.BV), [("V", S)], [("Kr", S), ("K0r", h)], cfg.BV == 5)
        if S % 16 == 15: BX[h] = BF[S] = barrier(G(S, cfg.BF or 72), None, [("Xw", h), ("Qr", h + 1, X)] + ([("Vr", S)] if cfg.BF else []))
        elif cfg.BF and cfg.sw <= S < 30: BF[S] = barrier(G(S, cfg.BF if S else 86), None, [("Vr", S)])
        if S < 31: BK[S + 1] = barrier(G(S, cfg.BK), [("K", S + 1)], [("Vr", S)] + any_)
    for S in range(1, 32):
        if not st.g[G(S, 7)]: st.put(G(S, 7), wait(lg=[("Kr", S)]))
    if cfg.trace:
        for i in sorted(set(bars) - set(BF.values())):
            for t in ("s_mov_b32 m0, s98", f"v_writelane_b32 v{vTR0}, s94, m0", f"v_writelane_b32 v{vTR1}, s96, m0", "s_add_u32 s98, s98, 1", "s_memrealtime s[94:95]", "s_memtime s[96:97]"):
                st.g[i].append(valu(t, set(), set()))
    for k in range(16): st.put(P["v0a"], vread(e, 0, 0, k >> 1, k & 1))
    st.put(P["v0b"], wait(lg=[("Vr", 0, 0, 0)]))
    st.put(G(0, 45), wait(lg=[("Vr", 0, 0, 1)]))
    st.late(wait(lg=[("Qr", 0, 0)]), G(0, 4), G(0, 7)); st.late(wait(lg=[("Kr", 0, 1)]), G(0, 30), G(0, 33))
    lo, hi = G(0, 43), G(0, 84)
    for k in range(8):
        g = lo + (hi - lo) * (k + 1) // 8 if k < 7 else P["g1a"]
        while st.g[g]: g += 1
        for x in start_step(cfg, 18 + k, OB + 64): st.put(g, x); x.inorder = True
    for x in qreads(0, 2) + qreads(0, 3): st.put(P["g1a"], x); x.inorder = True
    for op in start_ops()[26 + cfg.W:]:
        for x in issue_op(cfg, op): st.put(P["g1a"], x); x.inorder = True
    st.put(P["g1b"], wait(lg=[("Qr", 0, 2)]))
    st.late(wait(lg=[("Qr", 0, 3)]), G(0, 110), G(0, 118))
    for S in range(31):
        w0, w1 = (cfg.kd0, cfg.kd1), (cfg.vd0, cfg.vd1)
        if S == 0: plan = [("K", 2, cfg.k20, cfg.k20 + 16)] + ([("V", 2, 106, 122)] if cfg.sw == 0 else [])
        elif S < cfg.sw: plan = [("V", S + 1) + w0, ("K", S + 2) + w1]
        elif S == cfg.sw: plan = [("V", S + 1, 46, 66), ("K", S + 2, 66, 90), ("V", S + 2, 90, 114)]
        else: plan = [("K", S + 2, cfg.dk0, cfg.dk1), ("V", S + 2, cfg.dv0, cfg.dv1)]
        cur = 0
        for kv, S2, a, b in plan:
            if S2 > 31: continue
            cur = max(cur, BV[S] + 1) if (kv == "K" or S2 == S + 1) else max(cur, (BF[S] if cfg.BF else BK[S + 1]) + 1)
            for j in range(4):
                g = max(cur, G(S, a + (b - a) * j // 4 + (cfg.eshift * e if S and len(plan) < 3 else 0)))
                if kv == "K" and j == 0: g = safe_salu(kv_step(cfg, S2), max(cur, g - 4), g + 8)
                if cfg.nodma: continue
                m0, ld = dma(cfg, kv, S2, j)
                i = safe_salu(m0, g, g + 12)
                cur = st.place(ld, i + 1, i + 10) + 1
    anchors = {}
    def qload(j, buf, o): return I(f"buffer_load_dwordx4 {rs('v',buf,4)}, v{vLin}, s[{sQB_}:{sQB_+3}], s{sQOFF} offen{off(o)} {cfg.nt}", "vld",
                                   rd=R("v", vLin), wr=R("v", buf, 4), tag=("Ql", 1, j))
    sh = cfg.eshift * e
    st.place(qload(0, T16, 0), G(1, 68 + sh), G(1, 100))
    for b in range(1, 7):
        j = 3 * (b - 1)
        st.place(qload(j + 1, T16 + 4, 1024), G(2 * b, sh), G(2 * b, 20))
        st.place(qload(j + 2, T16 + 8, 2048), G(2 * b, 68 + sh), G(2 * b, 100))
        lo = st.place(qload(j + 3, T16, 3072), G(2 * b + 1, sh), G(2 * b + 1, 20))
        safe_salu(salu(f"s_add_u32 s{sQOFF}, s{sQOFF}, 3072"), lo + 1, lo + 20)
        for i, g in enumerate((106, 153 + 68, 153 + 106)):
            anchors[(b, i)] = st.place(dsw(4, vAux, T16 + 4 * i, PS * i, ("Qw", 1), ("w", "QO", ("Q", 1))), G(2 * b, g + sh), G(2 * b, g + 30))
    onum = {0: int(cfg.opat[1]), 7: int(cfg.opat[3])}; onum.update({b: int(cfg.opat[2]) for b in range(1, 7)})
    assert sum(onum.values()) == 16 and onum[0] <= 8
    osite = []; j = 0
    for b in range(8):
        n = onum[b]
        if not n: continue
        pos = {1: (cfg.opos,), 2: (cfg.opos, cfg.opos + 153)}[n] if 0 < b < 7 else [(150 + 140 * i // n) if b == 0 else (60 + 120 * i // n) for i in range(n)]
        if n == 2 and b == 0: pos = (153, cfg.opos + 153)
        for i in range(n):
            lo = G(16 + 2 * b, pos[i] + cfg.eshift * e)
            x = ostore(cfg, T16 + 4 * (i % 4), vLin, sOOFF, 1024 * (i % 4), ("Os", 0, j))
            lo = st.place(x, lo, lo + 24) if 0 < b < 7 else st.put(next((g for g in range(lo, lo + 6) if st.fits(g, x) and not 8 <= pos[i] % 153 < 48 and pos[i] % 153 < 116), lo + (not hasexp(st.g[lo]))), x)
            osite.append((b, i, n, j, lo)); j += 1
            if i == n - 1 or i % 4 == 3: safe_salu(salu(f"s_add_u32 s{sOOFF}, s{sOOFF}, {1024 * (i % 4 + 1)}"), lo + 1, lo + 10)
    def reads(lst):
        lo = 0
        for k, (r, a, z) in enumerate(lst):
            a = max(a, lo)
            def room(pred, frm):
                cur = frm
                for (_, a2, z2) in lst[k:]:
                    cur = next((i for i in range(max(cur, a2), z2 + 1) if pred(i)), None)
                    if cur is None: return False
                    cur += 1
                return True
            if room(lambda i: hascvt(st.g[i]) and st.fits(i, r), a): lo = st.place(r, a, z, hascvt) + 1
            elif room(lambda i: st.fits(i, r), a): lo = st.place(r, a, z) + 1
            elif k and a - 1 >= lst[k][1] and st.fits(a - 1, r, True): lo = st.put(a - 1, r) + 1
            else:
                i = next((i for i in range(a, z + 1) if st.fits(i, r, True)), None)
                lo = st.put(min(a, z) if i is None else i, r) + 1
    reads([(vread(e, 0, 1, k >> 1, k & 1), G(0, 42), G(0, 58 + (k >> 3) * 8)) for k in range(16)])
    for S in range(32):
        if S:
            reads([(vread(e, S, 0, k >> 1, k & 1), max(BV[S] + 1, G(S, 8 + (k & 14))), G(S, 33 + (k >> 3) * 4)) for k in range(16)] +
                  [(vread(e, S, 1, k >> 1, k & 1), G(S, 9 + (k & 14)), G(S, 58 + (k >> 3) * 8)) for k in range(16)])
            st.late(wait(lg=[("Vr", S, 0, 0)]), G(S, 38), G(S, 41)); st.late(wait(lg=[("Vr", S, 0, 1)]), G(S, 42), G(S, 45))
        st.late(wait(lg=[("Vr", S, 1, 0)]), G(S, 63), G(S, 67)); st.late(wait(lg=[("Vr", S, 1, 1)]), G(S, 71), G(S, 75))
        if S < 31:
            reads([(kread(e, S + 1, j >> 3, (j >> 2) & 1, j & 3), max(BK[S + 1] + 1, G(S, 119 + j)), G(S, 143 if j < 8 else 149)) for j in range(16)])
            st.late(wait(lg=[("Kr", S + 1, 0)]), G(S, 146), G(S, 151))
    for b in range(1, 7):
        for i in range(3):
            buf = T16 + 4 * i
            lo = (G(2 * b, 26), G(2 * b + 1, 6), G(2 * b + 1, 62))[i]
            if cfg.qpk:
                c = scale_piece(buf, T16 + 12)
                for x in c[8:12]: x.kind = "pk"
            else: c = [x for r in range(4) for x in scale_reg(buf + r, TSC + 2 * (r & 1), False)]
            st.spread([wait(vm=[("Ql", 1, 3 * (b - 1) + i)])] + c, lo, anchors[(b, i)] - 1 if i != 1 else G(2 * b + 1, 61), True)
        st.spread([valu(f"v_add_u32 v{vAux}, {3*PS}, v{vAux}", R("v", vAux), R("v", vAux))], anchors[(b, 2)] + 1, bounds[(0, b + 1)] - 2, True)
    st.spread([unpark(vAux, aOr)], G(14, 60), G(14, 110), True)
    lo = G(16, 124); ord_ = {}
    for b, i, n, j, a in osite:
        x = ord_[j] = dsr128("v", T16 + 4 * (i % 4), vAux, PS * i, ("Or", 0, j), ("r", "QO", ("O", 0), j >> 3))
        lo = st.spread([x], max(a - 30, lo + 1), a - 10, True)
        if i == n - 1 and b < 7: lo = st.spread([valu(f"v_add_u32 v{vAux}, {n*PS}, v{vAux}", R("v", vAux), R("v", vAux))], lo + 1, bounds[(1, b + 1)] - 2, True)
        st.late(wait(lg=[("Or", 0, j)]), a - 6, a - 1)
    one = lambda x: x[0] if isinstance(x, tuple) else x
    st.place(wait(vm=[("Ql", 1, 18)]), G(15, 80), G(15, 110), hasexp)
    qrd = {}
    for q in UO:
        use = P[("n", 16, q, 0)]
        lo = G(15, QK0[q] + (7 if q == X else 15))
        qrd[q] = qreads(1, q)
        st.spread(qrd[q], lo, lo + 30, True)
        st.spread([negm_init(1, q, r) for r in range(4)], lo + 2, min(lo + 60, use - 3), True)
        st.late(wait(lg=[("Qr", 1, q)]), use - 4, use - 1)
    k0 = k0reads(1)
    st.spread(k0[:2], G(15, 100), BK[16], True)
    k0[2].after.append(k0[1])
    st.spread(k0[2:] + [(wait(lg=[("K0r", 1)]), 8)] + [k0neg(i) for i in range(16)], BK[16] + 1, P[("n", 16, X, 0)] - 3)
    def seq(chains, cuts, asap=False):
        for k, c in enumerate(chains):
            if k: one(c[0]).after.append(one(chains[k - 1][-1]))
            st.spread(c, cuts[k] + (k > 0), cuts[k + 1], asap)
    done = lambda S, q: G(S, PV0[q] + (8 if q == X else 17)) + 5
    xs = {}
    for h in range(2):
        S = 16 * h + 15
        xs[h] = (x_send(e, h), x_recv(e, h), x_stage(e, h, cfg.pk))
        if h == 0: xs[h][0][0].after.append(qrd[X][-1])
        st.spread(xs[h][0], done(S, X), BX[h] - 5)
        xs[h][1][0].after.append(xs[h][0][-1]); xs[h][2][0].after.append(xs[h][1][-1])
        st.spread(xs[h][1], BX[h] + 1, BX[h] + 8)
    def stg(h, q):
        c = q_head(q) + q_stage(h, q, cfg.pk)
        if h == 0: next(x for x in c if x.kind == "dsw").after.append(qrd[q][-1])
        return c
    use = lambda q: G(16, PV0[q]) - 1
    cuts = [BX[0] + 16, G(15, 112), G(16, 8), G(16, 66), G(16, 116), use(3)]
    for k, q in enumerate(UO): assert cuts[k] >= done(15, q) and cuts[k + 1] <= use(q), (q, cuts)
    seq([xs[0][2], stg(0, 0), stg(0, 1), stg(0, 2), stg(0, 3)], cuts)
    xo = x_out(cfg, e, 0); xo[0].after.append(xs[0][2][-1])
    st.spread(xo, G(15, 140), G(16, 38))
    cuts = [BX[1] + 14, G(31, 100), done(31, 1) + 2, done(31, 2) + 3, last - 1]
    c = [xs[1][2], stg(1, 0), stg(1, 1), stg(1, 2)]
    w = [(cuts[0], cuts[1]), (cuts[1] + 1, cuts[2]), (cuts[2] + 1, G(31, 148)), (cuts[3], last - 1)]
    for k in range(4):
        if k: one(c[k][0]).after.append(one(c[k - 1][-1]))
        st.spread(c[k], *w[k])
    xo = x_out(cfg, e, 1); xo[0].after.append(xs[1][2][-1])
    seq([xo, q_out(cfg, 0, 6), q_out(cfg, 1, 6)], [cuts[1] + 1, cuts[2], G(31, 148), last - 6])
    for x in q_out(cfg, 2)[:5]: st.put(last, x)
    link = lambda i: st.m[i] is not None and st.m[i + 1] is not None and st.m[i].wr == st.m[i + 1].srcc
    for lst, a, z in clusters:
        g = next((i for i in range(z, a - 1, -1) if not link(i)), z)
        for x, i in lst: st.g[i].remove(x); st.g[g].append(x)
    for x in range(153 * 32):
        if x % 17 == 9 and x in P:
            n = (cfg.slowB if cfg.slowB >= 0 and x >= 153 * 16 else cfg.slowall) + (round(cfg.slowe * (1 - cfg.slowdec * (x - 85) / cfg.slowm)) if 85 <= x < 85 + cfg.slowm else 0)
            if cfg.prof and 85 <= x < 153 * (len(cfg.prof) - 1): n += int(cfg.prof[1 + x // 153], 16)
            n += 2 if n else 0
            g = P[x]
            link = lambda i: st.m[i] is not None and st.m[i + 1] is not None and st.m[i].wr == st.m[i + 1].srcc
            if cfg.slowpos: g = next((i for i in range(g - 5, g + 5) if link(i) == (cfg.slowpos == "i") and len(st.g[i]) >= 1 and st.g[i][-1].kind in ("trans", "valu")), g)
            while n > 0: st.g[g].append(valu(f"s_nop {min(n, 16) - 1}", set(), set())); n -= 16
    if cfg.probe >= 0 and cfg.probe < 16:
        h, b = divmod(cfg.probe, 8)
        lp = [l for l in loops(cfg, h) if l[0] <= b < l[1]]
        if not lp: st.g[bounds[(h, b)] + 4].append(valu("s_memrealtime s[90:91]", set(), set()))
        else:
            for b2 in range(*lp[0]):
                for t in (f"s_cmp_lg_u32 s{sCNT}, {7 - b}", f"s_cbranch_scc1 L_pr{e}", "s_memrealtime s[90:91]", f"L_pr{e}:"): st.g[bounds[(h, b2)] + 4].append(valu(t, set(), set()))
    if cfg.fneg:
        for i, m in enumerate(st.m):
            if m is not None and m.srcc and m.srcc != m.wr: m.text = m.text.rsplit(",", 1)[0] + ", 0"
    if cfg.fsum:
        for i, m in enumerate(st.m):
            if m is not None and m.text.startswith("v_mfma_f32_16x16x32_bf16 a["):
                pb = min(r[1] for r in m.rd if r[0] == "v")
                st.m[i] = None
                if cfg.fsum == "dot": st.g[i] += [valu(f"v_dot2c_f32_bf16 v{vLp}, v{pb+k}, v{vLx}", set(), set()) for k in range(4)]
        if cfg.fsum in ("pka", "add"):
            for i in range(len(st.g)):
                for x in list(st.g[i]):
                    if x.text.startswith("v_cvt_pk") and PB <= min(r[1] for r in x.wr) < PB + 16:
                        r = min(r[1] for r in x.rd)
                        if cfg.fsum == "add":
                            for k in range(2):
                                y = valu(f"v_add_f32 v{vLp}, v{r+k}, v{vLp}", set(), set())
                                j = next((j for j in range(i, i + 3) if j < len(st.g) and st.fits(j, y) and all(j + 1 != z and not (i < z <= j) for z in bounds.values())), i)
                                st.g[j].append(y)
                        elif r % 4 == 2: st.g[i] += [valu(f"v_pk_add_f32 v[{TSC}:{TSC+1}], v[{r-2+k}:{r-1+k}], v[{TSC}:{TSC+1}]", set(), set()) for k in (0, 2)]
    for g in st.g: g[:] = [x for x in g if x.kind not in ("hold", "holdm")]
    return st, bounds

def tail(cfg):
    one = lambda x: x[0] if isinstance(x, tuple) else x
    o = [unpark(TSC + 2, aFl), nop(2)] + q_head(3)
    o.append(valu(f"v_cmp_nge_f32 vcc, s{sTHR}, v{vG}", R("v", vG), set()))
    o2 = [one(x) for x in q_out(cfg, 2)[5:]]
    for dt in range(8):
        b = OB + 96 + 4 * dt
        o += muls(b, 4, True) + cvts(b) + [dsw(2, vOw, b, qoff(3) + 32 * dt, ("Ow", 1), ("w", "QO", ("O", 1), 3))]
        if dt == 0:
            o += [salu(f"s_or_b32 s{sT}, vcc_lo, vcc_hi"), valu(f"v_mov_b32 v{vT0}, s{sT}", set(), R("v", vT0)), dsw(1, TSC + 2, vT0, 0, ("Fw",), ("w", "F", ("F",)))]
        if dt % 2: o += o2[dt - 1: dt + 1]
    o += [one(x) for x in q_out(cfg, 3)]
    o.append(valu(f"v_mov_b32 v{vT0}, {FB}", set(), R("v", vT0)))
    o += [wait(lg=[("Fw",)]), bar(), dsr128("v", PB, vT0, 0, ("Fr",), ("r", "F", ("F",))), wait(lg=[("Fr",)])]
    o.append(valu(f"v_or3_b32 v{PB}, v{PB}, v{PB+1}, v{PB+2}", R("v", PB, 3), R("v", PB)))
    o.append(valu(f"v_or_b32 v{PB}, v{PB}, v{PB+3}", R("v", PB, 4), R("v", PB)))
    o += [nop(0), valu(f"v_readfirstlane_b32 s{sT}, v{PB}", R("v", PB), set())]
    return chain(o)

def setup(cfg):
    L = []
    A = L.append
    A("s_cmp_ge_u32 s2, 256"); A("s_cbranch_scc1 L_end")
    A("s_load_dwordx4 s[4:7], s[0:1], 0"); A("s_load_dwordx4 s[8:11], s[0:1], 16")
    if cfg.stamps:
        A(f"s_load_dwordx2 s[58:59], s[0:1], {32 if cfg.dbg else 40}")
        A(f"s_memrealtime s[{sST}:{sST+1}]"); A(f"s_memtime s[{sST+4}:{sST+5}]")
    A("v_lshrrev_b32 v16, 6, v0"); A("v_and_b32 v17, 63, v0")
    A(f"v_readfirstlane_b32 s{sW}, v16")
    A(f"v_lshlrev_b32 v{vLin}, 4, v17")
    if cfg.adj: A(f"s_lshl_b32 s{sT}, s2, 1")
    else: A(f"s_mov_b32 s{sT}, s2")
    A(f"s_mul_i32 s{sOA}, s{sT}, 73728"); A(f"s_lshl_b32 s{sKVA}, s{sT}, 18")
    A(f"s_mul_i32 s{sM0}, s{sW}, {4*PS}"); A(f"s_mov_b32 s{sMODE}, -1")
    if cfg.lev2 or cfg.stamps: A(f"s_getreg_b32 s{sXCC}, hwreg(HW_REG_XCC_ID)")
    for d, n in ((sKS, 134217728), (sVS, 134217728), (sOS, 37748736), (sQA, 73728), (sQB_, 18432)):
        A(f"s_mov_b32 s{d+2}, {n}"); A(f"s_mov_b32 s{d+3}, 0x20000")
    for i in range(10): A(f"v_accvgpr_write_b32 a{aSV+i}, 0")
    if cfg.trace: A("s_mov_b32 s98, 0"); A("s_memrealtime s[94:95]"); A("s_memtime s[96:97]")
    A(f"s_mul_i32 s{sT}, s{sW}, 18432"); A(f"s_add_u32 s{sT}, s{sT}, {73728 * (1 if cfg.adj else 256)}")
    A("s_waitcnt lgkmcnt(0)")
    for d, p in ((sKS, 6), (sVS, 8), (sOS, 10)): A(f"s_mov_b64 s[{d}:{d+1}], s[{p}:{p+1}]")
    A(f"s_add_u32 s{sQA}, s4, s{sOA}"); A(f"s_addc_u32 s{sQA+1}, s5, 0")
    A(f"s_add_u32 s{sQB_}, s{sQA}, s{sT}"); A(f"s_addc_u32 s{sQB_+1}, s{sQA+1}, 0")
    return L

def lane_setup(cfg):
    L = []; A = L.append
    eb, xb = cfg.ebit, 1 - cfg.ebit
    park = lambda a, v=21: A(f"v_accvgpr_write_b32 a{a}, v{v}")
    A("v_lshrrev_b32 v16, 6, v0"); A("v_and_b32 v17, 63, v0")
    A("v_lshrrev_b32 v18, 4, v17")
    A("v_and_b32 v19, 7, v17")
    A("v_bfe_u32 v20, v17, 3, 1")
    A(f"v_bfe_u32 v24, v16, {eb}, 1"); A(f"v_bfe_u32 v25, v16, {xb}, 1")
    A(f"v_mul_u32_u24 v21, {PS}, v19"); A("v_lshl_add_u32 v26, v20, 8, v21")
    A(f"v_lshlrev_b32 v21, 4, v18"); park(aK0); A(f"v_add_u32 v{vK}, v26, v21")
    A("v_bfe_u32 v21, v17, 2, 3"); A(f"v_mul_u32_u24 v21, {PS}, v21"); A("v_lshrrev_b32 v22, 5, v17"); A("v_lshl_add_u32 v21, v22, 8, v21")
    A("v_and_b32 v23, 3, v17"); A("v_lshl_add_u32 v21, v23, 3, v21"); A(f"v_add_u32 v{vV}, {VB}, v21")
    A(f"v_mul_u32_u24 v27, {2*TS}, v16"); A(f"v_add_u32 v27, {QB}, v27"); A(f"v_add_u32 v{vQ}, v27, v{vK}")
    A(f"v_add_u32 v{vT0}, v27, v{vLin}")
    A(f"v_mul_u32_u24 v21, {2*PS}, v16"); A(f"v_add_u32 v21, {QB + 8*TS}, v21"); A(f"v_add_u32 v{vLx}, v21, v{vLin}")
    A(f"v_mul_u32_u24 v21, {18*PS}, v16"); A(f"v_add_u32 v21, {QB}, v21"); A(f"v_add_u32 v{vAux}, v21, v{vLin}")
    A(f"v_lshl_add_u32 v21, v25, 9, v{vK}"); A(f"v_add_u32 v21, {QB + 8*TS}, v21"); park(aQx)
    A("v_xor_b32 v21, v22, v20"); A("v_lshl_add_u32 v21, v21, 4, v26"); A("v_and_b32 v23, 1, v18"); A("v_lshl_add_u32 v21, v23, 3, v21")
    A(f"v_add_u32 v{vOw}, v27, v21")
    A("v_lshl_add_u32 v21, v25, 9, v21"); A("v_lshl_add_u32 v21, v24, 7, v21"); A(f"v_add_u32 v21, {QB + 8*TS}, v21"); park(aOxw)
    A(f"v_and_b32 v21, 31, v17"); A("v_lshlrev_b32 v21, 4, v21"); A(f"v_lshl_add_u32 v{vOg}, v22, 12, v21")
    A("v_lshlrev_b32 v23, 4, v23"); A(f"v_xor_b32 v28, v23, v{vT0}"); park(aOr, 28)
    A("v_xor_b32 v21, v23, v21"); A(f"v_mul_u32_u24 v23, {4*PS}, v22"); A(f"v_add3_u32 v{vOr2}, v21, v23, v27")
    A(f"v_xor_b32 v21, v19, v20"); A("v_lshlrev_b32 v21, 4, v21"); A("v_lshl_add_u32 v21, v20, 8, v21"); A(f"v_mul_u32_u24 v23, {PS}, v18"); A("v_add_u32 v21, v21, v23")
    A("v_lshl_add_u32 v21, v25, 9, v21"); A("v_lshl_add_u32 v21, v24, 7, v21"); A(f"v_add_u32 v21, {QB + 8*TS}, v21"); park(aOxr)
    A("v_lshlrev_b32 v21, 4, v19"); A("v_lshl_add_u32 v21, v20, 8, v21"); A("v_lshl_add_u32 v21, v18, 10, v21")
    A("v_lshl_add_u32 v21, v25, 9, v21"); A(f"v_lshl_add_u32 v21, v24, 7, v21"); park(aOxg)
    A(f"v_lshl_add_u32 v22, v16, 12, v{vLin}"); A(f"v_add_u32 v21, {XB}, v22"); park(aXw)
    A(f"v_xor_b32 v22, {0x1000 << eb}, v22"); A(f"v_add_u32 v21, {XB}, v22"); park(aXr)
    A(f"v_lshlrev_b32 v21, 2, v0"); A(f"v_add_u32 v21, {XLB}, v21"); park(aXl); A(f"v_xor_b32 v21, {256 << eb}, v21"); park(aXlr)
    A(f"v_lshlrev_b32 v21, 2, v16"); A(f"v_add_u32 v21, {FB}, v21"); park(aFl)
    A(f"v_mov_b32 v21, 0x80008000"); park(aSGN)
    A(f"v_mov_b32 v21, 0x3f803f80")
    if cfg.ones4: A("v_and_b32 v22, 3, v17"); A("v_cmp_eq_u32 vcc, 0, v22"); A("s_nop 1"); A("v_cndmask_b32 v21, 0, v21, vcc")
    for i in range(4): park(aONE + i)
    A(f"v_mov_b32 v{vG}, 0")
    A(f"s_mov_b32 s{sC}, {C_SCALE:#x}"); A(f"s_mov_b32 s{sC+1}, {C_SCALE:#x}"); A(f"s_mov_b32 s{sTHR}, {THR:#x}"); A(f"s_mov_b32 s{sHI}, 0xffff0000")
    hb = 73728 * (1 if cfg.adj else 256)
    A(f"s_lshl_b32 s{sT}, s{sW}, 14"); A(f"s_add_u32 s{sOOFF}, s{sT}, s{sOA}"); A(f"s_add_u32 s{sO1}, s{sOOFF}, {hb}")
    A(f"s_add_u32 s{sO1X}, s{sOA}, 65536"); A(f"s_mov_b32 s{sQOFF}, 0")
    return [salu(x) for x in L]

def prologue(cfg):
    o = stamp(cfg, 4, True)
    o += [salu(f"s_lshl_b32 s{sKV}, s{sW}, 12"), salu(f"s_add_u32 s{sKV}, s{sKV}, s{sKVA}"), salu(f"s_lshl_b32 s{sQG}, s{sW}, 14"),
          salu(f"s_lshl_b32 s{sQX}, s{sW}, 11"), salu(f"s_add_u32 s{sQX}, s{sQX}, 65536")]
    for op in start_ops()[:cfg.W]: o += issue_op(cfg, op)
    if cfg.cpf:
        for t in ("s_getpc_b64 s[48:49]", "L_pc:", "s_lshr_b32 s50, s2, 3", "s_and_b32 s50, s50, 3", "s_lshl_b32 s50, s50, 15",
                  "v_lshl_add_u32 v28, v0, 7, s50", "v_min_u32 v28, L_end-L_pc, v28", "v_mov_b32 v29, s49", "v_add_co_u32 v28, vcc, s48, v28", "s_nop 1",
                  "v_addc_co_u32 v29, vcc, 0, v29, vcc"): o.append(salu(t))
        o.append(I(f"global_load_dword v{vLp}, v[28:29], off", "vld", tag=("code",)))
    o += lane_setup(cfg)
    for q in range(5):
        for r in range(4): o.append(negm_init(0, q, r))
    for i in range(7):
        o += start_step(cfg, i, SB)
        if i in (0, 6): o += stamp(cfg, {0: 5, 6: 6}[i], True)
    o.append(wait(lg=[("Qw", 0, X)])); o.append(bar())
    o += k0reads(0) + qreads(0, X)
    return o

def prologue2(cfg, e):
    o = [kread(e, 0, 0, j >> 2, j & 3) for j in range(8)]
    o += start_step(cfg, 7, SB)
    o += [wait(lg=[("K0r", 0)])] + [k0neg(i) for i in range(16)]
    o += [kread(e, 0, 1, j >> 2, j & 3) for j in range(8)]
    for i in range(8, 14): o += start_step(cfg, i, SB)
    o += stamp(cfg, 7, True)
    o += qreads(0, 0) + qreads(0, 1)
    o.append(wait(lg=[("Qr", 0, X), ("Kr", 0, 0)]))
    o += [negm_mfma(X, s) for s in range(4)]
    o += stamp(cfg, 8, True)
    return o

def fallback(cfg):
    L = []; A = L.append
    xb = 1 - cfg.ebit
    A("s_waitcnt vmcnt(0) lgkmcnt(0)"); A("s_barrier")
    A(f"s_mov_b32 s{sMODE}, 0")
    A("v_and_b32 v16, 63, v0"); A("v_lshrrev_b32 v17, 4, v16")
    A("v_and_b32 v18, 7, v16"); A("v_bfe_u32 v19, v16, 3, 1"); A("v_lshl_add_u32 v18, v18, 2, v19")
    A("v_lshlrev_b32 v18, 8, v18"); A("v_lshl_add_u32 v18, v17, 4, v18")
    A("v_and_b32 v19, 15, v16"); A("v_lshlrev_b32 v19, 8, v19"); A("v_lshl_add_u32 v19, v17, 4, v19")
    A(f"s_mov_b32 s{sT+4}, s4"); A(f"s_mov_b32 s{sT+5}, s5"); A(f"s_mov_b32 s{sT+6}, 37748736"); A(f"s_mov_b32 s{sT+7}, 0x20000")
    for h in range(2):
        hq = 73728 * (1 if cfg.adj else 256) * h; hk = 262144 * (1 if cfg.adj else 256) * h
        for q in range(5):
            if q < 4:
                A(f"s_lshl_b32 s{sT}, s{sW}, 14"); A(f"s_add_u32 s{sT}, s{sT}, {hq + (q >> 1) * 8192 + (q & 1) * 512}")
            else:
                A(f"s_bfe_u32 s{sT}, s{sW}, {0x10000 + xb:#x}"); A(f"s_lshl_b32 s{sT}, s{sT}, 9"); A(f"s_add_u32 s{sT}, s{sT}, {hq + 65536}")
            A(f"s_add_u32 s{sT}, s{sT}, s{sOA}")
            for s in range(4): A(f"buffer_load_dwordx4 {rs('v', OB+16*q+4*s, 4)}, v18, s[{sT+4}:{sT+7}], s{sT} offen{off(64*s)}")
        A("s_waitcnt vmcnt(0)")
        for r in range(80):
            for ins in scale_reg(OB + r, TSC + 2 * (r & 1), True): A(ins.text)
        for i in range(5): A(f"v_mov_b32 v{NEGM+i}, 0xff800000")
        A(f"s_add_u32 s{sT}, s{sKVA}, {hk}"); A(f"s_mov_b32 s{sT+1}, 64")
        A(f"L_fb{h}:")
        for s in range(4): A(f"buffer_load_dwordx4 {rs('v', SB+4*s, 4)}, v19, s[{sKS}:{sKS+3}], s{sT} offen{off(64*s)}")
        A("s_waitcnt vmcnt(0)")
        for q in range(5):
            for s in range(4): A(mfma("v", 192 + 4 * q, "v", SB + 4 * s, "v", OB + 16 * q + 4 * s, None if s == 0 else 192 + 4 * q).text)
        A("s_nop 7"); A("s_nop 1")
        for q in range(5):
            A(f"v_max3_f32 v{NEGM+q}, v{NEGM+q}, v{192+4*q}, v{193+4*q}"); A(f"v_max3_f32 v{NEGM+q}, v{NEGM+q}, v{194+4*q}, v{195+4*q}")
        A(f"s_add_u32 s{sT}, s{sT}, 4096"); A(f"s_sub_u32 s{sT+1}, s{sT+1}, 1"); A(f"s_cmp_lg_u32 s{sT+1}, 0"); A(f"s_cbranch_scc1 L_fb{h}")
        for x in (16, 32):
            A(f"v_xor_b32 v20, {x}, v16"); A("v_lshlrev_b32 v20, 2, v20")
            for q in range(5): A(f"ds_bpermute_b32 v{SB+q}, v20, v{NEGM+q}")
            A("s_waitcnt lgkmcnt(0)")
            for q in range(5): A(f"v_max_f32 v{NEGM+q}, v{NEGM+q}, v{SB+q}")
        for q in range(5): A(f"v_xor_b32 v{NEGM+q}, 0x80000000, v{NEGM+q}")
        for q in range(5): A(f"v_accvgpr_write_b32 a{aSV+5*h+q}, v{NEGM+q}")
    A("s_nop 1")
    A("s_branch L_start")
    return L

def match(tag, want): return isinstance(tag, tuple) and any(tag[:len(w)] == w for w in want)
def resolve(tr):
    vm = []; lg = []; vdone = 0; ldone = 0; pend = {}; epoch = 0; ev = []
    for k, ins in enumerate(tr): ins.idx = k
    for ins in tr:
        for a in ins.after: assert a.idx < ins.idx, f"order: {a.text} must precede {ins.text}"
        for r in ins.rd | ins.wr:
            if r in pend:
                c, idx = pend[r]
                assert idx < (vdone if c == "vm" else ldone), f"unwaited load of {r} at {ins.text} ({ins.idx})"
                del pend[r]
        if ins.kind == "wait":
            ins.nvm = ins.nlg = None
            v0, l0 = vdone, ldone
            for want, lst, mx, c in ((ins.vm, vm, 63, "vm"), (ins.lg, lg, 14, "lg")):
                if not want: continue
                idx = next((i for i in range(len(lst) - 1, -1, -1) if match(lst[i].tag, want)), -1)
                if idx < 0: continue
                n = min(len(lst) - 1 - idx, mx)
                if c == "vm": ins.nvm = n; vdone = max(vdone, len(lst) - n)
                else: ins.nlg = n; ldone = max(ldone, len(lst) - n)
            for x in vm[v0:vdone] + lg[l0:ldone]: x.edone = epoch
        elif ins.kind == "bar": epoch += 1
        elif ins.kind in ("dma", "vld", "vst"):
            vm.append(ins)
            assert len(vm) - vdone <= 62
            for r in ins.wr: pend[r] = ("vm", len(vm) - 1)
        elif ins.kind in ("dsr", "dsw"):
            lg.append(ins)
            for r in ins.wr: pend[r] = ("lg", len(lg) - 1)
        if ins.lds: ins.eissue = epoch; ev.append(ins)
    return epoch, ev
def check_lds(evs):
    INF = 10 ** 9
    def before(a, b, msg): assert max(getattr(x, "edone", INF) for x in a) < min(x.eissue for x in b), msg
    reg = {}
    for ev in evs:
        for x in ev: reg.setdefault(x.lds[1], {}).setdefault(x.lds[2], {"r": [], "w": []})[x.lds[0]].append(x)
    for r, cont in reg.items():
        if r == "QO": continue
        order = sorted(cont, key=lambda c: min(x.eissue for x in cont[c]["w"]))
        for i, c in enumerate(order):
            before(cont[c]["w"], cont[c]["r"], f"LDS RAW {r} {c}")
            if i + 1 < len(order): before(cont[c]["r"] + cont[c]["w"], cont[order[i + 1]]["w"], f"LDS WAR {r} {c}")
    c = reg["QO"]
    before(c[("Q", 1)]["w"], c[("Q", 1)]["r"], "Q RAW")
    before([x for x in c[("Q", 0)]["w"] if x.lds[3] == X], [x for x in c[("Q", 0)]["r"] if x.lds[3] == X], "Q0x RAW")
    for ev in evs:
        for q in range(4):
            assert max(x.idx for x in ev if x.lds[:3] == ("w", "QO", ("Q", 0)) and x.lds[3] == q >> 1) < min(x.idx for x in ev if x.lds == ("r", "QO", ("Q", 0), q))
    before(c[("Q", 0)]["r"], c[("Q", 1)]["w"], "Q0->Q1")
    before([x for x in c[("Q", 1)]["r"] if x.lds[3] == X], [x for x in c[("O", 0)]["w"] if x.lds[3] == X], "Q1x->O0x")
    for ev in evs:
        for q in range(5):
            g = q if q == X else q >> 1
            rd = [x.idx for x in ev if x.lds == ("r", "QO", ("O", 0), g)]
            assert max(x.idx for x in ev if x.lds == ("w", "QO", ("O", 0), q)) < min(rd) and max(rd) < min(x.idx for x in ev if x.lds == ("w", "QO", ("O", 1), q))
    for ev in evs:
        for q in range(5):
            sel = lambda m, cc: [x.idx for x in ev if x.lds[1] == "QO" and x.lds[0] == m and x.lds[2] == cc and len(x.lds) > 3 and x.lds[3] == q]
            assert max(sel("r", ("Q", 1))) < min(sel("w", ("O", 0))) and max(sel("w", ("O", 1))) < min(sel("r", ("O", 1)))
def check_hazards(tr):
    seq = [x for x in tr if x.kind != "label"]
    def ws(x): return x.tag + 1 if x.kind == "nop" else 1
    for i, c in enumerate(seq):
        d = 0
        for j in range(i - 1, max(-1, i - 12), -1):
            p = seq[j]; need = 0
            isv = c.kind in ("valu", "trans", "pk"); mem = c.kind in ("dsr", "dsw", "dma", "vld", "vst")
            if p.kind == "mfma":
                if (isv or mem) and p.wr & (c.rd | c.wr): need = 8
                if c.kind == "mfma":
                    if p.wr & (c.rd - c.srcc): need = 8
                    if p.wr & c.srcc and p.wr != c.srcc: need = 6
                if isv and p.srcc & c.wr: need = max(need, 3)
            if p.kind in ("valu", "trans", "pk") and c.kind == "mfma" and p.wr & c.rd: need = 2
            if p.kind == "trans" and c.kind in ("valu", "pk") and p.wr & c.rd: need = 1
            if p.kind == "salu" and c.kind == "dma" and ("s", "m0") in p.wr: need = 1
            if p.kind == "vst" and (p.rd & c.wr): need = 2
            if p.kind in ("valu", "trans") and "readfirstlane" in c.text and p.wr & c.rd: need = 1
            assert d >= need, f"hazard: {p.text} -> {c.text} needs {need}, has {d}"
            d += ws(p)
def check_values(tr):
    state = {}
    for x in tr:
        for r in x.rd:
            if r in state: state[r] = (state[r][0], True)
        for r in x.wr:
            if r in state and not state[r][1] and r[0] in "va" and r not in x.rd:
                p = state[r][0]
                dead_ok = (p.kind == "mfma" and r[0] == "a") or (r == ("v", vAux) and "accvgpr" in x.text) or (match(p.tag, [("Ql", 1)]) and p.tag[2] >= 18)
                assert dead_ok, f"value of {r} from '{p.text}' overwritten unread by '{x.text}'"
            state[r] = (x, False)

def build(cfg):
    out = ["; GQA softmax attention, B16 H32 Sq288 Sk1024 D128 bf16 (schedule emitted by my own generator script)",
           f"; @launch grid=(256,1,1) block=(256,1,1) lds={LDS_BYTES}",
           '.amdgcn_target "amdgcn-amd-amdhsa--gfx950"', ".text", f".globl {NAME}", ".p2align 8", f".type {NAME},@function", f"{NAME}:"]
    out += setup(cfg)
    out.append("L_start:")
    evs = []; eps = []; texts = []; common = {}; extra = []
    def variant(cfg, e):
        segs = [("pro", prologue(cfg)), ("pro2", prologue2(cfg, e))]
        st, bounds = main_stream(cfg, e)
        cuts = [bounds[(h, b)] for h in range(2) for b in range(8)] + [len(st.m)]
        for k in range(16): segs.append((divmod(k, 8), st.emit(cuts[k], cuts[k + 1])))
        segs.append(("tail", stamp(cfg, 4) + tail(cfg) + stamp(cfg, 5)))
        tr = [x for _, s in segs for x in s]
        ep, ev = resolve(tr)
        if not cfg.fsum: check_hazards(tr); check_values(tr)
        d = dict(segs)
        for h, b0, b2 in [(h,) + l for h in range(2) for l in loops(cfg, h)]:
            ref = d[(h, b0)]
            for b in range(b0 + 1, b2):
                cur = d[(h, b)]
                assert len(cur) == len(ref), (h, b, len(cur), len(ref))
                for x, y in zip(ref, cur):
                    assert x.kind == y.kind and x.text == y.text, (h, b, x.text, y.text)
                    if x.kind == "wait":
                        for a in ("nvm", "nlg"):
                            vals = [v for v in (getattr(x, a), getattr(y, a)) if v is not None]
                            setattr(x, a, min(vals) if vals else None)
        return segs, ep, ev
    for e in range(2):
        segs, ep, ev = variant(cfg, e); eps.append(ep); evs.append(ev)
        if cfg.lev2:
            assert cfg.lev[2] == cfg.lev[3] and not cfg.peel
            c2 = copy.copy(cfg); c2.lev = cfg.lev[:2] + cfg.lev2[1] * 2 + cfg.lev[4:]; c2.levM1 = cfg.lev2[2]
            d1, d2 = dict(segs), dict(variant(c2, e)[0])
            for k in d1:
                same = [x.render() for x in d1[k]] == [x.render() for x in d2[k]]
                assert same or (isinstance(k, tuple) and 1 <= k[1] <= 6), k
            for h in range(2):
                mem = lambda s: [x.render() for x in s if x.kind not in ("valu", "trans")]
                assert mem(d1[(h, 1)]) == mem(d2[(h, 1)])
                extra += [".p2align 6", f"L_n{h}1{e}:"] + [x.render().replace("L_m", "L_n") for x in d2[(h, 1)]] + [f"s_branch L_x{h}{e}"]
        t = []
        for k, s in segs:
            p = [x.render() for x in s]
            if k in ("pro", "tail"):
                assert common.setdefault(k, p) == p; continue
            if isinstance(k, tuple):
                if any(b1 < k[1] < b2 for b1, b2 in loops(cfg, k[0])): continue
                if any(b1 == k[1] for b1, b2 in loops(cfg, k[0])): t.append(f"L_m{k[0]}{k[1]}{e}:")
                if k[1] == 7: t.append(f"L_x{k[0]}{e}:")
            t += p
        texts.append(t)
    assert eps[0] == eps[1]
    if not cfg.nodma: check_lds(evs)
    out += common["pro"]
    out += [f"s_bitcmp1_b32 s{sW}, {cfg.ebit}", "s_cbranch_scc1 L_odd"]
    out += texts[0] + ["s_branch L_tail"] + extra + [".p2align 6", "L_odd:"] + texts[1] + ["L_tail:"] + common["tail"]
    if cfg.nodma: out += [f"s_mov_b32 s{sT}, 0"]
    out += ["s_nop 3", f"s_and_b32 s{sT}, s{sT}, s{sMODE}", "s_cbranch_scc1 L_fallback"]
    if cfg.probe >= 0:
        out += ["s_waitcnt vmcnt(0)"] + (["s_memrealtime s[90:91]"] if cfg.probe == 16 else []) + ["s_waitcnt lgkmcnt(0)", "s_add_u32 s90, s90, 10000",
                "L_spin:", "s_memrealtime s[92:93]", "s_waitcnt lgkmcnt(0)", "s_sub_u32 s92, s92, s90", "s_cmp_lt_i32 s92, 0", "s_cbranch_scc1 L_spin"]
    if cfg.trace:
        out += ["s_waitcnt lgkmcnt(0)", "s_mov_b32 m0, s98", f"v_writelane_b32 v{vTR0}, s94, m0", f"v_writelane_b32 v{vTR1}, s96, m0", f"v_mov_b32 v38, v{vTR0}", f"v_mov_b32 v39, v{vTR1}", f"s_cmp_lg_u32 s{sW}, 0", "s_cbranch_scc1 L_notr",
                f"s_lshl_b32 s{sT}, s2, 9", f"s_add_u32 s{sT}, s{sT}, 0x100000", f"v_lshl_add_u32 v20, v0, 3, s{sT}", "global_store_dwordx2 v20, v[38:39], s[58:59]", "L_notr:"]
    if cfg.stamps:
        n = cfg.stamps
        out += ["s_waitcnt vmcnt(0)", "s_barrier", f"s_memrealtime s[{sST+2}:{sST+3}]", f"s_memtime s[{sST+6}:{sST+7}]", "s_waitcnt lgkmcnt(0)",
                f"s_cmp_lg_u32 s{sW}, 0", "s_cbranch_scc1 L_end", f"s_mul_i32 s{sT}, s2, {n*8}", f"v_mov_b32 v20, s{sT}",
                "v_cmp_eq_u32 vcc, 0, v0", "s_and_saveexec_b64 s[50:51], vcc"]
        if cfg.dbg:
            out += ["s_cmp_ge_u32 s2, 8", "s_cbranch_scc1 L_end", f"s_lshl_b32 s{sT}, s2, 3", f"v_mov_b32 v20, s{sT}",
                    f"s_sub_u32 s{sT}, s{sST+2}, s{sST}", f"v_mov_b32 v22, s{sT}", f"s_sub_u32 s{sT}, s{sST+6}, s{sST+4}", f"v_mov_b32 v23, s{sT}",
                    "global_store_dwordx2 v20, v[22:23], s[58:59]"]
        else:
            if n == 5: out += [f"s_add_u32 s{sST+8}, s{sST+4}, s{sXCC}", f"s_addc_u32 s{sST+9}, s{sST+5}, 0"]
            if cfg.rt:
                for i in range(4, n):
                    r = sST + 2 * i
                    out += [f"s_sub_u32 s{r}, s{r}, s{sST}", f"s_subb_u32 s{r+1}, s{r+1}, s{sST+1}", f"s_add_u32 s{r}, s{r}, s{sST+4}", f"s_addc_u32 s{r+1}, s{r+1}, s{sST+5}"]
            for i in range(n):
                out += [f"v_mov_b32 v{22+2*i}, s{sST+2*i}", f"v_mov_b32 v{23+2*i}, s{sST+2*i+1}", f"global_store_dwordx2 v20, v[{22+2*i}:{23+2*i}], s[58:59] offset:{8*i}"]
    out += ["L_end:", "s_endpgm", "L_fallback:"] + fallback(cfg)
    out += ['.section .rodata,"a"', ".p2align 6", f".amdhsa_kernel {NAME}",
            "  .amdhsa_next_free_vgpr 512", "  .amdhsa_next_free_sgpr 102", "  .amdhsa_accum_offset 256",
            "  .amdhsa_group_segment_fixed_size 0", "  .amdhsa_kernarg_size 48", "  .amdhsa_user_sgpr_count 2",
            "  .amdhsa_user_sgpr_kernarg_segment_ptr 1", "  .amdhsa_system_sgpr_workgroup_id_x 1", ".end_amdhsa_kernel"]
    return "\n".join(out) + "\n"

def parse(args):
    kw = {}
    for a in args:
        k, v = a.split("=", 1)
        kw[k] = int(v) if re.fullmatch(r"-?\d+", v) else v.replace("+", " ")
    return Cfg(**kw)
if __name__ == "__main__":
    s = build(parse(sys.argv[2:]))
    open(sys.argv[1], "w").write(s)
    print(sys.argv[1], len(s), "bytes", s.count("\n"), "lines")
```

```python
import sys, re, math, struct, copy

NAME = "standalone__gqa_softmax__near_ridge_kernel"

PS = 1056
TS = 8 * PS
KB = 0
VB = 4 * TS
QB = 8 * TS
XB = 17 * TS
XLB = (XB + 16384 + 1023) // 1024 * 1024
FB = XLB + 1024
LDS_BYTES = 163840
assert FB + 16 <= LDS_BYTES

vK, vV, vLin, vAux, vG, vQ, vOw, vOr2, vOg, vT0, vLx, vLp, vTR0 = range(1, 14)
vRC = 14; vTR1 = 15
T16 = 16
TSC = 32
NEGM = 36
SB = 56
PB = 80
OB = 96
aQ = 0; aK = 80; aV = 144; aL = 208; aONE = 228; aSV = 232
aQx, aK0, aSGN, aXw, aXr, aXl, aXlr, aOxw, aOxr, aOxg, aFl, aOr = range(242, 254)
X = 4

sW = 3
sKS, sVS, sQA, sQB_, sOS = 12, 16, 20, 24, 28
sKV, sM0, sCNT, sQOFF, sOOFF = 32, 33, 34, 35, 36
sC = 38
sTHR, sMODE = 40, 41
sO1 = 42
sO1X = 43
sHI = 45
sQG, sQX = 46, 47
sXCC = 44
sT = 48
sOA = 56
sKVA = 57
sST = 60

def f32bits(x): return struct.unpack("<I", struct.pack("<f", x))[0]
C_SCALE = f32bits(math.log2(math.e) / math.sqrt(128.0))
THR = f32bits(2.0 ** 64)

def R(c, n, k=1): return {(c, n + i) for i in range(k)}
def rs(c, n, k=1): return f"{c}{n}" if k == 1 else f"{c}[{n}:{n+k-1}]"

class I:
    def __init__(s, text, kind, rd=(), wr=(), srcc=(), tag=None, vm=None, lg=None, lds=None):
        s.text, s.kind, s.rd, s.wr, s.srcc = text, kind, set(rd), set(wr), set(srcc)
        s.tag, s.vm, s.lg, s.lds = tag, vm, lg, lds
        s.nvm = s.nlg = None; s.after = []
    def render(s):
        if s.kind == "wait":
            p = []
            if s.nvm is not None: p.append(f"vmcnt({s.nvm})")
            if s.nlg is not None: p.append(f"lgkmcnt({s.nlg})")
            return "s_waitcnt " + " ".join(p) if p else "s_nop 0"
        return s.text
def chain(lst):
    for a, b in zip(lst, lst[1:]): b.after.append(a)
    return lst

def mfma(dc, d, ac, a, bc, b, c):
    ct = "0" if c is None else rs(dc, c, 4)
    cr = set() if c is None else R(dc, c, 4)
    return I(f"v_mfma_f32_16x16x32_bf16 {rs(dc,d,4)}, {rs(ac,a,4)}, {rs(bc,b,4)}, {ct}", "mfma",
             rd=R(ac, a, 4) | R(bc, b, 4) | cr, wr=R(dc, d, 4), srcc=cr)
def valu(text, rd, wr, kind="valu"): return I(text, kind, rd=rd, wr=wr)
def salu(text, wr=()): return I(text, "salu", wr=wr)
def wait(vm=None, lg=None): return I("", "wait", vm=vm, lg=lg)
def bar(): return I("s_barrier", "bar")
def nop(n): return I(f"s_nop {n}", "nop", tag=n)
def label(n): return I(f"{n}:", "label")
def off(o): return f" offset:{o}" if o else ""
def dsr128(dc, d, addr, o, tag, lds): return I(f"ds_read_b128 {rs(dc,d,4)}, v{addr}{off(o)}", "dsr", rd=R("v", addr), wr=R(dc, d, 4), tag=tag, lds=lds)
def dsrtr(dc, d, addr, o, tag, lds): return I(f"ds_read_b64_tr_b16 {rs(dc,d,2)}, v{addr}{off(o)}", "dsr", rd=R("v", addr), wr=R(dc, d, 2), tag=tag, lds=lds)
def dsw(n, addr, src, o, tag, lds):
    return I(f"ds_write_b{32*n} v{addr}, {rs('v',src,n)}{off(o)}", "dsw", rd=R("v", addr) | R("v", src, n), tag=tag, lds=lds)

class Cfg:
    W = 6
    nt = "nt"
    snt = "sc0 sc1"
    snt2 = "nt"
    nt2 = 9
    adj = 0
    BK = 114
    BV = 5
    BF = 74
    kd0 = 50
    kd1 = 82
    vd0 = 80
    vd1 = 112
    dk0 = 10
    dk1 = 50
    dv0 = 76
    dv1 = 96
    opos = 108
    sw = 14
    qpk = 0
    k20 = 100
    eshift = 4
    ebit = 1
    ones4 = 1
    cpf = 2
    pk = 1
    opat = 'o222'
    lev = 'L92221'
    lev2 = 'M73'
    xpar = 0
    levM1 = ''
    snake = 3
    wlag = 6
    wlag2 = 2
    rlag = 4
    pk2 = 7
    tx = 114
    t0 = 100
    t1 = 138
    t2 = 170
    n3 = 3
    s2 = 1
    wpen = 2
    split = 5
    stamps = 0
    rt = 0
    pst = 0
    trace = 0
    dbg = 0
    nodma = 0
    peel = 0
    slowall = 0
    slowB = -1
    prof = ''
    fsum = ''
    fneg = 0
    slowpos = ''
    probe = -1
    slowe = 0
    slowm = 200
    slowdec = 1
    def __init__(s, **kw):
        for k, v in kw.items():
            assert hasattr(Cfg, k), k
            setattr(s, k, v)

QUADS = {"hold": 1, "holdm": 3, "pk": 9, "salu": 1, "wait": 1, "bar": 1, "nop": 1, "valu": 1, "trans": 2, "dsr": 2, "dsw": 3, "dma": 3, "vld": 3, "vst": 3}
ORDER = {"hold": 0, "holdm": 1, "pk": 2, "salu": 0, "wait": 0, "bar": 0, "nop": 0, "dsr": 1, "dsw": 1, "dma": 1, "vld": 1, "vst": 1, "valu": 2, "trans": 2}
SORT = {"hold": 0, "salu": 0, "wait": 0, "bar": 0, "nop": 0, "vst": 1, "dsr": 2, "dma": 3, "vld": 3, "holdm": 3, "dsw": 4, "valu": 5, "trans": 5, "pk": 5}
WPEN = 2
def gap_time(g, real):
    t = 4 if real else 0; tail = 0; blk = 0; nw = 0
    for x in sorted(g, key=lambda x: SORT[x.kind]):
        k = x.kind
        if SORT[k] == 0: t += 4
        elif k == "vst": blk = t + 26; t += 12
        elif k == "dsr": t += 4; tail = max(tail, 4)
        elif SORT[k] == 3: t += 4 if ", 0 offen" in x.text else 8; tail = 12
        elif k == "dsw": t += {"32": 8, "64": 12, "12": 20}[x.text[10:12]] * (WPEN if nw else 1); tail = max(tail, 4); nw += 1
        else:
            t += tail; tail = 0
            if real: t = max(t, 28 if k == "pk" else 8)
            t += 8 if k == "trans" else 4
    return max(16 if real else 0, t + tail, blk)
class Stream:
    def fit(s, lst, lo, hi, late=0.0):
        lst = [(x + (lo, hi))[:4] if isinstance(x, tuple) else (x, 0, lo, hi) for x in lst]
        chain([x[0] for x in lst])
        n = len(lst); INF = 1e18
        dm = [max(x[1], 1) if k and SORT[x[0].kind] < SORT[lst[k - 1][0].kind] else x[1] for k, x in enumerate(lst)]
        link = lambda i: i + 1 < len(s.m) and s.m[i] is not None and s.m[i + 1] is not None and s.m[i].wr == s.m[i + 1].srcc
        base = {g: gap_time(s.g[g], s.m[g] is not None) for g in range(lo, hi + 1)}
        best = [dict() for _ in range(n + 1)]; best[0] = {lo - 1 - dm[0]: (0.0, None)}
        for k in range(n):
            if not best[k]: continue
            keys = sorted(best[k]); j = 0; run = (INF, None)
            for g in range(lo, hi + 1):
                while j < len(keys) and keys[j] + max(dm[k], 1) <= g:
                    if best[k][keys[j]][0] < run[0]: run = (best[k][keys[j]][0], keys[j])
                    j += 1
                if run[1] is None or any(getattr(x, "inorder", False) for x in s.g[g]): continue
                for z in range(k, min(n, k + 24)):
                    x = lst[z]
                    if (z > k and dm[z]) or not max(lo, x[2]) <= g <= min(hi, x[3]): break
                    if x[0].kind == "salu" and g in s.noscc: break
                    grp = [y[0] for y in lst[k:z + 1]]
                    t = gap_time(s.g[g] + grp, s.m[g] is not None)
                    c = run[0] + t - base[g] + (2 if t > base[g] == 16 and link(g) else 0) + (0.001 - late) * (g - lo) * len(grp)
                    if not s.g[g] and all(SORT[y.kind] in (0, 5) for y in grp): c += 1.5
                    if c < best[z + 1].get(g, (INF,))[0]: best[z + 1][g] = (c, (k, run[1]))
        assert best[n], f"cannot fit {lst[0][0].text} ... in [{lo},{hi}]"
        g = min(best[n], key=lambda g: best[n][g][0]); k = n; pos = [None] * n
        while k:
            k0, g0 = best[k][g][1]
            for z in range(k0, k): pos[z] = g
            k, g = k0, g0
        for x, g in zip(lst, pos): s.put(g, x[0])
        return pos
    def __init__(s):
        s.m = []; s.g = []; s.pos = {}; s.noscc = set()
    def add(s, ins, key=None):
        if key is not None: s.pos[key] = len(s.m)
        s.m.append(ins); s.g.append([])
    def fits(s, i, ins, two_ds=False):
        g = s.g[i] + [ins]
        nds = sum(x.kind == "dsr" for x in g)
        if nds > (2 if two_ds else 1): return False
        q = sum(QUADS[x.kind] for x in g) - (1 if nds == 2 else 0)
        v = sum(QUADS[x.kind] for x in g if x.kind in ("valu", "trans"))
        return q <= 3 and v <= 2
    def put(s, i, ins): s.g[i].append(ins); return i
    def place(s, ins, lo, hi, pref=None):
        if pref:
            for i in range(lo, hi + 1):
                if pref(s.g[i]) and s.fits(i, ins): return s.put(i, ins)
        for i in range(lo, hi + 1):
            if s.fits(i, ins): return s.put(i, ins)
        for i in range(lo, hi + 1):
            if s.fits(i, ins, True): return s.put(i, ins)
        raise RuntimeError(f"cannot place {ins.text} in [{lo},{hi}]")
    def late(s, ins, lo, hi):
        for i in range(hi, lo - 1, -1):
            if s.fits(i, ins): return s.put(i, ins)
        return s.put(hi, ins)
    def spread(s, lst, lo, hi, asap=False):
        lst = [x if isinstance(x, tuple) else (x, 0) for x in lst]
        chain([x for x, _ in lst])
        n = sum(x.kind != "pk" for x, _ in lst); cur = lo; npk = 0
        dm = [max(d, 1) if k and SORT[x.kind] < SORT[lst[k - 1][0].kind] else d for k, (x, d) in enumerate(lst)]
        for k, (ins, _) in enumerate(lst):
            a = cur + dm[k]
            lim = hi - sum(dm[k + 1:])
            assert a <= lim, f"spread overflow {ins.text} {a} > {lim}"
            tgt = min(lim, max(a, lo + ((k - npk) * (hi - lo + 1)) // n))
            if asap: tgt = lim
            if ins.kind == "pk": s.put(a, ins); cur = a; npk += 1; continue
            i = next((j for j in range(a, tgt + 1) if s.fits(j, ins)), None)
            if i is None:
                i = tgt
                if ORDER[ins.kind] == 1:
                    i = next((j for j in range(tgt, min(tgt + 3, lim) + 1) if not any(ORDER[y.kind] == 1 for y in s.g[j])), tgt)
            s.put(i, ins); cur = i
        return cur
    def srt(s, i):
        if any(getattr(x, "inorder", False) for x in s.g[i]): return list(s.g[i])
        return sorted(s.g[i], key=lambda x: SORT[x.kind])
    def emit(s, lo, hi):
        out = []
        if lo > 0: out += [x for x in s.srt(lo - 1) if ORDER[x.kind] > 0]
        for i in range(lo, hi):
            if s.m[i] is not None: out.append(s.m[i])
            out += [x for x in s.srt(i) if i < hi - 1 or hi == len(s.m) or ORDER[x.kind] == 0]
        return out

def dma(cfg, kv, S, j):
    base = (KB if kv == "K" else VB) + (S & 1) * 2 * TS + j * (PS - 1024)
    srd = sKS if kv == "K" else sVS
    return [salu(f"s_add_u32 m0, s{sM0}, {base}", wr={("s", "m0")}),
            I(f"buffer_load_dwordx4 v{vLin}, s[{srd}:{srd+3}], 0 offen{off(1024*j)} {cfg.nt} lds", "dma",
              rd=R("v", vLin) | {("s", "m0")}, tag=(kv, S, j), lds=("w", (kv, S & 1), (kv, S)))]
def kv_step(cfg, kv, S):
    d = 16384; srd = sKS if kv == "K" else sVS
    if S == 16 and not cfg.adj: d = 16384 + 255 * 262144
    return salu(f"s_add_u32 s{srd}, s{srd}, {d}\ns_addc_u32 s{srd+1}, s{srd+1}, 0")
def kread(e, S, r, kb, s): return dsr128("a", aK + 32 * r + 16 * kb + 4 * s, vK, (2 * (S & 1) + (e ^ r)) * TS + 512 * kb + 64 * s, ("Kr", S, r), ("r", ("K", S & 1), ("K", S)))
def vread(e, S, r, dt, kb): return dsrtr("a", aV + 32 * r + 4 * dt + 2 * kb, vV, (2 * (S & 1) + (e ^ r)) * TS + 512 * kb + 32 * dt, ("Vr", S, r, dt >> 2), ("r", ("V", S & 1), ("V", S)))
def qoff(q): return (q >> 1) * TS + (q & 1) * 512
def unpark(v, a): return valu(f"v_accvgpr_read_b32 v{v}, a{a}", R("a", a), R("v", v))
def qreads(h, q):
    if q == X: return [unpark(TSC, aQx)] + [dsr128("a", aQ + 16 * q + 4 * s, TSC, 64 * s, ("Qr", h, q), ("r", "QO", ("Q", h), q)) for s in range(4)]
    return [dsr128("a", aQ + 16 * q + 4 * s, vQ, qoff(q) + 64 * s, ("Qr", h, q), ("r", "QO", ("Q", h), q)) for s in range(4)]
def k0reads(h): return [unpark(TSC + 2, aK0), unpark(TSC + 3, aSGN)] + [dsr128("v", T16 + 4 * s, TSC + 2, 64 * s, ("K0r", h), ("r", ("K", 0), ("K", 16 * h))) for s in range(4)]
def k0neg(i): return valu(f"v_bitop3_b32 v{T16+i}, v{T16+i}, v{TSC+3}, s{sMODE} bitop3:0x28", R("v", T16 + i) | R("v", TSC + 3), R("v", T16 + i))
def negm_init(h, q, r): return valu(f"v_accvgpr_read_b32 v{NEGM+4*q+r}, a{aSV+5*h+q}", R("a", aSV + 5 * h + q), R("v", NEGM + 4 * q + r))
def negm_mfma(q, s): return mfma("v", NEGM + 4 * q, "v", T16 + 4 * s, "a", aQ + 16 * q + 4 * s, NEGM + 4 * q)
def scale_reg(src, t, packed):
    o = [valu(f"v_lshlrev_b32 v{t}, 16, v{src}", R("v", src), R("v", t)),
         valu(f"v_and_b32 v{t+1}, s{sHI}, v{src}", R("v", src), R("v", t + 1))]
    if packed:
        o.append(valu(f"v_pk_mul_f32 v[{t}:{t+1}], v[{t}:{t+1}], s[{sC}:{sC+1}]", R("v", t, 2), R("v", t, 2)))
    else:
        o.append(valu(f"v_mul_f32 v{t}, s{sC}, v{t}", R("v", t), R("v", t)))
        o.append(valu(f"v_mul_f32 v{t+1}, s{sC}, v{t+1}", R("v", t + 1), R("v", t + 1)))
    o.append(valu(f"v_cvt_pk_bf16_f32 v{src}, v{t}, v{t+1}", R("v", t, 2), R("v", src)))
    return o
def scale_piece(src, t):
    c = [scale_reg(src + r, t + 2 * r, True) for r in range(4)]
    return [x for r in range(4) for x in c[r][:2]] + [c[r][2] for r in range(4)] + [c[r][3] for r in range(4)]
def stamp(cfg, k, pro=False):
    if bool(cfg.pst) != pro: return []
    op = "s_memrealtime" if cfg.rt else "s_memtime"
    return [I(f"{op} s[{sST+2*k}:{sST+2*k+1}]", "salu")] if cfg.stamps > max(k, 5) else []
def ostore(cfg, buf, voff, soff, o, tag, q=-9):
    return I(f"buffer_store_dwordx4 {rs('v',buf,4)}, v{voff}, s[{sOS}:{sOS+3}], s{soff} offen{off(o)} {cfg.snt2 if q >= cfg.nt2 else cfg.snt}", "vst", rd=R("v", voff) | R("v", buf, 4), tag=tag)

def muls(b, n, packed):
    if packed: return [valu(f"v_pk_mul_f32 v[{b+k}:{b+k+1}], v[{b+k}:{b+k+1}], v[{vRC}:{vRC+1}] op_sel_hi:[1,0]", R("v", b + k, 2) | R("v", vRC), R("v", b + k, 2), "pk") for k in range(0, n, 2)]
    return [valu(f"v_mul_f32 v{b+k}, v{vRC}, v{b+k}", R("v", b + k) | R("v", vRC), R("v", b + k)) for k in range(n)]
def cvts(b): return [valu(f"v_cvt_pk_bf16_f32 v{b}, v{b}, v{b+1}", R("v", b, 2), R("v", b)), valu(f"v_cvt_pk_bf16_f32 v{b+1}, v{b+2}, v{b+3}", R("v", b + 2, 2), R("v", b + 1))]
def q_head(q):
    return [valu(f"v_accvgpr_read_b32 v{vT0}, a{aL+4*q}", R("a", aL + 4 * q), R("v", vT0)),
            valu(f"v_rcp_f32 v{vRC}, v{vT0}", R("v", vT0), R("v", vRC), "trans"),
            valu(f"v_add_f32 v{vG}, v{vG}, v{vT0}", R("v", vG) | R("v", vT0), R("v", vG)),
            valu(f"v_add_f32 v{vG}, v{vG}, v{vRC}", R("v", vG) | R("v", vRC), R("v", vG))]
def q_stage(h, q, packed):
    o = muls(OB + 32 * q, 32, True) if packed else []
    for dt in range(8):
        b = OB + 32 * q + 4 * dt
        o += ([] if packed else muls(b, 4, False)) + cvts(b) + [dsw(2, vOw, b, qoff(q) + 32 * dt, ("Ow", h), ("w", "QO", ("O", h), q))]
    return o
def q_out(cfg, q, lat=8):
    b = OB + 32 * q
    o = [dsr128("v", b + 4 * i, vOr2, qoff(q) + i * PS, ("Op", q, i), ("r", "QO", ("O", 1), q)) for i in range(4)]
    if q == 2: o.append(salu(f"s_add_u32 s{sO1}, s{sO1}, 8192"))
    for i in range(4):
        o += [(wait(lg=[("Op", q, i)]), lat if i == 0 else 0), ostore(cfg, b + 4 * i, vOg, sO1, 1024 * i + 512 * (q & 1), ("Os", 1), q)]
    return o
def x_send(e, h):
    o = [unpark(TSC, aXw), unpark(TSC + 1, aXl), valu(f"v_accvgpr_read_b32 v{vLx}, a{aL+4*X}", R("a", aL + 4 * X), R("v", vLx))]
    o += [dsw(4, TSC, OB + 32 * X + 16 * (1 - e) + 4 * i, 1024 * i, ("Xw", h), ("w", "X", ("X", h))) for i in range(4)]
    o += [dsw(1, TSC + 1, vLx, 0, ("Xw", h), ("w", "X", ("X", h))), unpark(TSC, aXr), unpark(TSC + 1, aXlr)]
    return o
def x_recv(e, h):
    snd = OB + 32 * X + 16 * (1 - e)
    o = [I(f"ds_read_b32 v{vLp}, v{TSC+1}", "dsr", rd=R("v", TSC + 1), wr=R("v", vLp), tag=("Xr", h), lds=("r", "X", ("X", h)))]
    o += [dsr128("v", snd + 4 * i, TSC, 1024 * i, ("Xr", h), ("r", "X", ("X", h))) for i in range(4)]
    return o + [unpark(TSC, aOxw)]
def x_stage(e, h, packed):
    kp = OB + 32 * X + 16 * e; snd = OB + 32 * X + 16 * (1 - e)
    o = [wait(lg=[("Xr", h)]), valu(f"v_add_f32 v{vLx}, v{vLx}, v{vLp}", R("v", vLx, 2), R("v", vLx)),
         valu(f"v_rcp_f32 v{vRC}, v{vLx}", R("v", vLx), R("v", vRC), "trans"),
         valu(f"v_add_f32 v{vG}, v{vG}, v{vLx}", R("v", vG) | R("v", vLx), R("v", vG)),
         valu(f"v_add_f32 v{vG}, v{vG}, v{vRC}", R("v", vG) | R("v", vRC), R("v", vG))]
    if packed:
        o += [valu(f"v_pk_add_f32 v[{kp+k}:{kp+k+1}], v[{kp+k}:{kp+k+1}], v[{snd+k}:{snd+k+1}]", R("v", kp + k, 2) | R("v", snd + k, 2), R("v", kp + k, 2), "pk") for k in range(0, 16, 2)]
        o += muls(kp, 16, True)
    for i in range(4):
        if not packed:
            o += [valu(f"v_add_f32 v{kp+4*i+k}, v{kp+4*i+k}, v{snd+4*i+k}", R("v", kp + 4 * i + k) | R("v", snd + 4 * i + k), R("v", kp + 4 * i + k)) for k in range(4)]
            o += muls(kp + 4 * i, 4, False)
        o += cvts(kp + 4 * i) + [dsw(2, TSC, kp + 4 * i, 32 * i, ("Ow", h), ("w", "QO", ("O", h), X))]
    return o
def x_out(cfg, e, h):
    snd = OB + 32 * X + 16 * (1 - e)
    o = [unpark(TSC, aOxr), unpark(TSC + 1, aOxg)]
    o += [dsr128("v", snd + 4 * k, TSC, 4 * k * PS, ("Op", X, h, k), ("r", "QO", ("O", h), X)) for k in range(2)]
    o += [(wait(lg=[("Op", X, h, 0)]), 6), ostore(cfg, snd, TSC + 1, sO1X, 0, ("Os", h), 8 * h - 9), salu(f"s_add_u32 s{sO1X}, s{sO1X}, 4096"),
          wait(lg=[("Op", X, h, 1)]), ostore(cfg, snd + 4, TSC + 1, sO1X, 0, ("Os", h), 8 * h - 9)]
    if h == 0: o.append(salu(f"s_add_u32 s{sO1X}, s{sO1X}, {73728 * (1 if cfg.adj else 256) - 4096}"))
    return o

def start_ops():
    kv = lambda c, S: [(c, S, j) for j in range(4)]
    return kv("K", 0) + [("X", 0), ("X", 1)] + [("G", j) for j in range(8)] + kv("V", 0) + [("G", j) for j in range(8, 16)] + kv("K", 1) + kv("V", 1)
def land(op): return OB + 32 + 4 * op[1] if op[0] == "X" else OB + 64 + 4 * op[1]
def op_tag(op): return ("Ql", 0) + op if op[0] in "XG" else op
def issue_op(cfg, op, pad=True):
    if op[0] in "XG":
        j = op[1]; so = sQX if op[0] == "X" else sQG
        r = [salu(f"s_add_u32 s{sQG}, s{sQG}, 4096")] if (op[0] == "G" and j and j % 4 == 0) else []
        return r + [I(f"buffer_load_dwordx4 {rs('v',land(op),4)}, v{vLin}, s[{sQA}:{sQA+3}], s{so} offen{off(1024*(j&3))} {cfg.nt}", "vld",
                      rd=R("v", vLin), wr=R("v", land(op), 4), tag=op_tag(op))]
    kv, S, j = op
    m0, ld = dma(cfg, kv, S, j)
    return ([kv_step(cfg, kv, S)] if (j == 0 and S) else []) + [m0, nop(0), ld]
def start_step(cfg, i, tmp):
    ops = start_ops(); op = ops[i]
    o = [wait(vm=[op_tag(op)])]
    if i + cfg.W < len(ops): o += issue_op(cfg, ops[i + cfg.W])
    if op[0] == "X": o += scale_piece(land(op), tmp) + [dsw(4, vLx, land(op), PS * op[1], ("Qw", 0, X), ("w", "QO", ("Q", 0), X))]
    if op[0] == "G": o += scale_piece(land(op), tmp) + [dsw(4, vT0, land(op), PS * op[1], ("Qw", 0, op[1] >> 3), ("w", "QO", ("Q", 0), op[1] >> 3))]
    return o

QK0 = {X: 0, 0: 26, 1: 51, 2: 85, 3: 119}
PV0 = {X: 42, 0: 67, 1: 101, 2: 135, 3: 161}
CH0 = {X: 0, 0: 2, 1: 6, 2: 10, 3: 14}
EXP0 = {0: 34, 1: 66, 2: 97, 3: 128}
UO = (X, 0, 1, 2, 3)
def sbuf(q, c): return SB + 4 * ((CH0[q] + c) % 6)
def pbuf(S, q, r): return PB + 8 * ((5 * S + UO.index(q)) & 1) + 4 * r

def loops(cfg, h):
    b0 = 1 + (cfg.peel if h == 0 else 0)
    if h == 0 and cfg.lev[2] != cfg.lev[3] and b0 < cfg.split < 7: return [(b0, cfg.split), (cfg.split, 7)]
    return [(b0, 7)]

def main_stream(cfg, e):
    global WPEN; WPEN = cfg.wpen
    st = Stream()
    ks = lambda c, k: 3 - k if (cfg.snake & 1 and c & 1) else k
    vs = lambda dt: dt & 1 if cfg.snake & 2 else 0
    def qk(S, q):
        if S % 16 == 0 and not (S == 0 and q == X):
            if S == 0 and q == 2: st.add(None, key="g1a"); st.add(None, key="g1b")
            for s in range(4): st.add(negm_mfma(q, s), key=("n", S, q, s))
        for c in range(2 if q == X else 4):
            for k in range(4):
                s = ks(c, k)
                st.add(mfma("v", sbuf(q, c), "a", aK + 16 * c + 4 * s, "a", aQ + 16 * q + 4 * s, NEGM + 4 * q if k == 0 else sbuf(q, c)), key=153 * S + QK0[q] + 4 * c + k)
    def pv(S, q):
        k = 153 * S + PV0[q]; z = S % 16 == 0
        for dt in ([8] + list(range(8)) if S == 31 and q != X else range(9)):
            for i in range(1 if q == X else 2):
                r = 0 if q == X else i ^ vs(dt)
                dc, d, a = ("v", OB + 32 * q + 4 * dt, aV + 32 * r + 4 * dt) if dt < 8 else ("a", aL + 4 * q, aONE)
                st.add(mfma(dc, d, "a", a, "v", pbuf(S, q, r), None if (z and i == 0) else d), key=k); k += 1
    for S in range(33):
        if S < 32: qk(S, X)
        if S: pv(S - 1, 3)
        if S == 32: break
        qk(S, 0)
        if S == 0: st.add(None, key="v0a"); st.add(None, key="v0b")
        pv(S, X)
        for q in (1, 2, 3): qk(S, q); pv(S, q - 1)
    P = st.pos
    G = lambda S, r: P[153 * S + r]
    last = len(st.m) - 1
    clusters = []
    def level(a, z):
        b = a // 306
        if a < 85 or (z + 1) // 306 != b or a >= 153 * 31: return 0
        if cfg.levM1 and 9 <= b <= 14: return int(cfg.levM1)
        if b == 15: return 0
        return int(cfg.lev[1 if b == 0 else 2 if b < cfg.split else 3 if b < 7 else 4 if a < 153 * 15 else 5 if b > 8 else 0].replace("L", "0"))
    for S in range(32):
        for q in UO:
            if q == X: eg, cg = ([9 + 3 * i for i in range(8)], [13, 19, 25, 31]) if S else (list(range(26, 34)), [35, 35, 39, 39])
            else:
                eg = [EXP0[q] + 2 * i for i in range(16)]; cg = [EXP0[q] + 4 * i + 3 for i in range(8)]
                if q in (1, 2): cg[7] += 1
                if S == 31 and q == 3:
                    eg = [128, 130, 131, 132, 134, 135, 137, 138, 140, 141, 143, 144, 146, 147, 148, 149]; cg = [133, 133, 139, 139, 145, 145, 150, 150]
            ex = []; cv = []
            for i, g in enumerate(eg):
                r = sbuf(q, i >> 2) + (i & 3)
                ex.append(valu(f"v_exp_f32 v{r}, v{r}", R("v", r), R("v", r), "trans")); st.put(G(S, g), ex[-1])
            for i, g in enumerate(cg):
                r = sbuf(q, i >> 1) + 2 * (i & 1); d = pbuf(S, q, i >> 2) + (i & 3)
                cv.append(valu(f"v_cvt_pk_bf16_f32 v{d}, v{r}, v{r+1}", R("v", r, 2), R("v", d))); st.put(G(S, g), cv[-1])
            for c in range(len(eg) // 4):
                lv = level(153 * S + eg[4 * c], 153 * S + cg[2 * c + 1])
                if ((CH0[q] + c + 1) * lv) // 9 != ((CH0[q] + c) * lv) // 9:
                    clusters.append(([(x, G(S, g)) for x, g in zip(ex[4 * c: 4 * c + 4] + cv[2 * c: 2 * c + 2], eg[4 * c: 4 * c + 4] + cg[2 * c: 2 * c + 2])],
                                     G(S, eg[4 * c + 1]), G(S, eg[4 * c + 3])))
    bounds = {(h, b): (G(16 * h + 2 * b, 0) if (h, b) != (1, 0) else P[("n", 16, X, 0)]) for h in range(2) for b in range(8)}
    bounds[(0, 8)] = bounds[(1, 0)]; bounds[(1, 8)] = last + 1
    hasexp = lambda g: any(x.kind == "trans" for x in g)
    hascvt = lambda g: any(x.kind == "valu" for x in g)
    noscc = st.noscc
    for h in range(2):
        b0 = 1 + (cfg.peel if h == 0 else 0)
        for b1, b2 in loops(cfg, h):
            for b in range(b1, b2):
                z = bounds[(h, b + 1)]
                st.put(z - 1, I(f"s_cbranch_scc1 L_m{h}{b1}{e}", "salu")); st.put(z - 3, salu(f"s_cmp_lg_u32 s{sCNT}, {7 - b2}")); st.put(z - 5, salu(f"s_sub_u32 s{sCNT}, s{sCNT}, 1"))
                noscc |= {z - 3, z - 2, z - 1}
        st.put(bounds[(h, b0)] - 5, salu(f"s_mov_b32 s{sCNT}, {7 - b0}"))
        if cfg.lev2:
            st.put(bounds[(h, b0)] - 3, salu(f"s_bitcmp{cfg.xpar}_b32 s{sXCC}, 0")); st.put(bounds[(h, b0)] - 1, salu(f"s_cbranch_scc1 L_n{h}{b0}{e}"))
            noscc |= {bounds[(h, b0)] - k for k in (1, 2, 3)}
        else:
            for k in (3, 1): st.put(bounds[(h, b0)] - k, I("", "hold"))
    def safe_salu(ins, lo, hi):
        for pref in (hasexp, lambda g: True):
            for i in range(lo, hi + 1):
                if i not in noscc and pref(st.g[i]) and st.fits(i, ins): return st.put(i, ins)
        raise RuntimeError("salu " + ins.text)
    BV = {}; BK = {}; BX = {}; BF = {}; bars = []
    def barrier(g, vm, lg, fix=False):
        i = st.place(wait(vm=vm, lg=lg), g, g + 3, hasexp)
        i = st.place(bar(), i + 1, i + 4, hasexp) if not fix else st.put(i + 2, bar())
        bars.append(i); return i
    for k in range(14, 18):
        for x in start_step(cfg, k, None): st.put(P["v0a"], x); x.inorder = True
    for x in (wait(lg=[("Kr", 0), ("K0r", 0)]), bar()): st.put(P["v0a"], x); x.inorder = True
    BV[0] = P["v0a"]; bars.append(BV[0])
    for S in range(32):
        h = S >> 4
        any_ = {1: [("Qr", 0)], 14: [("Qw", 1)], 17: [("Xr", 0)]}.get(S, [])
        if S: BV[S] = barrier(G(S, cfg.BV), [("V", S)], [("Kr", S), ("K0r", h)], cfg.BV == 5)
        if S % 16 == 15: BX[h] = BF[S] = barrier(G(S, cfg.BF or 72), None, [("Xw", h), ("Qr", h + 1, X)] + ([("Vr", S)] if cfg.BF else []))
        elif cfg.BF and cfg.sw <= S < 30: BF[S] = barrier(G(S, cfg.BF if S else 86), None, [("Vr", S)])
        if S < 31: BK[S + 1] = barrier(G(S, cfg.BK), [("K", S + 1)], [("Vr", S)] + any_)
    for S in range(1, 32):
        if not st.g[G(S, 7)]: st.put(G(S, 7), wait(lg=[("Kr", S)]))
    if cfg.trace:
        for i in sorted(set(bars) - set(BF.values())):
            for t in ("s_mov_b32 m0, s98", f"v_writelane_b32 v{vTR0}, s94, m0", f"v_writelane_b32 v{vTR1}, s96, m0", "s_add_u32 s98, s98, 1", "s_memrealtime s[94:95]", "s_memtime s[96:97]"):
                st.g[i].append(valu(t, set(), set()))
    for k in range(16): st.put(P["v0a"], vread(e, 0, 0, k >> 1, k & 1))
    st.put(P["v0b"], wait(lg=[("Vr", 0, 0, 0)]))
    st.put(G(0, 45), wait(lg=[("Vr", 0, 0, 1)]))
    st.late(wait(lg=[("Qr", 0, 0)]), G(0, 4), G(0, 7)); st.late(wait(lg=[("Kr", 0, 1)]), G(0, 30), G(0, 33))
    lo, hi = G(0, 43), G(0, 84)
    for k in range(8):
        g = lo + (hi - lo) * (k + 1) // 8 if k < 7 else P["g1a"]
        while st.g[g]: g += 1
        for x in start_step(cfg, 18 + k, OB + 64): st.put(g, x); x.inorder = True
    for x in qreads(0, 2) + qreads(0, 3): st.put(P["g1a"], x); x.inorder = True
    for op in start_ops()[26 + cfg.W:]:
        for x in issue_op(cfg, op): st.put(P["g1a"], x); x.inorder = True
    st.put(P["g1b"], wait(lg=[("Qr", 0, 2)]))
    st.late(wait(lg=[("Qr", 0, 3)]), G(0, 110), G(0, 118))
    lastd = {"K": P["g1b"], "V": P["g1b"]}; steps = []
    def step_at(ins, lo, hi): steps.append((ins, max(lo, hi - 60, max(z for z in bounds.values() if z <= hi)), hi))
    for S in range(31):
        w0, w1 = (cfg.kd0, cfg.kd1), (cfg.vd0, cfg.vd1)
        if S == 0: plan = [("K", 2, cfg.k20, cfg.k20 + 16)] + ([("V", 2, 106, 122)] if cfg.sw == 0 else [])
        elif S < cfg.sw: plan = [("V", S + 1) + w0, ("K", S + 2) + w1]
        elif S == cfg.sw: plan = [("V", S + 1, 46, 66), ("K", S + 2, 66, 90), ("V", S + 2, 90, 114)]
        else: plan = [("K", S + 2, cfg.dk0, cfg.dk1), ("V", S + 2, cfg.dv0, cfg.dv1)]
        cur = 0
        for kv, S2, a, b in plan:
            if S2 > 31: continue
            cur = max(cur, BV[S] + 1) if (kv == "K" or S2 == S + 1) else max(cur, (BF[S] if cfg.BF else BK[S + 1]) + 1)
            for j in range(4):
                g = max(cur, G(S, a + (b - a) * j // 4 + (cfg.eshift * e if S and len(plan) < 3 else 0)))
                if j == 0: step_at(kv_step(cfg, kv, S2), lastd[kv], g)
                if cfg.nodma: continue
                m0, ld = dma(cfg, kv, S2, j)
                i = safe_salu(m0, g, g + 12)
                cur = lastd[kv] = st.place(ld, i + 1, i + 10) + 1
    anchors = {}
    def qload(j, buf, o): return I(f"buffer_load_dwordx4 {rs('v',buf,4)}, v{vLin}, s[{sQB_}:{sQB_+3}], s{sQOFF} offen{off(o)} {cfg.nt}", "vld",
                                   rd=R("v", vLin), wr=R("v", buf, 4), tag=("Ql", 1, j))
    sh = cfg.eshift * e
    st.place(qload(0, T16, 0), G(1, 68 + sh), G(1, 100))
    for b in range(1, 7):
        j = 3 * (b - 1)
        st.place(qload(j + 1, T16 + 4, 1024), G(2 * b, sh), G(2 * b, 20))
        st.place(qload(j + 2, T16 + 8, 2048), G(2 * b, 68 + sh), G(2 * b, 100))
        lo = st.place(qload(j + 3, T16, 3072), G(2 * b + 1, sh), G(2 * b + 1, 20))
        safe_salu(salu(f"s_add_u32 s{sQOFF}, s{sQOFF}, 3072"), lo + 1, lo + 20)
        for i, g in enumerate((106, 153 + 68, 153 + 106)):
            anchors[(b, i)] = st.place(dsw(4, vAux, T16 + 4 * i, PS * i, ("Qw", 1), ("w", "QO", ("Q", 1))), G(2 * b, g + sh), G(2 * b, g + 30))
    onum = {0: int(cfg.opat[1]), 7: int(cfg.opat[3])}; onum.update({b: int(cfg.opat[2]) for b in range(1, 7)})
    assert sum(onum.values()) == 16 and onum[0] <= 8
    osite = []; j = 0
    for b in range(8):
        n = onum[b]
        if not n: continue
        pos = {1: (cfg.opos,), 2: (cfg.opos, cfg.opos + 153)}[n] if 0 < b < 7 else [(150 + 140 * i // n) if b == 0 else (60 + 120 * i // n) for i in range(n)]
        if n == 2 and b == 0: pos = (153, cfg.opos + 153)
        for i in range(n):
            lo = G(16 + 2 * b, pos[i] + cfg.eshift * e)
            x = ostore(cfg, T16 + 4 * (i % 4), vLin, sOOFF, 1024 * (i % 4), ("Os", 0, j))
            lo = st.place(x, lo, lo + 24) if 0 < b < 7 else st.put(next((g for g in range(lo, lo + 6) if st.fits(g, x) and not 8 <= pos[i] % 153 < 48 and pos[i] % 153 < 116), lo + (not hasexp(st.g[lo]))), x)
            osite.append((b, i, n, j, lo)); j += 1
            if i == n - 1 or i % 4 == 3: safe_salu(salu(f"s_add_u32 s{sOOFF}, s{sOOFF}, {1024 * (i % 4 + 1)}"), lo + 1, lo + 10)
    def reads(lst):
        lo = 0
        for k, (r, a, z) in enumerate(lst):
            a = max(a, lo)
            def room(pred, frm):
                cur = frm
                for (_, a2, z2) in lst[k:]:
                    cur = next((i for i in range(max(cur, a2), z2 + 1) if pred(i)), None)
                    if cur is None: return False
                    cur += 1
                return True
            if room(lambda i: hascvt(st.g[i]) and st.fits(i, r), a): lo = st.place(r, a, z, hascvt) + 1
            elif room(lambda i: st.fits(i, r), a): lo = st.place(r, a, z) + 1
            elif k and a - 1 >= lst[k][1] and st.fits(a - 1, r, True): lo = st.put(a - 1, r) + 1
            else:
                i = next((i for i in range(a, z + 1) if st.fits(i, r, True)), None)
                lo = st.put(min(a, z) if i is None else i, r) + 1
    reads([(vread(e, 0, 1, k >> 1, k & 1), G(0, 42), G(0, 58 + (k >> 3) * 8)) for k in range(16)])
    for S in range(32):
        if S:
            reads([(vread(e, S, 0, k >> 1, k & 1), max(BV[S] + 1, G(S, 8 + (k & 14) + vs(k >> 1))), G(S, 33 + (k >> 3) * 4)) for k in range(16)] +
                  [(vread(e, S, 1, k >> 1, k & 1), G(S, 9 + (k & 14)), G(S, 58 + (k >> 3) * 8)) for k in range(16)])
            st.late(wait(lg=[("Vr", S, 0, 0)]), G(S, 38), G(S, 41)); st.late(wait(lg=[("Vr", S, 0, 1)]), G(S, 42), G(S, 45))
        st.late(wait(lg=[("Vr", S, 1, 0)]), G(S, 63), G(S, 67)); st.late(wait(lg=[("Vr", S, 1, 1)]), G(S, 71), G(S, 75))
        if S < 31:
            reads([(kread(e, S + 1, j >> 3, (j >> 2) & 1, ks(j >> 2, j & 3)), max(BK[S + 1] + 1, G(S, 119 + j)), G(S, 143 if j < 8 else 149)) for j in range(16)])
            st.late(wait(lg=[("Kr", S + 1, 0)]), G(S, 146), G(S, 151))
    for ins, lo, hi in steps:
        g = min((g for g in range(lo, hi + 1) if g not in noscc), key=lambda g: (gap_time(st.g[g] + [ins, ins], True) - gap_time(st.g[g], True), not st.g[g], -g))
        st.put(g, ins); st.put(g, I("", "hold"))
    for b in range(1, 7):
        for i in range(3):
            buf = T16 + 4 * i
            lo = (G(2 * b, 26), G(2 * b + 1, 6), G(2 * b + 1, 62))[i]
            if cfg.qpk:
                c = scale_piece(buf, T16 + 12)
                for x in c[8:12]: x.kind = "pk"
            else: c = [x for r in range(4) for x in scale_reg(buf + r, TSC + 2 * (r & 1), False)]
            st.spread([wait(vm=[("Ql", 1, 3 * (b - 1) + i)])] + c, lo, anchors[(b, i)] - 1 if i != 1 else G(2 * b + 1, 61), True)
        st.spread([valu(f"v_add_u32 v{vAux}, {3*PS}, v{vAux}", R("v", vAux), R("v", vAux))], anchors[(b, 2)] + 1, bounds[(0, b + 1)] - 2, True)
    st.spread([unpark(vAux, aOr)], G(14, 60), G(14, 110), True)
    lo = G(16, 124); ord_ = {}
    for b, i, n, j, a in osite:
        x = ord_[j] = dsr128("v", T16 + 4 * (i % 4), vAux, PS * i, ("Or", 0, j), ("r", "QO", ("O", 0), j >> 3))
        lo = st.spread([x], max(a - 30, lo + 1), a - 10, True)
        if i == n - 1 and b < 7: lo = st.spread([valu(f"v_add_u32 v{vAux}, {n*PS}, v{vAux}", R("v", vAux), R("v", vAux))], lo + 1, bounds[(1, b + 1)] - 2, True)
        st.late(wait(lg=[("Or", 0, j)]), a - 6, a - 1)
    one = lambda x: x[0] if isinstance(x, tuple) else x
    st.place(wait(vm=[("Ql", 1, 18)]), G(15, 80), G(15, 110), hasexp)
    done = lambda S, q: G(S, PV0[q] + (8 if q == X else 17)) + 5
    qrd = {}; qpos = {}
    for q in UO:
        use = P[("n", 16, q, 0)]
        lo = G(15, QK0[q] + (7 if q == X else 15))
        qrd[q] = qreads(1, q)
        qpos[q] = st.fit(qrd[q], lo, done(15, q) - 1 if q == X else done(15, q) + 6)[-1]
        st.late(wait(lg=[("Qr", 1, q)]), use - 4, use - 1)
    k0 = k0reads(1)
    st.fit(k0[:2] + [(x, 0, BK[16] + 1, 1 << 30) for x in k0[2:]] + [(wait(lg=[("K0r", 1)]), 8)] + [k0neg(i) for i in range(16)], G(15, 80), P[("n", 16, X, 0)] - 3)
    xs = {}
    for h in range(2):
        S = 16 * h + 15
        xs[h] = (x_send(e, h), x_recv(e, h), x_stage(e, h, cfg.pk))
        if h == 0: xs[h][0][0].after.append(qrd[X][-1])
        st.fit(xs[h][0], done(S, X), BX[h] - 6)
        xs[h][1][0].after.append(xs[h][0][-1]); xs[h][2][0].after.append(xs[h][1][-1])
        st.fit(xs[h][1], BX[h] + 1, BX[h] + 6)
    def epi(h, parts):
        va = []; wr = []
        for q, c, lo, hi in parts:
            for x in c:
                if x.kind != "dsw": va.append((x, 0, lo(x), hi(x) - (cfg.wlag if h == 0 else cfg.wlag2)))
                else: x.after.append(va[-1][0]); wr.append((x, len(va) - 1, q, hi(x)))
        pos = st.fit(va, min(x[2] for x in va), max(x[3] for x in va))
        wl = [(x, 0, max(pos[k] + 1, qpos[q] + 1 if h == 0 else 0), hi) for x, k, q, hi in wr]
        if h == 0:
            for x, k, q, hi in wr: x.after.append(qrd[q][-1])
        pw = st.fit(wl, min(x[2] for x in wl), max(x[3] for x in wl))
        return {q: p for (x, k, q, hi), p in zip(wr, pw)}
    dtof = lambda x, q: max([(r[1] - OB - 32 * q) >> 2 for r in x.rd if r[0] == "v" and OB + 32 * q <= r[1] < OB + 32 * q + 32], default=0)
    parts = [(X, xs[0][2], lambda x: BX[0] + 16, lambda x: G(15, 150))]
    for q in range(4): parts.append((q, q_head(q) + q_stage(0, q, cfg.pk), lambda x, q=q: done(15, q), lambda x, q=q: G(16, PV0[q] + 2 * dtof(x, q)) - 1 if q != 1 else G(16, 100)))
    wend = epi(0, parts)
    for q in UO:
        lo = G(15, QK0[q] + (7 if q == X else 15)) + 2
        st.fit([negm_init(1, q, r) for r in range(4)], lo, P[("n", 16, q, 0)] - 3)
    xo = x_out(cfg, e, 0); xo[0].after.append(xs[0][2][-1])
    st.fit(xo, wend[X] + 1, G(16, 38))
    rdy = lambda x, q: min(last, G(31, PV0[q] + (1 if not x.rd & R("v", OB + 32 * q, 32) else 3 + 2 * dtof(x, q))) + cfg.rlag)
    parts = []
    for q, z in ((0, cfg.t0), (1, cfg.t1), (2, cfg.t2)): parts.append((q, q_head(q) + q_stage(1, q, cfg.pk2 >> q & 1), lambda x, q=q: rdy(x, q), lambda x, z=z: G(31, z)))
    parts.insert(1, (X, xs[1][2], lambda x: BX[1] + 14, lambda x: G(31, cfg.tx)))
    c3 = q_head(3) + q_stage(1, 3, False)[:7 * cfg.n3]
    parts.append((3, c3, lambda x: rdy(x, 3), lambda x: last + cfg.wlag2 - 1 if x.kind != "dsw" else last))
    wend = epi(1, parts)
    xo = x_out(cfg, e, 1); xo[0].after.append(xs[1][2][-1])
    win = lambda c, a: [(one(x), x[1] if isinstance(x, tuple) else 0, a + 1, 1 << 30) for x in c]
    st.fit(win(q_out(cfg, 0, 7), wend[0]) + win(xo, wend[X]) + win(q_out(cfg, 1, 7), wend[1]) + win(q_out(cfg, 2, 5)[:5 + 2 * cfg.s2], wend[2]), wend[0] + 1, last, -0.05)
    link = lambda i: st.m[i] is not None and st.m[i + 1] is not None and st.m[i].wr == st.m[i + 1].srcc
    for lst, a, z in clusters:
        g = next((i for i in range(z, a - 1, -1) if not link(i)), z)
        for x, i in lst: st.g[i].remove(x); st.g[g].append(x)
    for x in range(153 * 32):
        if x % 17 == 9 and x in P:
            n = (cfg.slowB if cfg.slowB >= 0 and x >= 153 * 16 else cfg.slowall) + (round(cfg.slowe * (1 - cfg.slowdec * (x - 85) / cfg.slowm)) if 85 <= x < 85 + cfg.slowm else 0)
            if cfg.prof and 85 <= x < 153 * (len(cfg.prof) - 1): n += int(cfg.prof[1 + x // 153], 16)
            n += 2 if n else 0
            g = P[x]
            link = lambda i: st.m[i] is not None and st.m[i + 1] is not None and st.m[i].wr == st.m[i + 1].srcc
            if cfg.slowpos: g = next((i for i in range(g - 5, g + 5) if link(i) == (cfg.slowpos == "i") and len(st.g[i]) >= 1 and st.g[i][-1].kind in ("trans", "valu")), g)
            while n > 0: st.g[g].append(valu(f"s_nop {min(n, 16) - 1}", set(), set())); n -= 16
    for k, (S, r) in enumerate(((14, 1), (15, 1), (16, 1), (17, 1), (30, 1), (31, 1), (31, 150))):
        for x in stamp(cfg, 4 + k): st.g[G(S, r)].append(x)
    if cfg.probe >= 0 and cfg.probe < 16:
        h, b = divmod(cfg.probe, 8)
        lp = [l for l in loops(cfg, h) if l[0] <= b < l[1]]
        if not lp: st.g[bounds[(h, b)] + 4].append(valu("s_memrealtime s[90:91]", set(), set()))
        else:
            for b2 in range(*lp[0]):
                for t in (f"s_cmp_lg_u32 s{sCNT}, {7 - b}", f"s_cbranch_scc1 L_pr{e}", "s_memrealtime s[90:91]", f"L_pr{e}:"): st.g[bounds[(h, b2)] + 4].append(valu(t, set(), set()))
    if cfg.fneg:
        for i, m in enumerate(st.m):
            if m is not None and m.srcc and m.srcc != m.wr: m.text = m.text.rsplit(",", 1)[0] + ", 0"
    if cfg.fsum:
        for i, m in enumerate(st.m):
            if m is not None and m.text.startswith("v_mfma_f32_16x16x32_bf16 a["):
                pb = min(r[1] for r in m.rd if r[0] == "v")
                st.m[i] = None
                if cfg.fsum == "dot": st.g[i] += [valu(f"v_dot2c_f32_bf16 v{vLp}, v{pb+k}, v{vLx}", set(), set()) for k in range(4)]
        if cfg.fsum in ("pka", "add"):
            for i in range(len(st.g)):
                for x in list(st.g[i]):
                    if x.text.startswith("v_cvt_pk") and PB <= min(r[1] for r in x.wr) < PB + 16:
                        r = min(r[1] for r in x.rd)
                        if cfg.fsum == "add":
                            for k in range(2):
                                y = valu(f"v_add_f32 v{vLp}, v{r+k}, v{vLp}", set(), set())
                                j = next((j for j in range(i, i + 3) if j < len(st.g) and st.fits(j, y) and all(j + 1 != z and not (i < z <= j) for z in bounds.values())), i)
                                st.g[j].append(y)
                        elif r % 4 == 2: st.g[i] += [valu(f"v_pk_add_f32 v[{TSC}:{TSC+1}], v[{r-2+k}:{r-1+k}], v[{TSC}:{TSC+1}]", set(), set()) for k in (0, 2)]
    for g in st.g: g[:] = [x for x in g if x.kind not in ("hold", "holdm")]
    return st, bounds

def tail(cfg):
    one = lambda x: x[0] if isinstance(x, tuple) else x
    o = [unpark(TSC + 2, aFl), valu(f"v_cmp_nge_f32 vcc, s{sTHR}, v{vG}", R("v", vG), set())]
    o2 = [one(x) for x in q_out(cfg, 2)[5 + 2 * cfg.s2:]]
    o += o2[:2]; o2 = o2[2:]
    for dt in range(cfg.n3, 8):
        b = OB + 96 + 4 * dt
        o += muls(b, 4, True) + cvts(b) + [dsw(2, vOw, b, qoff(3) + 32 * dt, ("Ow", 1), ("w", "QO", ("O", 1), 3))]
    o2 += [salu(f"s_or_b32 s{sT}, vcc_lo, vcc_hi"), valu(f"v_mov_b32 v{vT0}, s{sT}", set(), R("v", vT0)), dsw(1, TSC + 2, vT0, 0, ("Fw",), ("w", "F", ("F",)))]
    q3 = [one(x) for x in q_out(cfg, 3)]
    o += q3[:4] + o2 + q3[4:]
    o.append(valu(f"v_mov_b32 v{vT0}, {FB}", set(), R("v", vT0)))
    o += [wait(lg=[("Fw",)]), bar(), dsr128("v", PB, vT0, 0, ("Fr",), ("r", "F", ("F",))), wait(lg=[("Fr",)])]
    o.append(valu(f"v_or3_b32 v{PB}, v{PB}, v{PB+1}, v{PB+2}", R("v", PB, 3), R("v", PB)))
    o.append(valu(f"v_or_b32 v{PB}, v{PB}, v{PB+3}", R("v", PB, 4), R("v", PB)))
    o += [nop(0), valu(f"v_readfirstlane_b32 s{sT}, v{PB}", R("v", PB), set())]
    return chain(o)

def setup(cfg):
    L = []
    A = L.append
    A("s_cmp_ge_u32 s2, 256"); A("s_cbranch_scc1 L_end")
    A("s_load_dwordx4 s[4:7], s[0:1], 0"); A("s_load_dwordx4 s[8:11], s[0:1], 16")
    if cfg.stamps:
        A(f"s_load_dwordx2 s[58:59], s[0:1], {32 if cfg.dbg else 40}")
        A(f"s_memrealtime s[{sST}:{sST+1}]"); A(f"s_memtime s[{sST+4}:{sST+5}]")
    A("v_lshrrev_b32 v16, 6, v0"); A("v_and_b32 v17, 63, v0")
    A(f"v_readfirstlane_b32 s{sW}, v16")
    A(f"v_lshlrev_b32 v{vLin}, 4, v17")
    if cfg.adj: A(f"s_lshl_b32 s{sT}, s2, 1")
    else: A(f"s_mov_b32 s{sT}, s2")
    A(f"s_mul_i32 s{sOA}, s{sT}, 73728"); A(f"s_lshl_b32 s{sKVA}, s{sT}, 18")
    A(f"s_mul_i32 s{sM0}, s{sW}, {4*PS}"); A(f"s_mov_b32 s{sMODE}, -1")
    if cfg.lev2 or cfg.stamps: A(f"s_getreg_b32 s{sXCC}, hwreg(HW_REG_XCC_ID)")
    A(f"s_lshl_b32 s{sKV}, s{sW}, 12"); A(f"s_add_u32 s{sKV}, s{sKV}, s{sKVA}")
    for d, n in ((sKS, 4096), (sVS, 4096), (sOS, 37748736), (sQA, 73728), (sQB_, 18432)):
        A(f"s_mov_b32 s{d+2}, {n}"); A(f"s_mov_b32 s{d+3}, 0x20000")
    for i in range(10): A(f"v_accvgpr_write_b32 a{aSV+i}, 0")
    if cfg.trace: A("s_mov_b32 s98, 0"); A("s_memrealtime s[94:95]"); A("s_memtime s[96:97]")
    A(f"s_mul_i32 s{sT}, s{sW}, 18432"); A(f"s_add_u32 s{sT}, s{sT}, {73728 * (1 if cfg.adj else 256)}")
    A("s_waitcnt lgkmcnt(0)")
    A(f"s_mov_b64 s[{sOS}:{sOS+1}], s[10:11]")
    A(f"s_add_u32 s{sQA}, s4, s{sOA}"); A(f"s_addc_u32 s{sQA+1}, s5, 0")
    A(f"s_add_u32 s{sQB_}, s{sQA}, s{sT}"); A(f"s_addc_u32 s{sQB_+1}, s{sQA+1}, 0")
    return L

def lane_setup(cfg):
    L = []; A = L.append
    eb, xb = cfg.ebit, 1 - cfg.ebit
    park = lambda a, v=21: A(f"v_accvgpr_write_b32 a{a}, v{v}")
    A("v_lshrrev_b32 v16, 6, v0"); A("v_and_b32 v17, 63, v0")
    A("v_lshrrev_b32 v18, 4, v17")
    A("v_and_b32 v19, 7, v17")
    A("v_bfe_u32 v20, v17, 3, 1")
    A(f"v_bfe_u32 v24, v16, {eb}, 1"); A(f"v_bfe_u32 v25, v16, {xb}, 1")
    A(f"v_mul_u32_u24 v21, {PS}, v19"); A("v_lshl_add_u32 v26, v20, 8, v21")
    A(f"v_lshlrev_b32 v21, 4, v18"); park(aK0); A(f"v_add_u32 v{vK}, v26, v21")
    A("v_bfe_u32 v21, v17, 2, 3"); A(f"v_mul_u32_u24 v21, {PS}, v21"); A("v_lshrrev_b32 v22, 5, v17"); A("v_lshl_add_u32 v21, v22, 8, v21")
    A("v_and_b32 v23, 3, v17"); A("v_lshl_add_u32 v21, v23, 3, v21"); A(f"v_add_u32 v{vV}, {VB}, v21")
    A(f"v_mul_u32_u24 v27, {2*TS}, v16"); A(f"v_add_u32 v27, {QB}, v27"); A(f"v_add_u32 v{vQ}, v27, v{vK}")
    A(f"v_add_u32 v{vT0}, v27, v{vLin}")
    A(f"v_mul_u32_u24 v21, {2*PS}, v16"); A(f"v_add_u32 v21, {QB + 8*TS}, v21"); A(f"v_add_u32 v{vLx}, v21, v{vLin}")
    A(f"v_mul_u32_u24 v21, {18*PS}, v16"); A(f"v_add_u32 v21, {QB}, v21"); A(f"v_add_u32 v{vAux}, v21, v{vLin}")
    A(f"v_lshl_add_u32 v21, v25, 9, v{vK}"); A(f"v_add_u32 v21, {QB + 8*TS}, v21"); park(aQx)
    A("v_xor_b32 v21, v22, v20"); A("v_lshl_add_u32 v21, v21, 4, v26"); A("v_and_b32 v23, 1, v18"); A("v_lshl_add_u32 v21, v23, 3, v21")
    A(f"v_add_u32 v{vOw}, v27, v21")
    A("v_lshl_add_u32 v21, v25, 9, v21"); A("v_lshl_add_u32 v21, v24, 7, v21"); A(f"v_add_u32 v21, {QB + 8*TS}, v21"); park(aOxw)
    A(f"v_and_b32 v21, 31, v17"); A("v_lshlrev_b32 v21, 4, v21"); A(f"v_lshl_add_u32 v{vOg}, v22, 12, v21")
    A("v_lshlrev_b32 v23, 4, v23"); A(f"v_xor_b32 v28, v23, v{vT0}"); park(aOr, 28)
    A("v_xor_b32 v21, v23, v21"); A(f"v_mul_u32_u24 v23, {4*PS}, v22"); A(f"v_add3_u32 v{vOr2}, v21, v23, v27")
    A(f"v_xor_b32 v21, v19, v20"); A("v_lshlrev_b32 v21, 4, v21"); A("v_lshl_add_u32 v21, v20, 8, v21"); A(f"v_mul_u32_u24 v23, {PS}, v18"); A("v_add_u32 v21, v21, v23")
    A("v_lshl_add_u32 v21, v25, 9, v21"); A("v_lshl_add_u32 v21, v24, 7, v21"); A(f"v_add_u32 v21, {QB + 8*TS}, v21"); park(aOxr)
    A("v_lshlrev_b32 v21, 4, v19"); A("v_lshl_add_u32 v21, v20, 8, v21"); A("v_lshl_add_u32 v21, v18, 10, v21")
    A("v_lshl_add_u32 v21, v25, 9, v21"); A(f"v_lshl_add_u32 v21, v24, 7, v21"); park(aOxg)
    A(f"v_lshl_add_u32 v22, v16, 12, v{vLin}"); A(f"v_add_u32 v21, {XB}, v22"); park(aXw)
    A(f"v_xor_b32 v22, {0x1000 << eb}, v22"); A(f"v_add_u32 v21, {XB}, v22"); park(aXr)
    A(f"v_lshlrev_b32 v21, 2, v0"); A(f"v_add_u32 v21, {XLB}, v21"); park(aXl); A(f"v_xor_b32 v21, {256 << eb}, v21"); park(aXlr)
    A(f"v_lshlrev_b32 v21, 2, v16"); A(f"v_add_u32 v21, {FB}, v21"); park(aFl)
    A(f"v_mov_b32 v21, 0x80008000"); park(aSGN)
    A(f"v_mov_b32 v21, 0x3f803f80")
    if cfg.ones4: A("v_and_b32 v22, 3, v17"); A("v_cmp_eq_u32 vcc, 0, v22"); A("s_nop 1"); A("v_cndmask_b32 v21, 0, v21, vcc")
    for i in range(4): park(aONE + i)
    A(f"v_mov_b32 v{vG}, 0")
    A(f"s_mov_b32 s{sC}, {C_SCALE:#x}"); A(f"s_mov_b32 s{sC+1}, {C_SCALE:#x}"); A(f"s_mov_b32 s{sTHR}, {THR:#x}"); A(f"s_mov_b32 s{sHI}, 0xffff0000")
    hb = 73728 * (1 if cfg.adj else 256)
    A(f"s_lshl_b32 s{sT}, s{sW}, 14"); A(f"s_add_u32 s{sOOFF}, s{sT}, s{sOA}"); A(f"s_add_u32 s{sO1}, s{sOOFF}, {hb}")
    A(f"s_add_u32 s{sO1X}, s{sOA}, 65536"); A(f"s_mov_b32 s{sQOFF}, 0")
    return [salu(x) for x in L]

def prologue(cfg):
    o = stamp(cfg, 4, True)
    o += [salu(f"s_add_u32 s{sKS}, s6, s{sKV}"), salu(f"s_addc_u32 s{sKS+1}, s7, 0"), salu(f"s_add_u32 s{sVS}, s8, s{sKV}"), salu(f"s_addc_u32 s{sVS+1}, s9, 0"),
          salu(f"s_lshl_b32 s{sQG}, s{sW}, 14"),
          salu(f"s_lshl_b32 s{sQX}, s{sW}, 11"), salu(f"s_add_u32 s{sQX}, s{sQX}, 65536")]
    for op in start_ops()[:cfg.W]: o += issue_op(cfg, op)
    if cfg.cpf:
        if cfg.cpf == 1: sh = ("s_and_b32 s50, s50, 3", "s_lshl_b32 s50, s50, 15", "v_lshl_add_u32 v28, v0, 7, s50")
        else: sh = ("s_lshl_b32 s50, s50, 12", "v_lshl_add_u32 v28, v0, 4, s50")
        c = [salu(t) for t in ("s_getpc_b64 s[48:49]", "L_pc:", "s_lshr_b32 s50, s2, 3") + sh + ("v_min_u32 v28, L_end-L_pc, v28", "v_mov_b32 v29, s49",
             "v_add_co_u32 v28, vcc, s48, v28", "s_nop 1", "v_addc_co_u32 v29, vcc, 0, v29, vcc")]
        c.append(I(f"global_load_dword v{vLp}, v[28:29], off", "vld", tag=("code",)))
        o = c + o if cfg.cpf == 3 else o + c
    o += lane_setup(cfg)
    for q in range(5):
        for r in range(4): o.append(negm_init(0, q, r))
    for i in range(7):
        o += start_step(cfg, i, SB)
        if i in (0, 6): o += stamp(cfg, {0: 5, 6: 6}[i], True)
    o.append(wait(lg=[("Qw", 0, X)])); o.append(bar())
    o += k0reads(0) + qreads(0, X)
    return o

def prologue2(cfg, e):
    o = [kread(e, 0, 0, j >> 2, j & 3) for j in range(8)]
    o += start_step(cfg, 7, SB)
    o += [wait(lg=[("K0r", 0)])] + [k0neg(i) for i in range(16)]
    o += [kread(e, 0, 1, j >> 2, j & 3) for j in range(8)]
    for i in range(8, 14): o += start_step(cfg, i, SB)
    o += stamp(cfg, 7, True)
    o += qreads(0, 0) + qreads(0, 1)
    o.append(wait(lg=[("Qr", 0, X), ("Kr", 0, 0)]))
    o += [negm_mfma(X, s) for s in range(4)]
    o += stamp(cfg, 8, True)
    return o

def fallback(cfg):
    L = []; A = L.append
    xb = 1 - cfg.ebit
    A("s_waitcnt vmcnt(0) lgkmcnt(0)"); A("s_barrier")
    A(f"s_mov_b32 s{sMODE}, 0")
    A("v_and_b32 v16, 63, v0"); A("v_lshrrev_b32 v17, 4, v16")
    A("v_and_b32 v18, 7, v16"); A("v_bfe_u32 v19, v16, 3, 1"); A("v_lshl_add_u32 v18, v18, 2, v19")
    A("v_lshlrev_b32 v18, 8, v18"); A("v_lshl_add_u32 v18, v17, 4, v18")
    A("v_and_b32 v19, 15, v16"); A("v_lshlrev_b32 v19, 8, v19"); A("v_lshl_add_u32 v19, v17, 4, v19")
    A(f"s_mov_b32 s{sT+4}, s4"); A(f"s_mov_b32 s{sT+5}, s5"); A(f"s_mov_b32 s{sT+6}, 37748736"); A(f"s_mov_b32 s{sT+7}, 0x20000")
    A(f"s_mov_b64 s[{sKS}:{sKS+1}], s[6:7]"); A(f"s_mov_b32 s{sKS+2}, 134217728")
    for h in range(2):
        hq = 73728 * (1 if cfg.adj else 256) * h; hk = 262144 * (1 if cfg.adj else 256) * h
        for q in range(5):
            if q < 4:
                A(f"s_lshl_b32 s{sT}, s{sW}, 14"); A(f"s_add_u32 s{sT}, s{sT}, {hq + (q >> 1) * 8192 + (q & 1) * 512}")
            else:
                A(f"s_bfe_u32 s{sT}, s{sW}, {0x10000 + xb:#x}"); A(f"s_lshl_b32 s{sT}, s{sT}, 9"); A(f"s_add_u32 s{sT}, s{sT}, {hq + 65536}")
            A(f"s_add_u32 s{sT}, s{sT}, s{sOA}")
            for s in range(4): A(f"buffer_load_dwordx4 {rs('v', OB+16*q+4*s, 4)}, v18, s[{sT+4}:{sT+7}], s{sT} offen{off(64*s)}")
        A("s_waitcnt vmcnt(0)")
        for r in range(80):
            for ins in scale_reg(OB + r, TSC + 2 * (r & 1), True): A(ins.text)
        for i in range(5): A(f"v_mov_b32 v{NEGM+i}, 0xff800000")
        A(f"s_add_u32 s{sT}, s{sKVA}, {hk}"); A(f"s_mov_b32 s{sT+1}, 64")
        A(f"L_fb{h}:")
        for s in range(4): A(f"buffer_load_dwordx4 {rs('v', SB+4*s, 4)}, v19, s[{sKS}:{sKS+3}], s{sT} offen{off(64*s)}")
        A("s_waitcnt vmcnt(0)")
        for q in range(5):
            for s in range(4): A(mfma("v", 192 + 4 * q, "v", SB + 4 * s, "v", OB + 16 * q + 4 * s, None if s == 0 else 192 + 4 * q).text)
        A("s_nop 7"); A("s_nop 1")
        for q in range(5):
            A(f"v_max3_f32 v{NEGM+q}, v{NEGM+q}, v{192+4*q}, v{193+4*q}"); A(f"v_max3_f32 v{NEGM+q}, v{NEGM+q}, v{194+4*q}, v{195+4*q}")
        A(f"s_add_u32 s{sT}, s{sT}, 4096"); A(f"s_sub_u32 s{sT+1}, s{sT+1}, 1"); A(f"s_cmp_lg_u32 s{sT+1}, 0"); A(f"s_cbranch_scc1 L_fb{h}")
        for x in (16, 32):
            A(f"v_xor_b32 v20, {x}, v16"); A("v_lshlrev_b32 v20, 2, v20")
            for q in range(5): A(f"ds_bpermute_b32 v{SB+q}, v20, v{NEGM+q}")
            A("s_waitcnt lgkmcnt(0)")
            for q in range(5): A(f"v_max_f32 v{NEGM+q}, v{NEGM+q}, v{SB+q}")
        for q in range(5): A(f"v_xor_b32 v{NEGM+q}, 0x80000000, v{NEGM+q}")
        for q in range(5): A(f"v_accvgpr_write_b32 a{aSV+5*h+q}, v{NEGM+q}")
    A(f"s_mov_b32 s{sKS+2}, 4096")
    A("s_nop 1")
    A("s_branch L_start")
    return L

def match(tag, want): return isinstance(tag, tuple) and any(tag[:len(w)] == w for w in want)
def resolve(tr):
    vm = []; lg = []; vdone = 0; ldone = 0; pend = {}; epoch = 0; ev = []
    for k, ins in enumerate(tr): ins.idx = k
    for ins in tr:
        for a in ins.after: assert a.idx < ins.idx, f"order: {a.text} must precede {ins.text}"
        for r in ins.rd | ins.wr:
            if r in pend:
                c, idx = pend[r]
                assert idx < (vdone if c == "vm" else ldone), f"unwaited load of {r} at {ins.text} ({ins.idx})"
                del pend[r]
        if ins.kind == "wait":
            ins.nvm = ins.nlg = None
            v0, l0 = vdone, ldone
            for want, lst, mx, c in ((ins.vm, vm, 63, "vm"), (ins.lg, lg, 14, "lg")):
                if not want: continue
                idx = next((i for i in range(len(lst) - 1, -1, -1) if match(lst[i].tag, want)), -1)
                if idx < 0: continue
                n = min(len(lst) - 1 - idx, mx)
                if c == "vm": ins.nvm = n; vdone = max(vdone, len(lst) - n)
                else: ins.nlg = n; ldone = max(ldone, len(lst) - n)
            for x in vm[v0:vdone] + lg[l0:ldone]: x.edone = epoch
        elif ins.kind == "bar": epoch += 1
        elif ins.kind in ("dma", "vld", "vst"):
            vm.append(ins)
            assert len(vm) - vdone <= 62
            for r in ins.wr: pend[r] = ("vm", len(vm) - 1)
        elif ins.kind in ("dsr", "dsw"):
            lg.append(ins)
            for r in ins.wr: pend[r] = ("lg", len(lg) - 1)
        if ins.lds: ins.eissue = epoch; ev.append(ins)
    return epoch, ev
def check_lds(evs):
    INF = 10 ** 9
    def before(a, b, msg): assert max(getattr(x, "edone", INF) for x in a) < min(x.eissue for x in b), msg
    reg = {}
    for ev in evs:
        for x in ev: reg.setdefault(x.lds[1], {}).setdefault(x.lds[2], {"r": [], "w": []})[x.lds[0]].append(x)
    for r, cont in reg.items():
        if r == "QO": continue
        order = sorted(cont, key=lambda c: min(x.eissue for x in cont[c]["w"]))
        for i, c in enumerate(order):
            before(cont[c]["w"], cont[c]["r"], f"LDS RAW {r} {c}")
            if i + 1 < len(order): before(cont[c]["r"] + cont[c]["w"], cont[order[i + 1]]["w"], f"LDS WAR {r} {c}")
    c = reg["QO"]
    before(c[("Q", 1)]["w"], c[("Q", 1)]["r"], "Q RAW")
    before([x for x in c[("Q", 0)]["w"] if x.lds[3] == X], [x for x in c[("Q", 0)]["r"] if x.lds[3] == X], "Q0x RAW")
    for ev in evs:
        for q in range(4):
            assert max(x.idx for x in ev if x.lds[:3] == ("w", "QO", ("Q", 0)) and x.lds[3] == q >> 1) < min(x.idx for x in ev if x.lds == ("r", "QO", ("Q", 0), q))
    before(c[("Q", 0)]["r"], c[("Q", 1)]["w"], "Q0->Q1")
    before([x for x in c[("Q", 1)]["r"] if x.lds[3] == X], [x for x in c[("O", 0)]["w"] if x.lds[3] == X], "Q1x->O0x")
    for ev in evs:
        for q in range(5):
            g = q if q == X else q >> 1
            rd = [x.idx for x in ev if x.lds == ("r", "QO", ("O", 0), g)]
            assert max(x.idx for x in ev if x.lds == ("w", "QO", ("O", 0), q)) < min(rd) and max(rd) < min(x.idx for x in ev if x.lds == ("w", "QO", ("O", 1), q))
    for ev in evs:
        for q in range(5):
            sel = lambda m, cc: [x.idx for x in ev if x.lds[1] == "QO" and x.lds[0] == m and x.lds[2] == cc and len(x.lds) > 3 and x.lds[3] == q]
            assert max(sel("r", ("Q", 1))) < min(sel("w", ("O", 0))) and max(sel("w", ("O", 1))) < min(sel("r", ("O", 1)))
def check_hazards(tr):
    seq = [x for x in tr if x.kind != "label"]
    def ws(x): return x.tag + 1 if x.kind == "nop" else 1
    for i, c in enumerate(seq):
        d = 0
        for j in range(i - 1, max(-1, i - 12), -1):
            p = seq[j]; need = 0
            isv = c.kind in ("valu", "trans", "pk"); mem = c.kind in ("dsr", "dsw", "dma", "vld", "vst")
            if p.kind == "mfma":
                if (isv or mem) and p.wr & (c.rd | c.wr): need = 8
                if c.kind == "mfma":
                    if p.wr & (c.rd - c.srcc): need = 8
                    if p.wr & c.srcc and p.wr != c.srcc: need = 6
                if isv and p.srcc & c.wr: need = max(need, 3)
            if p.kind in ("valu", "trans", "pk") and c.kind == "mfma" and p.wr & c.rd: need = 2
            if p.kind == "trans" and c.kind in ("valu", "pk") and p.wr & c.rd: need = 1
            if p.kind == "salu" and c.kind == "dma" and ("s", "m0") in p.wr: need = 1
            if p.kind == "vst" and (p.rd & c.wr): need = 2
            if p.kind in ("valu", "trans") and "readfirstlane" in c.text and p.wr & c.rd: need = 1
            assert d >= need, f"hazard: {p.text} -> {c.text} needs {need}, has {d}"
            d += ws(p)
def check_values(tr):
    state = {}
    for x in tr:
        for r in x.rd:
            if r in state: state[r] = (state[r][0], True)
        for r in x.wr:
            if r in state and not state[r][1] and r[0] in "va" and r not in x.rd:
                p = state[r][0]
                dead_ok = (p.kind == "mfma" and r[0] == "a") or (r == ("v", vAux) and "accvgpr" in x.text) or (match(p.tag, [("Ql", 1)]) and p.tag[2] >= 18)
                assert dead_ok, f"value of {r} from '{p.text}' overwritten unread by '{x.text}'"
            state[r] = (x, False)

def build(cfg):
    out = ["; GQA softmax attention, B16 H32 Sq288 Sk1024 D128 bf16 (schedule emitted by my own generator script)",
           f"; @launch grid=(256,1,1) block=(256,1,1) lds={LDS_BYTES}",
           '.amdgcn_target "amdgcn-amd-amdhsa--gfx950"', ".text", f".globl {NAME}", ".p2align 8", f".type {NAME},@function", f"{NAME}:"]
    out += setup(cfg)
    out.append("L_start:")
    evs = []; eps = []; texts = []; common = {}; extra = []
    def variant(cfg, e):
        segs = [("pro", prologue(cfg)), ("pro2", prologue2(cfg, e))]
        st, bounds = main_stream(cfg, e)
        cuts = [bounds[(h, b)] for h in range(2) for b in range(8)] + [len(st.m)]
        for k in range(16): segs.append((divmod(k, 8), st.emit(cuts[k], cuts[k + 1])))
        segs.append(("tail", stamp(cfg, 11) + tail(cfg) + stamp(cfg, 12)))
        tr = [x for _, s in segs for x in s]
        ep, ev = resolve(tr)
        if not cfg.fsum: check_hazards(tr); check_values(tr)
        d = dict(segs)
        for h, b0, b2 in [(h,) + l for h in range(2) for l in loops(cfg, h)]:
            ref = d[(h, b0)]
            for b in range(b0 + 1, b2):
                cur = d[(h, b)]
                assert len(cur) == len(ref), (h, b, len(cur), len(ref))
                for x, y in zip(ref, cur):
                    assert x.kind == y.kind and x.text == y.text, (h, b, x.text, y.text)
                    if x.kind == "wait":
                        for a in ("nvm", "nlg"):
                            vals = [v for v in (getattr(x, a), getattr(y, a)) if v is not None]
                            setattr(x, a, min(vals) if vals else None)
        return segs, ep, ev
    for e in range(2):
        segs, ep, ev = variant(cfg, e); eps.append(ep); evs.append(ev)
        if cfg.lev2:
            assert cfg.lev[2] == cfg.lev[3] and not cfg.peel
            c2 = copy.copy(cfg); c2.lev = cfg.lev[:2] + cfg.lev2[1] * 2 + cfg.lev[4:]; c2.levM1 = cfg.lev2[2]
            d1, d2 = dict(segs), dict(variant(c2, e)[0])
            for k in d1:
                same = [x.render() for x in d1[k]] == [x.render() for x in d2[k]]
                assert same or (isinstance(k, tuple) and 1 <= k[1] <= 6), k
            for h in range(2):
                mem = lambda s: [x.render() for x in s if x.kind not in ("valu", "trans")]
                assert mem(d1[(h, 1)]) == mem(d2[(h, 1)])
                extra += [".p2align 6", f"L_n{h}1{e}:"] + [x.render().replace("L_m", "L_n") for x in d2[(h, 1)]] + [f"s_branch L_x{h}{e}"]
        t = []
        for k, s in segs:
            p = [x.render() for x in s]
            if k in ("pro", "tail"):
                assert common.setdefault(k, p) == p; continue
            if isinstance(k, tuple):
                if any(b1 < k[1] < b2 for b1, b2 in loops(cfg, k[0])): continue
                if any(b1 == k[1] for b1, b2 in loops(cfg, k[0])): t.append(f"L_m{k[0]}{k[1]}{e}:")
                if k[1] == 7: t.append(f"L_x{k[0]}{e}:")
            t += p
        texts.append(t)
    assert eps[0] == eps[1]
    if not cfg.nodma: check_lds(evs)
    out += common["pro"]
    out += [f"s_bitcmp1_b32 s{sW}, {cfg.ebit}", "s_cbranch_scc1 L_odd"]
    out += texts[0] + ["s_branch L_tail"] + extra + [".p2align 6", "L_odd:"] + texts[1] + ["L_tail:"] + common["tail"]
    if cfg.nodma: out += [f"s_mov_b32 s{sT}, 0"]
    out += ["s_nop 3", f"s_and_b32 s{sT}, s{sT}, s{sMODE}", "s_cbranch_scc1 L_fallback"]
    if cfg.probe >= 0:
        out += ["s_waitcnt vmcnt(0)"] + (["s_memrealtime s[90:91]"] if cfg.probe == 16 else []) + ["s_waitcnt lgkmcnt(0)", "s_add_u32 s90, s90, 10000",
                "L_spin:", "s_memrealtime s[92:93]", "s_waitcnt lgkmcnt(0)", "s_sub_u32 s92, s92, s90", "s_cmp_lt_i32 s92, 0", "s_cbranch_scc1 L_spin"]
    if cfg.trace:
        out += ["s_waitcnt lgkmcnt(0)", "s_mov_b32 m0, s98", f"v_writelane_b32 v{vTR0}, s94, m0", f"v_writelane_b32 v{vTR1}, s96, m0", f"v_mov_b32 v38, v{vTR0}", f"v_mov_b32 v39, v{vTR1}", f"s_cmp_lg_u32 s{sW}, 0", "s_cbranch_scc1 L_notr",
                f"s_lshl_b32 s{sT}, s2, 9", f"s_add_u32 s{sT}, s{sT}, 0x100000", f"v_lshl_add_u32 v20, v0, 3, s{sT}", "global_store_dwordx2 v20, v[38:39], s[58:59]", "L_notr:"]
    if cfg.stamps:
        n = cfg.stamps
        out += ["s_waitcnt vmcnt(0)", "s_barrier", f"s_memrealtime s[{sST+2}:{sST+3}]", f"s_memtime s[{sST+6}:{sST+7}]", "s_waitcnt lgkmcnt(0)",
                f"s_cmp_lg_u32 s{sW}, 0", "s_cbranch_scc1 L_end", f"s_mul_i32 s{sT}, s2, {n*8}", f"v_mov_b32 v20, s{sT}",
                "v_cmp_eq_u32 vcc, 0, v0", "s_and_saveexec_b64 s[50:51], vcc"]
        if cfg.dbg:
            out += ["s_cmp_ge_u32 s2, 8", "s_cbranch_scc1 L_end", f"s_lshl_b32 s{sT}, s2, 3", f"v_mov_b32 v20, s{sT}",
                    f"s_sub_u32 s{sT}, s{sST+2}, s{sST}", f"v_mov_b32 v22, s{sT}", f"s_sub_u32 s{sT}, s{sST+6}, s{sST+4}", f"v_mov_b32 v23, s{sT}",
                    "global_store_dwordx2 v20, v[22:23], s[58:59]"]
        else:
            if n == 5: out += [f"s_add_u32 s{sST+8}, s{sST+4}, s{sXCC}", f"s_addc_u32 s{sST+9}, s{sST+5}, 0"]
            if cfg.rt:
                for i in range(4, n):
                    r = sST + 2 * i
                    out += [f"s_sub_u32 s{r}, s{r}, s{sST}", f"s_subb_u32 s{r+1}, s{r+1}, s{sST+1}", f"s_add_u32 s{r}, s{r}, s{sST+4}", f"s_addc_u32 s{r+1}, s{r+1}, s{sST+5}"]
            for i in range(n):
                out += [f"v_mov_b32 v{22+2*i}, s{sST+2*i}", f"v_mov_b32 v{23+2*i}, s{sST+2*i+1}", f"global_store_dwordx2 v20, v[{22+2*i}:{23+2*i}], s[58:59] offset:{8*i}"]
    out += ["L_end:", "s_endpgm", "L_fallback:"] + fallback(cfg)
    out += ['.section .rodata,"a"', ".p2align 6", f".amdhsa_kernel {NAME}",
            "  .amdhsa_next_free_vgpr 512", "  .amdhsa_next_free_sgpr 102", "  .amdhsa_accum_offset 256",
            "  .amdhsa_group_segment_fixed_size 0", "  .amdhsa_kernarg_size 48", "  .amdhsa_user_sgpr_count 2",
            "  .amdhsa_user_sgpr_kernarg_segment_ptr 1", "  .amdhsa_system_sgpr_workgroup_id_x 1", ".end_amdhsa_kernel"]
    return "\n".join(out) + "\n"

def parse(args):
    kw = {}
    for a in args:
        k, v = a.split("=", 1)
        kw[k] = int(v) if re.fullmatch(r"-?\d+", v) else v.replace("+", " ")
    return Cfg(**kw)
if __name__ == "__main__":
    s = build(parse(sys.argv[2:]))
    open(sys.argv[1], "w").write(s)
    print(sys.argv[1], len(s), "bytes", s.count("\n"), "lines")
```
